```python
import torch

def _softmax(x, axis=-1):
    return torch.softmax(x, dim=axis)
def _gelu(x):
    return torch.nn.functional.gelu(x, approximate="tanh")
def _silu(x):
    return torch.nn.functional.silu(x)
def _sigmoid(x):
    return torch.sigmoid(x)
def _layernorm(x, axis=-1, eps=1e-5):
    m = x.mean(dim=axis, keepdim=True)
    v = x.var(dim=axis, keepdim=True, unbiased=False)
    return (x - m) / torch.sqrt(v + eps)
def _scatter_add(tgt, idx, src, axis=0):
    return tgt.clone().index_add_(axis, idx, src)
def _segment_sum(src, seg, n):
    out = torch.zeros((n,) + src.shape[1:], dtype=src.dtype)
    return out.index_add_(0, seg, src)
def _pad(x, pw):
    flat = tuple(v for pair in reversed(pw) for v in pair)
    return torch.nn.functional.pad(x, flat)

kernel_name = 'concat_heads__gqa_block_cached__mha_block_cached__near_ridge'

def setup_inputs():

    _w = (lambda a: (lambda t: t.to(torch.bfloat16) if t.is_floating_point() else t)(torch.as_tensor(a)))
    def _A_setup():
        B, Sq, D = 32, 80, 448
        Hq, Hkv, Sk, Dh = 16, 8, 512, 256
        assert Hq % Hkv == 0, (Hq, Hkv)
        return {
            "x": _w((lambda *s: torch.randn(*s, dtype=torch.bfloat16) * 0.8)(B, Sq, D)),
            "k_cache": _w((lambda *s: torch.randn(*s, dtype=torch.bfloat16) * 0.8)(B, Hkv, Sk, Dh)),
            "v_cache": _w((lambda *s: torch.randn(*s, dtype=torch.bfloat16) * 0.05)(B, Hkv, Sk, Dh)),
            "wq": _w((lambda *s: torch.randn(*s, dtype=torch.bfloat16) * 0.8)(D, Hq * Dh) * (D ** -0.5)),
            "wo": _w((lambda *s: torch.randn(*s, dtype=torch.bfloat16) * 0.05)(Hq * Dh, D) * ((Hq * Dh) ** -0.5)),
        }
    _A_in = _A_setup()

    def _B_setup():
        B, Sq, D = 32, 80, 448
        H, Sk, Dh = 16, 512, 256
        return {
            "x": _w((lambda *s: torch.randn(*s, dtype=torch.bfloat16) * 0.8)(B, Sq, D)),
            "k_cache": _w((lambda *s: torch.randn(*s, dtype=torch.bfloat16) * 0.8)(B, H, Sk, Dh)),
            "v_cache": _w((lambda *s: torch.randn(*s, dtype=torch.bfloat16) * 0.05)(B, H, Sk, Dh)),
            "wq": _w((lambda *s: torch.randn(*s, dtype=torch.bfloat16) * 0.8)(D, H * Dh) * (D ** -0.5)),
            "wo": _w((lambda *s: torch.randn(*s, dtype=torch.bfloat16) * 0.05)(H * Dh, D) * ((H * Dh) ** -0.5)),
        }
    _B_in = _B_setup()

    return {
        "A_x": _A_in["x"],
        "A_k_cache": _A_in["k_cache"],
        "A_v_cache": _A_in["v_cache"],
        "A_wq": _A_in["wq"],
        "A_wo": _A_in["wo"],
        "B_x": _B_in["x"],
        "B_k_cache": _B_in["k_cache"],
        "B_v_cache": _B_in["v_cache"],
        "B_wq": _B_in["wq"],
        "B_wo": _B_in["wo"],
    }

def reference(A_x, A_k_cache, A_v_cache, A_wq, A_wo, B_x, B_k_cache, B_v_cache, B_wq, B_wo):
    def _A_ref(x, k_cache, v_cache, wq, wo):
        B, Sq, D = x.shape
        Hq, Dh = 16, 256
        Hkv = k_cache.shape[1]
        rep = Hq // Hkv
        q = (lambda x, *d: x.permute(*d))((x @ wq).reshape(B, Sq, Hq, Dh), 0, 2, 1, 3)
        k = (lambda x, n, axis: torch.repeat_interleave(x, n, dim=axis))(k_cache, rep, axis=1)
        v = (lambda x, n, axis: torch.repeat_interleave(x, n, dim=axis))(v_cache, rep, axis=1)
        scores = torch.einsum("bhqd,bhkd->bhqk", q, k) * (Dh ** -0.5)
        p = _softmax(scores, axis=-1)
        o = torch.einsum("bhqk,bhkd->bhqd", p, v)
        return (lambda x, *d: x.permute(*d))(o, 0, 2, 1, 3).reshape(B, Sq, Hq * Dh) @ wo

    def _B_ref(x, k_cache, v_cache, wq, wo):
        B, Sq, D = x.shape
        H, Dh = 16, 256
        q = (lambda x, *d: x.permute(*d))((x @ wq).reshape(B, Sq, H, Dh), 0, 2, 1, 3)
        scores = torch.einsum("bhqd,bhkd->bhqk", q, k_cache) * (Dh ** -0.5)
        p = _softmax(scores, axis=-1)
        o = torch.einsum("bhqk,bhkd->bhqd", p, v_cache)
        return (lambda x, *d: x.permute(*d))(o, 0, 2, 1, 3).reshape(B, Sq, H * Dh) @ wo

    a = _A_ref(A_x, A_k_cache, A_v_cache, A_wq, A_wo)
    b = _B_ref(B_x, B_k_cache, B_v_cache, B_wq, B_wo)
    return torch.concatenate([a, b], axis=-1)
```

```python
def vr(base, n=1):
    return f"v{base}" if n == 1 else f"v[{base}:{base+n-1}]"

def sr(base, n=1):
    return f"s{base}" if n == 1 else f"s[{base}:{base+n-1}]"

def rng(base, n):
    return list(range(base, base + n))


class Asm:
    def __init__(self):
        self.lines = []
        self.ws = 0
        self.lgkm = []
        self.vm = []
        self.vw = {}
        self.mfma_c_read = {}
        self.store_data = {}
        self.sw_valu = {}
        self.m0_w = -100
        self.exec_w_valu = -100
        self.nmfma = 0

    def raw(self, text, states=1):
        self.lines.append("    " + text)
        self.ws += states

    def comment(self, t):
        self.lines.append("    ; " + t)

    def label(self, l):
        self.lines.append(l + ":")

    def nop(self, n):
        while n > 0:
            k = min(n, 16)
            self.raw(f"s_nop {k-1}", k)
            n -= k

    def _need(self, at, dist):
        gap = self.ws - at - 1
        return max(0, dist - gap)

    def wait_lgkm_regs(self, regs):
        regs = set(regs)
        last = -1
        for i, (tag, d) in enumerate(self.lgkm):
            if d & regs:
                last = i
        if last >= 0:
            self._wait_lgkm_idx(last)

    def _wait_lgkm_idx(self, idx):
        n = len(self.lgkm) - 1 - idx
        assert n <= 15
        self.raw(f"s_waitcnt lgkmcnt({n})")
        self.lgkm = self.lgkm[idx + 1:]

    def wait_lgkm_tag(self, tag):
        last = -1
        for i, (t, d) in enumerate(self.lgkm):
            if t == tag:
                last = i
        if last >= 0:
            self._wait_lgkm_idx(last)

    def wait_lgkm_all(self):
        if self.lgkm:
            self._wait_lgkm_idx(len(self.lgkm) - 1)

    def _wait_vm_idx(self, idx):
        n = len(self.vm) - 1 - idx
        assert n <= 63
        self.raw(f"s_waitcnt vmcnt({n})")
        self.vm = self.vm[idx + 1:]

    def wait_vm_tag(self, tag):
        last = -1
        for i, (t, d) in enumerate(self.vm):
            if t == tag:
                last = i
        if last >= 0:
            self._wait_vm_idx(last)

    def wait_vm_regs(self, regs):
        regs = set(regs)
        last = -1
        for i, (tag, d) in enumerate(self.vm):
            if d & regs:
                last = i
        if last >= 0:
            self._wait_vm_idx(last)

    def wait_vm_all(self):
        if self.vm:
            self._wait_vm_idx(len(self.vm) - 1)

    def _mem_ready(self, regs):
        self.wait_lgkm_regs(regs)
        self.wait_vm_regs(regs)

    def barrier(self):
        self.raw("s_barrier")

    def _haz(self, kind, reads, writes, creads=(), sreads=()):
        need = 0
        for r in list(reads) + list(creads):
            if r in self.vw:
                at, k = self.vw[r]
                if k == "mfma":
                    if kind == "mfma":
                        if r in creads:
                            pass
                        else:
                            need = max(need, self._need(at, 8))
                    else:
                        need = max(need, self._need(at, 8))
                elif k in ("valu", "trans"):
                    if kind == "mfma":
                        need = max(need, self._need(at, 2))
                    elif kind in ("perm", "dpp"):
                        need = max(need, self._need(at, 2))
                    elif kind == "rfl":
                        need = max(need, self._need(at, 1))
                    elif k == "trans" and kind in ("valu", "mem"):
                        need = max(need, self._need(at, 1))
        for r in writes:
            if r in self.vw:
                at, k = self.vw[r]
                if k == "mfma" and kind != "mfma":
                    need = max(need, self._need(at, 8))
                if k == "mfma" and kind == "mfma" and r not in creads:
                    need = max(need, self._need(at, 8))
            if kind != "mfma" and r in self.mfma_c_read:
                need = max(need, self._need(self.mfma_c_read[r], 3))
            if r in self.store_data:
                need = max(need, self._need(self.store_data[r], 2))
        for s in sreads:
            if s in self.sw_valu:
                need = max(need, self._need(self.sw_valu[s], 5 if kind == "mem" else 2))
        if kind == "mfma":
            need = max(need, self._need(self.exec_w_valu, 4))
        if need:
            self.nop(need)

    def valu(self, text, writes, reads, kind="valu", sreads=()):
        self._mem_ready(list(reads) + list(writes))
        self._haz(kind, reads, writes, sreads=sreads)
        at = self.ws
        self.raw(text)
        wk = "trans" if kind == "trans" else "valu"
        for r in writes:
            self.vw[r] = (at, wk)

    def rfl(self, sdst, vsrc):
        self._mem_ready([vsrc])
        self._haz("rfl", [vsrc], [])
        at = self.ws
        self.raw(f"v_readfirstlane_b32 s{sdst}, v{vsrc}")
        self.sw_valu[sdst] = at

    def salu(self, text, m0=False):
        at = self.ws
        self.raw(text)
        if m0:
            self.m0_w = at

    def mfma(self, d, a, b, czero=False):
        D = rng(d, 4); A = rng(a, 4); B = rng(b, 4)
        self._mem_ready(A + B + D)
        self._haz("mfma", A + B, D, creads=([] if czero else D))
        at = self.ws
        c = "0" if czero else vr(d, 4)
        self.raw(f"v_mfma_f32_16x16x32_bf16 {vr(d,4)}, {vr(a,4)}, {vr(b,4)}, {c}")
        for r in D:
            self.vw[r] = (at, "mfma")
            if not czero:
                self.mfma_c_read[r] = at
        self.nmfma += 1

    def _lgkm_room(self):
        if len(self.lgkm) >= 15:
            self._wait_lgkm_idx(len(self.lgkm) - 15)

    def ds_read(self, op, dst, n, addr, off, tag=None):
        assert 0 <= off < 65536, off
        D = rng(dst, n)
        self._mem_ready(D + [addr])
        self._lgkm_room()
        self._haz("mem", [addr], D)
        self.raw(f"{op} {vr(dst,n)}, v{addr}" + (f" offset:{off}" if off else ""))
        for r in D:
            self.vw.pop(r, None)
        self.lgkm.append((tag, set(D)))

    def ds_write(self, op, addr, src, n, off, tag=None):
        assert 0 <= off < 65536, off
        S = rng(src, n)
        self._mem_ready(S + [addr])
        self._lgkm_room()
        self._haz("mem", [addr] + S, [])
        at = self.ws
        self.raw(f"{op} v{addr}, {vr(src,n)}" + (f" offset:{off}" if off else ""))
        for r in S:
            self.store_data[r] = at
        self.lgkm.append((tag, set()))

    def _vm_room(self):
        if len(self.vm) >= 63:
            self._wait_vm_idx(len(self.vm) - 63)

    def dma(self, voff, srd, soff, off=0, flags="", tag=None):
        self._mem_ready([voff])
        self._vm_room()
        self._haz("mem", [voff], [], sreads=rng(srd, 4) + ([soff] if isinstance(soff, int) else []))
        need = self._need(self.m0_w, 1)
        if need:
            self.nop(need)
        so = f"s{soff}" if isinstance(soff, int) else soff
        self.raw(f"buffer_load_dwordx4 v{voff}, {sr(srd,4)}, {so} offen" + (f" offset:{off}" if off else "")
                 + (f" {flags}" if flags else "") + " lds")
        self.vm.append((tag, set()))

    def bload(self, dst, n, voff, srd, soff, off=0, flags="", tag=None):
        D = rng(dst, n)
        self._mem_ready(D + [voff])
        self._vm_room()
        self._haz("mem", [voff], D, sreads=rng(srd, 4) + ([soff] if isinstance(soff, int) else []))
        so = f"s{soff}" if isinstance(soff, int) else soff
        op = {1: "buffer_load_dword", 2: "buffer_load_dwordx2", 4: "buffer_load_dwordx4"}[n]
        self.raw(f"{op} {vr(dst,n)}, v{voff}, {sr(srd,4)}, {so} offen" + (f" offset:{off}" if off else "")
                 + (f" {flags}" if flags else ""))
        for r in D:
            self.vw.pop(r, None)
        self.vm.append((tag, set(D)))

    def bstore(self, src, n, voff, srd, soff, off=0, flags="", tag=None):
        S = rng(src, n)
        self._mem_ready(S + [voff])
        self._vm_room()
        self._haz("mem", [voff] + S, [], sreads=rng(srd, 4) + ([soff] if isinstance(soff, int) else []))
        at = self.ws
        so = f"s{soff}" if isinstance(soff, int) else soff
        op = {1: "buffer_store_dword", 2: "buffer_store_dwordx2", 4: "buffer_store_dwordx4"}[n]
        self.raw(f"{op} {vr(src,n)}, v{voff}, {sr(srd,4)}, {so} offen" + (f" offset:{off}" if off else "")
                 + (f" {flags}" if flags else ""))
        for r in S:
            self.store_data[r] = at
        self.vm.append((tag, set()))

    def text(self):
        return "\n".join(self.lines) + "\n"


def kernel_desc(name, vgpr=256, sgpr=102, accum=256):
    return f""".amdhsa_kernel {name}
  .amdhsa_next_free_vgpr {vgpr}
  .amdhsa_next_free_sgpr {sgpr}
  .amdhsa_accum_offset {accum}
  .amdhsa_group_segment_fixed_size 0
  .amdhsa_kernarg_size 104
  .amdhsa_user_sgpr_count 2
  .amdhsa_user_sgpr_kernarg_segment_ptr 1
  .amdhsa_system_sgpr_workgroup_id_x 1
.end_amdhsa_kernel
"""
```

```python
import sys, struct
from collections import deque
from asmlib import *

NAME = "concat_heads__gqa_block_cached__mha_block_cached__near_ridge"

class Cfg:
    R = 5
    kv_flags = "nt"
    w_flags = ""
    x_flags = ""
    po_flags = ""
    rd_flags = ""
    rel_pos = 8
    s_rel_pos = 5

def f32bits(x):
    return struct.unpack("<I", struct.pack("<f", x))[0]

BREG = 40960
RING0 = 81920
RINGSZ = 10240

ACC = 0
FR = 160
def A_tr(par, a): return FR + par * 16 + a * 4
def B_tr(b): return FR + 32 + 4 * b
def B_s(s, b): return FR + (s * 5 + b) * 4
def A_s(par, s): return FR + 40 + par * 8 + s * 4
_v = 216
def _alloc(n=1):
    global _v
    r = _v; _v += n
    assert _v <= 256
    return r
vTR = _alloc(4); vKR = _alloc(2); vV = _alloc(2); vWQ = _alloc(2); vWO = _alloc(2); vK = _alloc(2)
vX = _alloc(1); vXR = _alloc(4); vXRh = _alloc(2); vLin0 = _alloc(); vLin1 = _alloc(); vLinG = _alloc()
vPW = _alloc(); vQW = _alloc(); vSW = _alloc(); vSR = _alloc()
vM = _alloc(5)
vT0 = _alloc(); vT1 = _alloc(); vT2 = _alloc(); vT3 = _alloc()

def SRD(job, k): return 28 + job * 24 + k * 4
sRING = 76; sOFF = 77; sC = 78
sNC = 80; sXM0 = 81; sPOW = 82; sW = 83; sJ = 84; sG = 85; sB = 86; sHG = 87
sT0 = 88; sT1 = 89; sT2 = 90; sT3 = 91; sT4 = 92; sT5 = 93


def gen_main(cfg):
    A = Asm()
    R = cfg.R
    kn = "attn_kernel"
    A.label(kn)
    A.salu("s_cmp_ge_u32 s2, 256")
    A.salu("s_cbranch_scc1 L_attn_done")
    A.salu("s_load_dwordx16 s[4:19], s[0:1], 0")
    A.salu("s_load_dwordx4 s[20:23], s[0:1], 64")
    A.salu("s_load_dwordx2 s[24:25], s[0:1], 96")
    vL = vT0; vG = vT1; vQ = vT2; vTmp = vT3
    t1 = 0; t2 = 1; t3 = 2
    A.valu(f"v_lshrrev_b32 v{vTmp}, 6, v0", [vTmp], [0])
    A.valu(f"v_and_b32 v{vL}, 63, v0", [vL], [0])
    A.rfl(sW, vTmp)
    A.valu(f"v_lshrrev_b32 v{vG}, 4, v{vL}", [vG], [vL])
    A.valu(f"v_and_b32 v{vQ}, 15, v{vL}", [vQ], [vL])
    A.nop(2)
    A.salu(f"s_and_b32 s{sJ}, s{sW}, 3")
    A.salu(f"s_lshr_b32 s{sG}, s{sW}, 2")
    A.salu(f"s_lshr_b32 s{sB}, s2, 3")
    A.salu(f"s_and_b32 s{sHG}, s2, 7")
    A.salu(f"s_mul_i32 s{sRING}, s{sW}, {RINGSZ}")
    A.salu(f"s_add_u32 s{sRING}, s{sRING}, {RING0}")
    A.salu(f"s_mul_i32 s{sPOW}, s{sW}, 10240")
    c = 1.4426950408889634 / 16.0
    A.salu(f"s_mov_b32 s{sC}, {f32bits(c):#x}")
    A.salu(f"s_mov_b32 s{sC+1}, {f32bits(c):#x}")
    A.salu(f"s_mov_b32 s{sNC}, {f32bits(-c):#x}")
    A.salu(f"s_mul_i32 s{sXM0}, s{sG}, 20480")
    A.salu(f"s_lshl_b32 s{sT0}, s{sJ}, 10")
    A.salu(f"s_add_u32 s{sXM0}, s{sXM0}, s{sT0}")

    def V(text, w, r): A.valu(text, w if isinstance(w, list) else [w], r)
    V(f"v_lshrrev_b32 v{t1}, 2, v{vL}", t1, [vL])
    V(f"v_lshlrev_b32 v{t1}, 7, v{t1}", t1, [t1])
    V(f"v_bfe_u32 v{t2}, v{vL}, 3, 2", t2, [vL])
    V(f"v_lshl_add_u32 v{t1}, v{t2}, 5, v{t1}", t1, [t1, t2])
    V(f"v_and_b32 v{t2}, 3, v{vL}", t2, [vL])
    V(f"v_lshl_add_u32 v{t1}, v{t2}, 3, v{t1}", t1, [t1, t2])
    V(f"v_add_u32 v{vTR}, s{sRING}, v{t1}", vTR, [t1])
    for a in range(1, 4):
        V(f"v_xor_b32 v{vTR+a}, {a << 5}, v{vTR}", vTR + a, [vTR])
    V(f"v_lshrrev_b32 v{t1}, 1, v{vQ}", t1, [vQ])
    V(f"v_xor_b32 v{t1}, v{t1}, v{vG}", t1, [t1, vG])
    V(f"v_lshlrev_b32 v{t1}, 4, v{t1}", t1, [t1])
    V(f"v_lshl_add_u32 v{t1}, v{vQ}, 7, v{t1}", t1, [t1, vQ])
    V(f"v_add_u32 v{vKR}, s{sRING}, v{t1}", vKR, [t1])
    V(f"v_xor_b32 v{vKR+1}, 64, v{vKR}", vKR + 1, [vKR])
    V(f"v_and_b32 v{t1}, 7, v{vL}", t1, [vL])
    V(f"v_lshlrev_b32 v{t3}, 1, v{vG}", t3, [vG])
    V(f"v_xor_b32 v{t3}, v{t3}, v{t1}", t3, [t3, t1])
    V(f"v_lshlrev_b32 v{t3}, 4, v{t3}", t3, [t3])
    V(f"v_lshrrev_b32 v{t2}, 3, v{vL}", t2, [vL])
    A.salu(f"s_lshl_b32 s{sT0}, s{sJ}, 7")
    V(f"v_lshl_add_u32 v{vV}, v{t2}, 9, v{t3}", vV, [t2, t3])
    V(f"v_add_u32 v{vV}, s{sT0}, v{vV}", vV, [vV])
    V(f"v_add_u32 v{vV+1}, {4096-1024}, v{vV}", vV + 1, [vV])
    V(f"v_lshrrev_b32 v{vTmp}, 5, v{vL}", vTmp, [vL])
    V(f"v_lshlrev_b32 v{vTmp}, 3, v{vTmp}", vTmp, [vTmp])
    V(f"v_and_b32 v{vWQ}, 3, v{t2}", vWQ, [t2])
    V(f"v_add_u32 v{vTmp}, v{vTmp}, v{vWQ}", vTmp, [vTmp, vWQ])
    V(f"v_lshl_add_u32 v{vWQ}, v{vTmp}, 13, v{t3}", vWQ, [vTmp, t3])
    V(f"v_add_u32 v{vWQ}, s{sT0}, v{vWQ}", vWQ, [vWQ])
    V(f"v_add_u32 v{vWQ+1}, {16*8192-1024}, v{vWQ}", vWQ + 1, [vWQ])
    A.salu(f"s_lshl_b32 s{sT1}, s{sW}, 7")
    A.salu(f"s_cmp_eq_u32 s{sW}, 7")
    A.salu(f"s_cselect_b32 s{sT1}, 0x4000000, s{sT1}")
    V(f"v_mul_u32_u24 v{vWO}, 896, v{t2}", vWO, [t2])
    V(f"v_add3_u32 v{vWO}, v{vWO}, v{t3}, s{sT1}", vWO, [vWO, t3])
    V(f"v_add_u32 v{vWO+1}, {8*896-1024}, v{vWO}", vWO + 1, [vWO])
    V(f"v_xor_b32 v{t1}, v{t1}, v{vG}", t1, [t1, vG])
    V(f"v_lshlrev_b32 v{t1}, 4, v{t1}", t1, [t1])
    V(f"v_lshl_add_u32 v{vK}, v{t2}, 9, v{t1}", vK, [t2, t1])
    A.salu(f"s_lshl_b32 s{sT1}, s{sJ}, 16")
    V(f"v_add_u32 v{vK}, s{sT1}, v{vK}", vK, [vK])
    V(f"v_xor_b32 v{vK+1}, 64, v{vK}", vK + 1, [vK])
    V(f"v_add_u32 v{vK+1}, {4096-1024}, v{vK+1}", vK + 1, [vK + 1])
    A.salu(f"s_lshl_b32 s{sT1}, s{sJ}, 2")
    A.salu(f"s_lshl_b32 s{sT2}, s{sG}, 8")
    V(f"v_add_u32 v{t1}, s{sT1}, v{vG}", t1, [vG])
    V(f"v_xor_b32 v{t2}, v{t1}, v{vQ}", t2, [t1, vQ])
    V(f"v_lshlrev_b32 v{t2}, 4, v{t2}", t2, [t2])
    V(f"v_mul_u32_u24 v{vX}, 896, v{t1}", vX, [t1])
    V(f"v_add3_u32 v{vX}, v{vX}, v{t2}, s{sT2}", vX, [vX, t2])
    V(f"v_xor_b32 v{t1}, v{vG}, v{vQ}", t1, [vG, vQ])
    V(f"v_lshlrev_b32 v{t1}, 4, v{t1}", t1, [t1])
    V(f"v_lshl_add_u32 v{vXR}, v{vQ}, 8, v{t1}", vXR, [vQ, t1])
    for u in range(1, 4):
        V(f"v_xor_b32 v{vXR+u}, {u << 6}, v{vXR}", vXR + u, [vXR])
    for u in range(2):
        V(f"v_add_u32 v{vXRh+u}, 61440, v{vXR+u}", vXRh + u, [vXR + u])
    V(f"v_lshlrev_b32 v{vLin0}, 4, v{vL}", vLin0, [vL])
    V(f"v_add_u32 v{vLin1}, {BREG}, v{vLin0}", vLin1, [vLin0])
    A.salu(f"s_mul_i32 s{sT1}, s{sG}, {BREG}")
    A.salu(f"s_mul_i32 s{sT2}, s{sJ}, 10240")
    A.salu(f"s_add_u32 s{sT2}, s{sT2}, s{sT1}")
    V(f"v_add_u32 v{vLinG}, s{sT1}, v{vLin0}", vLinG, [vLin0])
    V(f"v_add_u32 v{vPW}, s{sT2}, v{vLin0}", vPW, [vLin0])
    V(f"v_lshrrev_b32 v{t1}, 1, v{vG}", t1, [vG])
    V(f"v_lshlrev_b32 v{t1}, 8, v{t1}", t1, [t1])
    V(f"v_and_b32 v{t2}, 1, v{vG}", t2, [vG])
    V(f"v_lshl_add_u32 v{t1}, v{t2}, 3, v{t1}", t1, [t1, t2])
    V(f"v_lshl_add_u32 v{t1}, v{vQ}, 4, v{t1}", t1, [t1, vQ])
    V(f"v_add_u32 v{vQW}, s{sT2}, v{t1}", vQW, [t1])
    V(f"v_lshlrev_b32 v{t1}, 3, v{vQ}", t1, [vQ])
    V(f"v_add_u32 v{vSW}, s{sRING}, v{t1}", vSW, [t1])
    A.salu(f"s_mul_i32 s{sT1}, s{sG}, {4*RINGSZ}")
    A.salu(f"s_add_u32 s{sT1}, s{sT1}, {RING0}")
    V(f"v_add_u32 v{vSR}, s{sT1}, v{t1}", vSR, [t1])

    A.raw("s_waitcnt lgkmcnt(0)")
    for job in range(2):
        A.salu(f"s_and_b32 s{sT0}, s{sB}, 1")
        if job: A.salu(f"s_xor_b32 s{sT0}, s{sT0}, 1")
        def sel(dst, a, b):
            A.salu(f"s_cselect_b64 s[{dst}:{dst+1}], s[{b}:{b+1}], s[{a}:{a+1}]")
        def fin(srd, off_s, nrec):
            A.salu(f"s_add_u32 s{srd}, s{srd}, s{off_s}")
            A.salu(f"s_addc_u32 s{srd+1}, s{srd+1}, 0")
            A.salu(f"s_and_b32 s{srd+1}, s{srd+1}, 0xffff")
            if isinstance(nrec, int): A.salu(f"s_mov_b32 s{srd+2}, {nrec}")
            else: A.salu(f"s_mov_b32 s{srd+2}, {nrec}")
            A.salu(f"s_mov_b32 s{srd+3}, 0x20000")
        A.salu(f"s_cmp_eq_u32 s{sT0}, 1")
        sel(SRD(job, 0), 4, 14); sel(SRD(job, 1), 10, 20); sel(SRD(job, 2), 6, 16)
        sel(SRD(job, 3), 8, 18); sel(SRD(job, 4), 12, 22)
        A.salu(f"s_lshl_b32 s{sT1}, s{sB}, 3")
        A.salu(f"s_add_u32 s{sT1}, s{sT1}, s{sHG}")
        A.salu(f"s_lshl_b32 s{sT2}, s{sT1}, 1")
        A.salu(f"s_add_u32 s{sT2}, s{sT2}, s{sG}")
        A.salu(f"s_cmp_eq_u32 s{sT0}, 1")
        A.salu(f"s_cselect_b32 s{sT2}, s{sT2}, s{sT1}")
        A.salu(f"s_lshl_b32 s{sT2}, s{sT2}, 18")
        fin(SRD(job, 2), sT2, 262144)
        fin(SRD(job, 3), sT2, 262144)
        A.salu(f"s_mul_i32 s{sT2}, s{sB}, 71680")
        fin(SRD(job, 0), sT2, 71680)
        A.salu(f"s_lshl_b32 s{sT2}, s{sHG}, 1")
        A.salu(f"s_add_u32 s{sT2}, s{sT2}, s{sG}")
        A.salu(f"s_lshl_b32 s{sT2}, s{sT2}, 9")
        A.salu(f"s_sub_u32 s{sT3}, {448*8192}, s{sT2}")
        fin(SRD(job, 1), sT2, f"s{sT3}")
        A.salu(f"s_mul_i32 s{sT2}, s{sHG}, {512*896}")
        fin(SRD(job, 4), sT2, 512 * 896)
        A.salu(f"s_lshl_b32 s{sT2}, s{sT0}, 8")
        A.salu(f"s_add_u32 s{sT2}, s{sT2}, s{sT1}")
        A.salu(f"s_mul_i32 s{sT2}, s{sT2}, 71680")
        A.salu(f"s_mov_b64 s[{SRD(job,5)}:{SRD(job,5)+1}], s[24:25]")
        fin(SRD(job, 5), sT2, 71680)

    seq = []
    base = {}
    for job in range(2):
        base[job, "WQ"] = len(seq)
        for s in range(14):
            for y in range(2): seq.append(("WQ", job, (32 * s + 4 * y) * 8192))
        base[job, "K"] = len(seq)
        for jj in range(4):
            for kt in range(8): seq.append(("K", job, kt * 8192 + jj * 128))
        base[job, "SCR"] = len(seq)
        seq.append(("SCR", job, 0))
        base[job, "V"] = len(seq)
        for hf in range(2):
            for w in range(4):
                for i in range(2):
                    key0 = 128 * w + 32 * (2 * hf + i)
                    for y in range(2): seq.append(("V", job, (key0 + 16 * y) * 512))
        base[job, "WO"] = len(seq)
        for s in range(16):
            for y in range(2): seq.append(("WO", job, (32 * s + 16 * y) * 896))
    st = {"queued": 0, "released": 0, "issued": set()}
    side = deque()

    def issue_slot_piece(n, pc):
        typ, job, off = seq[n]
        vo, srd, fl = {"WQ": (vWQ, SRD(job, 1), cfg.w_flags), "K": (vK, SRD(job, 2), cfg.kv_flags),
                       "V": (vV, SRD(job, 3), cfg.kv_flags), "WO": (vWO, SRD(job, 4), cfg.w_flags)}[typ]
        if pc == 0 or st.get("m0slot") != n:
            A.salu(f"s_mov_b32 s{sOFF}, {off}")
            A.salu(f"s_add_u32 m0, s{sRING}, {(n % R) * 2048}", m0=True)
            st["m0slot"] = n
        A.dma(vo + pc, srd, sOFF, off=1024 * pc, flags=fl, tag=("slot", n))
        if pc == 1: st["issued"].add(n)

    def refill():
        while st["queued"] < len(seq) and st["queued"] - R < st["released"]:
            n = st["queued"]; st["queued"] += 1
            if seq[n][0] == "SCR":
                st["issued"].add(n); continue
            side.append(lambda n=n: issue_slot_piece(n, 0))
            side.append(lambda n=n: issue_slot_piece(n, 1))

    def release(n):
        assert n == st["released"], (n, st["released"])
        st["released"] += 1
        refill()

    def pump(k=1):
        for _ in range(k):
            if side: side.popleft()()

    def flush_side():
        while side: side.popleft()()

    def need_slot(n):
        while n not in st["issued"]:
            assert side, n
            side.popleft()()
        A.wait_vm_tag(("slot", n))

    def x_dma(job, pair, t):
        A.salu(f"s_mov_b32 s{sOFF}, {t * 14336 + pair * 512}")
        A.salu(f"s_add_u32 m0, s{sXM0}, {pair * 40960 + t * 4096}", m0=True)
        st["m0slot"] = None
        A.dma(vX, SRD(job, 0), sOFF, flags=cfg.x_flags, tag=("x", job, pair))

    def load_A_tr(n0, par, which):
        for (y, a) in which:
            n = n0 + y
            A.ds_read("ds_read_b64_tr_b16", A_tr(par, a) + 2 * y, 2, vTR + a, (n % R) * 2048, tag=("rd", n))

    def prefetch_A_tr(n0):
        need_slot(n0); need_slot(n0 + 1)
        load_A_tr(n0, 0, [(y, a) for y in range(2) for a in range(4)])

    def gemm_tr(nk, acc, n0, bread, breaks={}, post={}):
        for b in range(5): bread(0, b)
        A.wait_lgkm_tag(("rd", n0 + 1))
        release(n0); release(n0 + 1)
        for s in range(nk):
            par = s & 1
            nxt = s + 1 < nk
            nn = n0 + 2 * (s + 1)
            for p in range(20):
                b, a = divmod(p, 4)
                if nxt and p == 0:
                    need_slot(nn)
                if nxt and p == 2:
                    need_slot(nn + 1)
                A.mfma(acc + (a * 5 + b) * 4, A_tr(par, a), B_tr(b), czero=(s == 0))
                if nxt and p < 4:
                    y = p >> 1
                    load_A_tr(nn, par ^ 1, [(y, (p & 1) * 2), (y, (p & 1) * 2 + 1)])
                if nxt and a == 3 and (s + 1) not in breaks:
                    bread(s + 1, b)
                if nxt and p == cfg.rel_pos:
                    A.wait_lgkm_tag(("rd", nn + 1))
                    release(nn); release(nn + 1)
                if p >= 4: pump(1)
            if s in post: post[s]()
            if nxt and (s + 1) in breaks:
                breaks[s + 1]()
                for b in range(5): bread(s + 1, b)

    def cvt(dst, a, b):
        A.valu(f"v_cvt_pk_bf16_f32 v{dst}, v{a}, v{b}", [dst], [a, b])

    for t in range(5): x_dma(0, 0, t)
    refill(); flush_side()
    for t in range(5): x_dma(0, 1, t)

    for job in range(2):
        A.comment(f"================ job {job}: Q-proj")
        n0 = base[job, "WQ"]
        prefetch_A_tr(n0)
        A.wait_vm_tag(("x", job, 0))
        A.barrier()
        if job == 1:
            pre = deque(lambda t=t: x_dma(1, 1, t) for t in range(5))
            pre.extend(side); side.clear(); side.extend(pre)

        def bread_x(ks, b):
            cidx, u = divmod(ks, 4)
            if ks == 8 and b == 0:
                flush_side()
                A.wait_vm_tag(("x", job, 1))
                A.barrier()
            if cidx < 3:
                A.ds_read("ds_read_b128", B_tr(b), 4, vXR + u, cidx * 20480 + b * 4096)
            else:
                A.ds_read("ds_read_b128", B_tr(b), 4, vXRh + u, b * 4096)
        gemm_tr(14, ACC, n0, bread_x)
        flush_side()
        nk0 = base[job, "K"]
        A.barrier()
        for b in range(5):
            for a in range(4):
                r = ACC + (a * 5 + b) * 4
                cvt(r, r, r + 1); cvt(r + 1, r + 2, r + 3)
                A.ds_write("ds_write_b64", vQW, r, 2, ((a >> 1) * 5 + b) * 1024 + (a & 1) * 512)
        need_slot(nk0)
        for s in range(2):
            A.ds_read("ds_read_b128", A_s(0, s), 4, vKR + s, (nk0 % R) * 2048, tag=("rd", nk0))
        A.wait_lgkm_all()
        release(nk0)
        A.barrier()
        for s in range(2):
            for b in range(5):
                A.ds_read("ds_read_b128", B_s(s, b), 4, vLinG, (s * 5 + b) * 1024)
        maxq = deque()
        def acc_s(kt, b): return ACC + (kt * 5 + b) * 4
        for u in range(32):
            jj, kt = divmod(u, 8)
            par = u & 1
            nxt = u + 1 < 32
            nn = nk0 + u + 1
            for p in range(10):
                s, b = divmod(p, 5)
                if nxt and p == 0: need_slot(nn)
                A.mfma(acc_s(kt, b), A_s(par, s), B_s(s, b), czero=(jj == 0 and s == 0))
                if nxt and p < 2:
                    A.ds_read("ds_read_b128", A_s(par ^ 1, p), 4, vKR + p, (nn % R) * 2048, tag=("rd", nn))
                if kt == 7 and jj < 3:
                    A.ds_read("ds_read_b128", B_s(s, b), 4, vLinG, ((2 * (jj + 1) + s) * 5 + b) * 1024)
                if nxt and p == cfg.s_rel_pos:
                    A.wait_lgkm_tag(("rd", nn))
                    release(nn)
                if p >= 2: pump(1)
                if maxq and p >= 4:
                    maxq.popleft()();
                    if maxq: maxq.popleft()()
            if jj == 3:
                for b in range(5):
                    r = acc_s(kt, b); m = vM + b
                    if kt == 0:
                        maxq.append(lambda r=r, m=m: V(f"v_max3_f32 v{m}, v{r}, v{r+1}, v{r+2}", m, [r, r+1, r+2]))
                        maxq.append(lambda r=r, m=m: V(f"v_max_f32 v{m}, v{m}, v{r+3}", m, [m, r+3]))
                    else:
                        maxq.append(lambda r=r, m=m: V(f"v_max3_f32 v{m}, v{m}, v{r}, v{r+1}", m, [m, r, r+1]))
                        maxq.append(lambda r=r, m=m: V(f"v_max3_f32 v{m}, v{m}, v{r+2}, v{r+3}", m, [m, r+2, r+3]))
        flush_side()
        while maxq: maxq.popleft()()
        ML = lambda b: 176 + 2 * b
        NMC = lambda b: 186 + 2 * b
        LS = lambda b: 196 + 2 * b
        TT = lambda b: 206 + b
        def xl_reduce(src, dst, op):
            for b in range(5): V(f"v_mov_b32 v{TT(b)}, v{src(b)}", TT(b), [src(b)])
            for b in range(5): A.valu(f"v_permlane32_swap_b32 v{src(b)}, v{TT(b)}", [src(b), TT(b)], [src(b), TT(b)], kind="perm")
            for b in range(5): V(f"{op} v{src(b)}, v{src(b)}, v{TT(b)}", src(b), [src(b), TT(b)])
            for b in range(5): V(f"v_mov_b32 v{TT(b)}, v{src(b)}", TT(b), [src(b)])
            for b in range(5): A.valu(f"v_permlane16_swap_b32 v{src(b)}, v{TT(b)}", [src(b), TT(b)], [src(b), TT(b)], kind="perm")
            for b in range(5): V(f"{op} v{dst(b)}, v{src(b)}, v{TT(b)}", dst(b), [src(b), TT(b)])
        xl_reduce(lambda b: vM + b, ML, "v_max_f32")
        for b in range(5): V(f"v_mul_f32 v{NMC(b)}, s{sNC}, v{ML(b)}", NMC(b), [ML(b)])
        for kt in range(8):
            for b in range(5):
                r = acc_s(kt, b)
                for h in range(2):
                    x = r + 2 * h
                    A.valu(f"v_pk_fma_f32 v[{x}:{x+1}], v[{x}:{x+1}], s[{sC}:{sC+1}], v[{NMC(b)}:{NMC(b)+1}] op_sel_hi:[1,0,0]",
                           [x, x + 1], [x, x + 1, NMC(b)])
            for b in range(5):
                r = acc_s(kt, b)
                for e in range(4):
                    A.valu(f"v_exp_f32 v{r+e}, v{r+e}", [r + e], [r + e], kind="trans")
            for b in range(5):
                r = acc_s(kt, b); l = LS(b)
                if kt == 0:
                    A.valu(f"v_pk_add_f32 v[{l}:{l+1}], v[{r}:{r+1}], v[{r+2}:{r+3}]", [l, l + 1], rng(r, 4))
                else:
                    A.valu(f"v_pk_add_f32 v[{l}:{l+1}], v[{l}:{l+1}], v[{r}:{r+1}]", [l, l + 1], [l, l + 1, r, r + 1])
            if kt > 0:
                for b in range(5):
                    r = acc_s(kt, b); l = LS(b)
                    A.valu(f"v_pk_add_f32 v[{l}:{l+1}], v[{l}:{l+1}], v[{r+2}:{r+3}]", [l, l + 1], [l, l + 1, r + 2, r + 3])
        for b in range(5): V(f"v_add_f32 v{LS(b)}, v{LS(b)}, v{LS(b)+1}", LS(b), [LS(b), LS(b) + 1])
        xl_reduce(LS, lambda b: ML(b) + 1, "v_add_f32")
        ns = base[job, "SCR"]
        assert ns - R < st["released"]
        A.salu("s_mov_b64 exec, 0xffff")
        for b in range(5):
            A.ds_write("ds_write_b64", vSW, ML(b), 2, (ns % R) * 2048 + b * 128)
        A.salu("s_mov_b64 exec, -1")
        A.wait_lgkm_all()
        A.barrier()
        RB = lambda b: [160, 168, 176, 196, 204][b]
        for b in range(5):
            for jj in range(4):
                A.ds_read("ds_read_b64", RB(b) + 2 * jj, 2, vSR, jj * RINGSZ + (ns % R) * 2048 + b * 128)
        MX = lambda b: vM + b
        for b in range(5):
            r = RB(b)
            V(f"v_max3_f32 v{MX(b)}, v{r}, v{r+2}, v{r+4}", MX(b), [r, r + 2, r + 4])
            V(f"v_max_f32 v{MX(b)}, v{MX(b)}, v{r+6}", MX(b), [MX(b), r + 6])
            V(f"v_mul_f32 v{MX(b)}, s{sNC}, v{MX(b)}", MX(b), [MX(b)])
            for jj in range(4):
                V(f"v_fma_f32 v{r+2*jj}, v{r+2*jj}, s{sC}, v{MX(b)}", r + 2 * jj, [r + 2 * jj, MX(b)])
            V(f"v_sub_f32 v{NMC(b)}, v{MX(b)}, v{NMC(b)}", NMC(b), [MX(b), NMC(b)])
        for b in range(5):
            r = RB(b)
            for jj in range(4):
                A.valu(f"v_exp_f32 v{r+2*jj}, v{r+2*jj}", [r + 2 * jj], [r + 2 * jj], kind="trans")
            A.valu(f"v_exp_f32 v{NMC(b)}, v{NMC(b)}", [NMC(b)], [NMC(b)], kind="trans")
        for b in range(5):
            r = RB(b)
            V(f"v_mul_f32 v{MX(b)}, v{r}, v{r+1}", MX(b), [r, r + 1])
            for jj in range(1, 4):
                V(f"v_fmac_f32 v{MX(b)}, v{r+2*jj}, v{r+2*jj+1}", MX(b), [MX(b), r + 2 * jj, r + 2 * jj + 1])
        for b in range(5):
            A.valu(f"v_rcp_f32 v{MX(b)}, v{MX(b)}", [MX(b)], [MX(b)], kind="trans")
        for b in range(5):
            V(f"v_mul_f32 v{MX(b)}, v{MX(b)}, v{NMC(b)}", MX(b), [MX(b), NMC(b)])
        for b in range(5):
            V(f"v_mov_b32 v{NMC(b)}, v{MX(b)}", NMC(b), [MX(b)])
        def packP(i, b):
            r0 = acc_s(2 * i, b); r1 = acc_s(2 * i + 1, b); f = NMC(b)
            for x in (r0, r0 + 2, r1, r1 + 2):
                A.valu(f"v_pk_mul_f32 v[{x}:{x+1}], v[{x}:{x+1}], v[{f}:{f+1}] op_sel_hi:[1,0]", [x, x + 1], [x, x + 1, f])
            cvt(r0, r0, r0 + 1); cvt(r0 + 1, r0 + 2, r0 + 3); cvt(r0 + 2, r1, r1 + 1); cvt(r0 + 3, r1 + 2, r1 + 3)
        def writeP(i, b):
            A.ds_write("ds_write_b128", vPW, acc_s(2 * i, b), 4, ((i & 1) * 5 + b) * 1024)
        for i in range(2):
            for b in range(5):
                packP(i, b); writeP(i, b)
        for i in range(2, 4):
            for b in range(5):
                packP(i, b)
        nv0 = base[job, "V"]
        prefetch_A_tr(nv0)
        A.wait_lgkm_all()
        A.barrier()
        release(ns)
        def bread_p(ks, b):
            A.ds_read("ds_read_b128", B_tr(b), 4, vLinG, ((ks & 7) * 5 + b) * 1024)
        def mid_pv():
            A.barrier()
            for i in range(2, 4):
                for b in range(5): writeP(i, b)
            A.wait_lgkm_all()
            A.barrier()
        gemm_tr(16, ACC, nv0, bread_p, breaks={8: mid_pv})
        flush_side()
        A.barrier()
        for i in range(2):
            for b in range(5):
                r0 = ACC + ((2 * i) * 5 + b) * 4; r1 = ACC + ((2 * i + 1) * 5 + b) * 4
                cvt(r0, r0, r0 + 1); cvt(r0 + 1, r0 + 2, r0 + 3); cvt(r0 + 2, r1, r1 + 1); cvt(r0 + 3, r1 + 2, r1 + 3)
                A.ds_write("ds_write_b128", vPW, r0, 4, (i * 5 + b) * 1024)
        no0 = base[job, "WO"]
        prefetch_A_tr(no0)
        A.wait_lgkm_all()
        A.barrier()
        OA = ACC + 80
        def bread_o(ks, b):
            A.ds_read("ds_read_b128", B_tr(b), 4, vLin0 if ks < 8 else vLin1, ((ks & 7) * 5 + b) * 1024)
        def mid_o():
            A.barrier()
            for t in range(5): side.append(lambda t=t: x_dma(1, 0, t))
        gemm_tr(16, OA, no0, bread_o, post=({7: mid_o} if job == 0 else {}))
        flush_side()
        def store_po(i, b, job=job):
            r0 = OA + ((2 * i) * 5 + b) * 4; r1 = OA + ((2 * i + 1) * 5 + b) * 4
            cvt(r0, r0, r0 + 1); cvt(r0 + 1, r0 + 2, r0 + 3); cvt(r0 + 2, r1, r1 + 1); cvt(r0 + 3, r1 + 2, r1 + 3)
            A.salu(f"s_add_u32 s{sT0}, s{sPOW}, {(i * 5 + b) * 1024}")
            A.bstore(r0, 4, vLin0, SRD(job, 5), sT0, flags=cfg.po_flags, tag=("po", job))
        for i in range(2):
            for b in range(5):
                if job == 0: side.append(lambda i=i, b=b: store_po(i, b))
                else: store_po(i, b)
    A.label("L_attn_done")
    A.raw("s_endpgm")
    return kn, A


def gen_reduce(cfg):
    A = Asm()
    kn = "reduce_kernel"
    A.label(kn)
    A.salu("s_cmp_ge_u32 s2, 560")
    A.salu("s_cbranch_scc1 L_red_done")
    A.salu("s_load_dwordx2 s[4:5], s[0:1], 80")
    A.salu("s_load_dwordx2 s[6:7], s[0:1], 96")
    def V(text, w, r): A.valu(text, w if isinstance(w, list) else [w], r)
    V("v_lshrrev_b32 v1, 6, v0", 1, [0])
    V("v_and_b32 v2, 63, v0", 2, [0])
    A.rfl(8, 1)
    A.nop(2)
    A.salu("s_lshl_b32 s9, s2, 2")
    A.salu("s_add_u32 s9, s9, s8")
    A.salu(f"s_mul_hi_u32 s10, s9, {(1 << 32) // 35 + 1}")
    A.salu("s_mul_i32 s11, s10, 35")
    A.salu("s_sub_u32 s11, s9, s11")
    A.salu("s_mul_i32 s12, s11, 52")
    A.salu("s_lshr_b32 s12, s12, 8")
    A.salu("s_mul_i32 s13, s12, 5")
    A.salu("s_sub_u32 s13, s11, s13")
    A.raw("s_waitcnt lgkmcnt(0)")
    A.salu(f"s_mul_i32 s14, s10, {8*71680}")
    A.salu("s_add_u32 s16, s6, s14")
    A.salu("s_addc_u32 s17, s7, 0")
    A.salu("s_and_b32 s17, s17, 0xffff")
    A.salu(f"s_mov_b32 s18, {8*71680}")
    A.salu("s_mov_b32 s19, 0x20000")
    A.salu("s_mov_b32 s20, s4")
    A.salu("s_and_b32 s21, s5, 0xffff")
    A.salu(f"s_mov_b32 s22, {32*80*896*2}")
    A.salu("s_mov_b32 s23, 0x20000")
    A.salu("s_mul_i32 s14, s12, 10")
    A.salu("s_add_u32 s14, s14, s13")
    A.salu("s_lshl_b32 s14, s14, 10")
    V("v_lshl_add_u32 v3, v2, 4, s14", 3, [2])
    for g in range(8):
        for i in range(2):
            A.salu(f"s_mov_b32 s15, {g * 71680 + i * 5120}")
            A.bload(16 + (g * 2 + i) * 4, 4, 3, 16, 15, flags=cfg.rd_flags)
    A.salu("s_and_b32 s24, s10, 31")
    A.salu("s_lshr_b32 s25, s10, 5")
    A.salu("s_mul_i32 s24, s24, 80")
    A.salu("s_lshl_b32 s26, s13, 4")
    A.salu("s_add_u32 s24, s24, s26")
    A.salu("s_mul_i32 s24, s24, 1792")
    A.salu("s_mul_i32 s25, s25, 896")
    A.salu("s_add_u32 s24, s24, s25")
    A.salu("s_lshl_b32 s26, s12, 7")
    A.salu("s_add_u32 s24, s24, s26")
    V("v_and_b32 v4, 15, v2", 4, [2])
    V("v_mul_u32_u24 v4, 1792, v4", 4, [4])
    V("v_bfe_u32 v5, v2, 4, 1", 5, [2])
    V("v_lshl_add_u32 v4, v5, 5, v4", 4, [4, 5])
    V("v_lshrrev_b32 v5, 5, v2", 5, [2])
    V("v_lshl_add_u32 v4, v5, 4, v4", 4, [4, 5])
    for g in range(8):
        for i in range(2):
            src = 16 + (g * 2 + i) * 4
            for d in range(4):
                lo = 80 + i * 8 + 2 * d; hi = lo + 1
                if g == 0:
                    V(f"v_lshlrev_b32 v{lo}, 16, v{src+d}", lo, [src + d])
                    V(f"v_and_b32 v{hi}, 0xffff0000, v{src+d}", hi, [src + d])
                else:
                    V(f"v_lshlrev_b32 v6, 16, v{src+d}", 6, [src + d])
                    V(f"v_and_b32 v7, 0xffff0000, v{src+d}", 7, [src + d])
                    A.valu(f"v_pk_add_f32 v[{lo}:{lo+1}], v[{lo}:{lo+1}], v[6:7]", [lo, lo + 1], [lo, lo + 1, 6, 7])
    for i in range(2):
        for d in range(4):
            lo = 80 + i * 8 + 2 * d
            V(f"v_cvt_pk_bf16_f32 v{8+i*4+d}, v{lo}, v{lo+1}", 8 + i * 4 + d, [lo, lo + 1])
    for i in range(2):
        r = 8 + i * 4
        A.valu(f"v_permlane16_swap_b32 v{r}, v{r+2}", [r, r + 2], [r, r + 2], kind="perm")
        A.valu(f"v_permlane16_swap_b32 v{r+1}, v{r+3}", [r + 1, r + 3], [r + 1, r + 3], kind="perm")
    for i in range(2):
        A.bstore(8 + i * 4, 4, 4, 20, 24, off=64 * i)
    A.label("L_red_done")
    A.raw("s_endpgm")
    return kn, A


def build(cfg, path):
    hdr = open("cdna_kernels/" + NAME + ".s.ref").read().split("\n")
    head = [l for l in hdr if l.startswith(";") and "@launch" not in l and "Override launch" not in l and "grid=ceil" not in l]
    k1, A1 = gen_main(cfg)
    k2, A2 = gen_reduce(cfg)
    out = "\n".join(head) + "\n"
    out += f"; @launch kernel={k1} grid=(256,1,1) block=(512,1,1) lds=163840\n"
    out += f"; @launch kernel={k2} grid=(560,1,1) block=(256,1,1) lds=0\n"
    out += '.amdgcn_target "amdgcn-amd-amdhsa--gfx950"\n.text\n'
    for k, A in ((k1, A1), (k2, A2)):
        out += f".globl {k}\n.p2align 8\n.type {k},@function\n" + A.text()
    out += '.section .rodata,"a"\n.p2align 6\n'
    out += kernel_desc(k1, 256, 102, 256)
    out += ".p2align 6\n" + kernel_desc(k2, 96, 32, 96)
    open(path, "w").write(out)
    print("mfma", A1.nmfma, "lines", len(A1.lines))

if __name__ == "__main__":
    cfg = Cfg()
    for a in sys.argv[2:]:
        k, v = a.split("=")
        setattr(cfg, k, type(getattr(cfg, k))(v))
    build(cfg, sys.argv[1] if len(sys.argv) > 1 else "cdna_kernels/" + NAME + ".s")
```

```python
import sys, struct
from collections import deque
from asmlib import *

NAME = "concat_heads__gqa_block_cached__mha_block_cached__near_ridge"

class Cfg:
    R = 5
    kv_flags = "nt"
    w_flags = ""
    x_flags = ""
    po_flags = ""
    rd_flags = ""
    rel_pos = 8
    s_rel_pos = 5
    stamp = 0
    sync_s = 0
    sync_pv = 0
    wpre = 0
    rot = 1
    xmap = 0

def f32bits(x):
    return struct.unpack("<I", struct.pack("<f", x))[0]

BREG = 40960
RING0 = 81920
RINGSZ = 10240

ACC = 0
FR = 160
def A_tr(par, a): return FR + par * 16 + a * 4
def B_tr(b): return FR + 32 + 4 * b
def B_s(s, b): return FR + (s * 5 + b) * 4
def A_s(par, s): return FR + 40 + par * 8 + s * 4
_v = 216
def _alloc(n=1):
    global _v
    r = _v; _v += n
    assert _v <= 256
    return r
vTR = _alloc(4); vKR = _alloc(2); vV = _alloc(2); vWQ = _alloc(2); vWO = _alloc(2); vK = _alloc(2)
vX = _alloc(1); vXR = _alloc(4); vXRh = _alloc(2); vLin0 = _alloc(); vLin1 = _alloc(); vLinG = _alloc()
vPW = _alloc(); vQW = _alloc(); vSW = _alloc(); vSR = _alloc()
vM = _alloc(5)
vT0 = _alloc(); vT1 = _alloc(); vT2 = _alloc(); vT3 = _alloc()

def SRD(job, k): return 28 + job * 24 + k * 4
sRING = 76; sOFF = 77; sC = 78
sNC = 80; sXM0 = 81; sPOW = 82; sW = 83; sJ = 84; sG = 85; sB = 86; sHG = 87
sT0 = 88; sT1 = 89; sT2 = 90; sT3 = 91; sT4 = 92; sT5 = 93
sCOL = 94
vQR = 253


def gen_main(cfg):
    A = Asm()
    R = cfg.R
    kn = "attn_kernel"
    A.label(kn)
    A.salu("s_cmp_ge_u32 s2, 256")
    A.salu("s_cbranch_scc1 L_attn_done")
    A.salu("s_load_dwordx16 s[4:19], s[0:1], 0")
    A.salu("s_load_dwordx4 s[20:23], s[0:1], 64")
    A.salu("s_load_dwordx2 s[24:25], s[0:1], 96")
    vL = vT0; vG = vT1; vQ = vT2; vTmp = vT3
    t1 = 0; t2 = 1; t3 = 2
    A.valu(f"v_lshrrev_b32 v{vTmp}, 6, v0", [vTmp], [0])
    A.valu(f"v_and_b32 v{vL}, 63, v0", [vL], [0])
    A.rfl(sW, vTmp)
    A.valu(f"v_lshrrev_b32 v{vG}, 4, v{vL}", [vG], [vL])
    A.valu(f"v_and_b32 v{vQ}, 15, v{vL}", [vQ], [vL])
    A.nop(2)
    A.salu(f"s_and_b32 s{sJ}, s{sW}, 3")
    A.salu(f"s_lshr_b32 s{sG}, s{sW}, 2")
    if cfg.xmap:
        A.salu(f"s_lshr_b32 s{sB}, s2, 4")
        A.salu(f"s_bfe_u32 s{sT0}, s2, 0x10002")
        A.salu(f"s_lshl_b32 s{sT0}, s{sT0}, 4")
        A.salu(f"s_add_u32 s{sB}, s{sB}, s{sT0}")
        A.salu(f"s_and_b32 s{sHG}, s2, 3")
        A.salu(f"s_bfe_u32 s3, s2, 0x10003")
    else:
        A.salu(f"s_lshr_b32 s{sB}, s2, 3")
        A.salu(f"s_and_b32 s{sHG}, s2, 7")
    A.salu(f"s_mul_i32 s{sRING}, s{sW}, {RINGSZ}")
    A.salu(f"s_add_u32 s{sRING}, s{sRING}, {RING0}")
    A.salu(f"s_mul_i32 s{sPOW}, s{sW}, 10240")
    c = 1.4426950408889634 / 16.0
    A.salu(f"s_mov_b32 s{sC}, {f32bits(c):#x}")
    A.salu(f"s_mov_b32 s{sC+1}, {f32bits(c):#x}")
    A.salu(f"s_mov_b32 s{sNC}, {f32bits(-c):#x}")
    A.salu(f"s_mul_i32 s{sXM0}, s{sG}, 20480")
    A.salu(f"s_lshl_b32 s{sT0}, s{sJ}, 10")
    A.salu(f"s_add_u32 s{sXM0}, s{sXM0}, s{sT0}")

    for jj in range(4):
        if cfg.rot:
            A.salu(f"s_xor_b32 s{sCOL+jj}, s{sJ}, {jj}")
            A.salu(f"s_lshl_b32 s{sCOL+jj}, s{sCOL+jj}, 7")
        else:
            A.salu(f"s_mov_b32 s{sCOL+jj}, {jj*128}")
    def V(text, w, r): A.valu(text, w if isinstance(w, list) else [w], r)
    V(f"v_lshrrev_b32 v{t1}, 2, v{vL}", t1, [vL])
    V(f"v_lshlrev_b32 v{t1}, 7, v{t1}", t1, [t1])
    V(f"v_bfe_u32 v{t2}, v{vL}, 3, 2", t2, [vL])
    V(f"v_lshl_add_u32 v{t1}, v{t2}, 5, v{t1}", t1, [t1, t2])
    V(f"v_and_b32 v{t2}, 3, v{vL}", t2, [vL])
    V(f"v_lshl_add_u32 v{t1}, v{t2}, 3, v{t1}", t1, [t1, t2])
    V(f"v_add_u32 v{vTR}, s{sRING}, v{t1}", vTR, [t1])
    for a in range(1, 4):
        V(f"v_xor_b32 v{vTR+a}, {a << 5}, v{vTR}", vTR + a, [vTR])
    V(f"v_lshrrev_b32 v{t1}, 1, v{vQ}", t1, [vQ])
    V(f"v_xor_b32 v{t1}, v{t1}, v{vG}", t1, [t1, vG])
    V(f"v_lshlrev_b32 v{t1}, 4, v{t1}", t1, [t1])
    V(f"v_lshl_add_u32 v{t1}, v{vQ}, 7, v{t1}", t1, [t1, vQ])
    V(f"v_add_u32 v{vKR}, s{sRING}, v{t1}", vKR, [t1])
    V(f"v_xor_b32 v{vKR+1}, 64, v{vKR}", vKR + 1, [vKR])
    V(f"v_and_b32 v{t1}, 7, v{vL}", t1, [vL])
    V(f"v_lshlrev_b32 v{t3}, 1, v{vG}", t3, [vG])
    V(f"v_xor_b32 v{t3}, v{t3}, v{t1}", t3, [t3, t1])
    V(f"v_lshlrev_b32 v{t3}, 4, v{t3}", t3, [t3])
    V(f"v_lshrrev_b32 v{t2}, 3, v{vL}", t2, [vL])
    A.salu(f"s_lshl_b32 s{sT0}, s{sJ}, 7")
    V(f"v_lshl_add_u32 v{vV}, v{t2}, 9, v{t3}", vV, [t2, t3])
    V(f"v_add_u32 v{vV}, s{sT0}, v{vV}", vV, [vV])
    V(f"v_add_u32 v{vV+1}, {4096-1024}, v{vV}", vV + 1, [vV])
    V(f"v_lshrrev_b32 v{vTmp}, 5, v{vL}", vTmp, [vL])
    V(f"v_lshlrev_b32 v{vTmp}, 3, v{vTmp}", vTmp, [vTmp])
    V(f"v_and_b32 v{vWQ}, 3, v{t2}", vWQ, [t2])
    V(f"v_add_u32 v{vTmp}, v{vTmp}, v{vWQ}", vTmp, [vTmp, vWQ])
    V(f"v_lshl_add_u32 v{vWQ}, v{vTmp}, 13, v{t3}", vWQ, [vTmp, t3])
    V(f"v_add_u32 v{vWQ}, s{sT0}, v{vWQ}", vWQ, [vWQ])
    V(f"v_add_u32 v{vWQ+1}, {16*8192-1024}, v{vWQ}", vWQ + 1, [vWQ])
    A.salu(f"s_lshl_b32 s{sT1}, s{sW}, 7")
    A.salu(f"s_cmp_eq_u32 s{sW}, 7")
    A.salu(f"s_cselect_b32 s{sT1}, 0x4000000, s{sT1}")
    V(f"v_mul_u32_u24 v{vWO}, 896, v{t2}", vWO, [t2])
    V(f"v_add3_u32 v{vWO}, v{vWO}, v{t3}, s{sT1}", vWO, [vWO, t3])
    V(f"v_add_u32 v{vWO+1}, {8*896-1024}, v{vWO}", vWO + 1, [vWO])
    V(f"v_xor_b32 v{t1}, v{t1}, v{vG}", t1, [t1, vG])
    V(f"v_lshlrev_b32 v{t1}, 4, v{t1}", t1, [t1])
    V(f"v_lshl_add_u32 v{vK}, v{t2}, 9, v{t1}", vK, [t2, t1])
    A.salu(f"s_lshl_b32 s{sT1}, s{sJ}, 16")
    V(f"v_add_u32 v{vK}, s{sT1}, v{vK}", vK, [vK])
    V(f"v_xor_b32 v{vK+1}, 64, v{vK}", vK + 1, [vK])
    V(f"v_add_u32 v{vK+1}, {4096-1024}, v{vK+1}", vK + 1, [vK + 1])
    A.salu(f"s_lshl_b32 s{sT1}, s{sJ}, 2")
    A.salu(f"s_lshl_b32 s{sT2}, s{sG}, 8")
    V(f"v_add_u32 v{t1}, s{sT1}, v{vG}", t1, [vG])
    V(f"v_xor_b32 v{t2}, v{t1}, v{vQ}", t2, [t1, vQ])
    V(f"v_lshlrev_b32 v{t2}, 4, v{t2}", t2, [t2])
    V(f"v_mul_u32_u24 v{vX}, 896, v{t1}", vX, [t1])
    V(f"v_add3_u32 v{vX}, v{vX}, v{t2}, s{sT2}", vX, [vX, t2])
    V(f"v_xor_b32 v{t1}, v{vG}, v{vQ}", t1, [vG, vQ])
    V(f"v_lshlrev_b32 v{t1}, 4, v{t1}", t1, [t1])
    V(f"v_lshl_add_u32 v{vXR}, v{vQ}, 8, v{t1}", vXR, [vQ, t1])
    for u in range(1, 4):
        V(f"v_xor_b32 v{vXR+u}, {u << 6}, v{vXR}", vXR + u, [vXR])
    for u in range(2):
        V(f"v_add_u32 v{vXRh+u}, 61440, v{vXR+u}", vXRh + u, [vXR + u])
    V(f"v_lshlrev_b32 v{vLin0}, 4, v{vL}", vLin0, [vL])
    V(f"v_add_u32 v{vLin1}, {BREG}, v{vLin0}", vLin1, [vLin0])
    A.salu(f"s_mul_i32 s{sT1}, s{sG}, {BREG}")
    A.salu(f"s_mul_i32 s{sT2}, s{sJ}, 10240")
    A.salu(f"s_add_u32 s{sT2}, s{sT2}, s{sT1}")
    V(f"v_add_u32 v{vLinG}, s{sT1}, v{vLin0}", vLinG, [vLin0])
    V(f"v_add_u32 v{vPW}, s{sT2}, v{vLin0}", vPW, [vLin0])
    V(f"v_lshrrev_b32 v{t1}, 1, v{vG}", t1, [vG])
    V(f"v_lshlrev_b32 v{t1}, 8, v{t1}", t1, [t1])
    V(f"v_and_b32 v{t2}, 1, v{vG}", t2, [vG])
    V(f"v_lshl_add_u32 v{t1}, v{t2}, 3, v{t1}", t1, [t1, t2])
    V(f"v_lshl_add_u32 v{t1}, v{vQ}, 4, v{t1}", t1, [t1, vQ])
    V(f"v_add_u32 v{vQW}, s{sT2}, v{t1}", vQW, [t1])
    V(f"v_lshlrev_b32 v{t1}, 3, v{vQ}", t1, [vQ])
    V(f"v_add_u32 v{vSW}, s{sRING}, v{t1}", vSW, [t1])
    A.salu(f"s_mul_i32 s{sT1}, s{sG}, {4*RINGSZ}")
    A.salu(f"s_add_u32 s{sT1}, s{sT1}, {RING0}")
    V(f"v_add_u32 v{vSR}, s{sT1}, v{t1}", vSR, [t1])

    A.raw("s_waitcnt lgkmcnt(0)")
    for job in range(2):
        A.salu(f"s_and_b32 s{sT0}, s{sB}, 1")
        if job: A.salu(f"s_xor_b32 s{sT0}, s{sT0}, 1")
        def sel(dst, a, b):
            A.salu(f"s_cselect_b64 s[{dst}:{dst+1}], s[{b}:{b+1}], s[{a}:{a+1}]")
        def fin(srd, off_s, nrec):
            A.salu(f"s_add_u32 s{srd}, s{srd}, s{off_s}")
            A.salu(f"s_addc_u32 s{srd+1}, s{srd+1}, 0")
            A.salu(f"s_and_b32 s{srd+1}, s{srd+1}, 0xffff")
            if isinstance(nrec, int): A.salu(f"s_mov_b32 s{srd+2}, {nrec}")
            else: A.salu(f"s_mov_b32 s{srd+2}, {nrec}")
            A.salu(f"s_mov_b32 s{srd+3}, 0x20000")
        A.salu(f"s_cmp_eq_u32 s{sT0}, 1")
        sel(SRD(job, 0), 4, 14); sel(SRD(job, 1), 10, 20); sel(SRD(job, 2), 6, 16)
        sel(SRD(job, 3), 8, 18); sel(SRD(job, 4), 12, 22)
        if cfg.xmap:
            A.salu(f"s_lshl_b32 s{sT4}, s{sHG}, 1")
            A.salu(f"s_add_u32 s{sT4}, s{sT4}, s{sG}")
            A.salu(f"s_lshl_b32 s{sT5}, s{sT4}, 1")
            A.salu(f"s_add_u32 s{sT5}, s{sT5}, s3")
            A.salu(f"s_lshl_b32 s{sT1}, s{sB}, 3")
            A.salu(f"s_add_u32 s{sT1}, s{sT1}, s{sT4}")
            A.salu(f"s_lshl_b32 s{sT2}, s{sB}, 4")
            A.salu(f"s_add_u32 s{sT2}, s{sT2}, s{sT5}")
            A.salu(f"s_cmp_eq_u32 s{sT0}, 1")
            A.salu(f"s_cselect_b32 s{sT2}, s{sT2}, s{sT1}")
            A.salu(f"s_lshl_b32 s{sT2}, s{sT2}, 18")
            fin(SRD(job, 2), sT2, 262144)
            fin(SRD(job, 3), sT2, 262144)
            A.salu(f"s_mul_i32 s{sT2}, s{sB}, 71680")
            fin(SRD(job, 0), sT2, 71680)
            A.salu(f"s_lshl_b32 s{sT2}, s{sT5}, 9")
            A.salu(f"s_sub_u32 s{sT3}, {448*8192}, s{sT2}")
            fin(SRD(job, 1), sT2, f"s{sT3}")
            A.salu(f"s_lshl_b32 s{sT2}, s{sHG}, 2")
            A.salu(f"s_add_u32 s{sT2}, s{sT2}, s3")
            A.salu(f"s_mul_i32 s{sT2}, s{sT2}, {256*896}")
            fin(SRD(job, 4), sT2, 768 * 896)
            A.salu(f"s_lshl_b32 s{sT2}, s{sT0}, 5")
            A.salu(f"s_add_u32 s{sT2}, s{sT2}, s{sB}")
            A.salu(f"s_lshl_b32 s{sT2}, s{sT2}, 2")
            A.salu(f"s_add_u32 s{sT2}, s{sT2}, s{sHG}")
            A.salu(f"s_lshl_b32 s{sT2}, s{sT2}, 1")
            A.salu(f"s_add_u32 s{sT2}, s{sT2}, s3")
            A.salu(f"s_mul_i32 s{sT2}, s{sT2}, 71680")
            A.salu(f"s_mov_b64 s[{SRD(job,5)}:{SRD(job,5)+1}], s[24:25]")
            fin(SRD(job, 5), sT2, 71680)
            continue
        A.salu(f"s_lshl_b32 s{sT1}, s{sB}, 3")
        A.salu(f"s_add_u32 s{sT1}, s{sT1}, s{sHG}")
        A.salu(f"s_lshl_b32 s{sT2}, s{sT1}, 1")
        A.salu(f"s_add_u32 s{sT2}, s{sT2}, s{sG}")
        A.salu(f"s_cmp_eq_u32 s{sT0}, 1")
        A.salu(f"s_cselect_b32 s{sT2}, s{sT2}, s{sT1}")
        A.salu(f"s_lshl_b32 s{sT2}, s{sT2}, 18")
        fin(SRD(job, 2), sT2, 262144)
        fin(SRD(job, 3), sT2, 262144)
        A.salu(f"s_mul_i32 s{sT2}, s{sB}, 71680")
        fin(SRD(job, 0), sT2, 71680)
        A.salu(f"s_lshl_b32 s{sT2}, s{sHG}, 1")
        A.salu(f"s_add_u32 s{sT2}, s{sT2}, s{sG}")
        A.salu(f"s_lshl_b32 s{sT2}, s{sT2}, 9")
        A.salu(f"s_sub_u32 s{sT3}, {448*8192}, s{sT2}")
        fin(SRD(job, 1), sT2, f"s{sT3}")
        A.salu(f"s_mul_i32 s{sT2}, s{sHG}, {512*896}")
        fin(SRD(job, 4), sT2, 512 * 896)
        A.salu(f"s_lshl_b32 s{sT2}, s{sT0}, 8")
        A.salu(f"s_add_u32 s{sT2}, s{sT2}, s{sT1}")
        A.salu(f"s_mul_i32 s{sT2}, s{sT2}, 71680")
        A.salu(f"s_mov_b64 s[{SRD(job,5)}:{SRD(job,5)+1}], s[24:25]")
        fin(SRD(job, 5), sT2, 71680)

    seq = []
    base = {}
    for job in range(2):
        base[job, "WQ"] = len(seq)
        for s in range(14):
            for y in range(2): seq.append(("WQ", job, (32 * s + 4 * y) * 8192))
        base[job, "K"] = len(seq)
        for jj in range(4):
            for kt in range(8): seq.append(("K", job, (kt * 8192, jj)))
        base[job, "SCR"] = len(seq)
        seq.append(("SCR", job, 0))
        base[job, "V"] = len(seq)
        for hf in range(2):
            for w in range(4):
                for i in range(2):
                    key0 = 128 * w + 32 * (2 * hf + i)
                    for y in range(2): seq.append(("V", job, (key0 + 16 * y) * 512))
        base[job, "WO"] = len(seq)
        for s in range(16):
            for y in range(2): seq.append(("WO", job, (32 * s + 16 * y + (256 if (cfg.xmap and s >= 8) else 0)) * 896))
    st = {"queued": 0, "released": 0, "issued": set()}
    side = deque()

    def issue_slot_piece(n, pc):
        typ, job, off = seq[n]
        vo, srd, fl = {"WQ": (vWQ, SRD(job, 1), cfg.w_flags), "K": (vK, SRD(job, 2), cfg.kv_flags),
                       "V": (vV, SRD(job, 3), cfg.kv_flags), "WO": (vWO, SRD(job, 4), cfg.w_flags)}[typ]
        if pc == 0 or st.get("m0slot") != n:
            if typ == "K": A.salu(f"s_add_u32 s{sOFF}, s{sCOL+off[1]}, {off[0]}")
            else: A.salu(f"s_mov_b32 s{sOFF}, {off}")
            A.salu(f"s_add_u32 m0, s{sRING}, {(n % R) * 2048}", m0=True)
            st["m0slot"] = n
        A.dma(vo + pc, srd, sOFF, off=1024 * pc, flags=fl, tag=("slot", n))
        if pc == 1: st["issued"].add(n)

    def refill():
        while st["queued"] < len(seq) and st["queued"] - R < st["released"]:
            n = st["queued"]; st["queued"] += 1
            if seq[n][0] == "SCR":
                st["issued"].add(n); continue
            side.append(lambda n=n: issue_slot_piece(n, 0))
            side.append(lambda n=n: issue_slot_piece(n, 1))

    def release(n):
        assert n == st["released"], (n, st["released"])
        st["released"] += 1
        refill()

    def pump(k=1):
        for _ in range(k):
            if side: side.popleft()()

    def flush_side():
        while side: side.popleft()()

    def need_slot(n):
        while n not in st["issued"]:
            assert side, n
            side.popleft()()
        A.wait_vm_tag(("slot", n))

    def x_dma(job, pair, t):
        A.salu(f"s_mov_b32 s{sOFF}, {t * 14336 + pair * 512}")
        A.salu(f"s_add_u32 m0, s{sXM0}, {pair * 40960 + t * 4096}", m0=True)
        st["m0slot"] = None
        A.dma(vX, SRD(job, 0), sOFF, flags=cfg.x_flags, tag=("x", job, pair))

    def load_A_tr(n0, par, which):
        for (y, a) in which:
            n = n0 + y
            A.ds_read("ds_read_b64_tr_b16", A_tr(par, a) + 2 * y, 2, vTR + a, (n % R) * 2048, tag=("rd", n))

    def prefetch_A_tr(n0):
        need_slot(n0); need_slot(n0 + 1)
        load_A_tr(n0, 0, [(y, a) for y in range(2) for a in range(4)])

    def gemm_tr(nk, acc, n0, bread, breaks={}, post={}):
        for b in range(5): bread(0, b)
        A.wait_lgkm_tag(("rd", n0 + 1))
        release(n0); release(n0 + 1)
        for s in range(nk):
            par = s & 1
            nxt = s + 1 < nk
            nn = n0 + 2 * (s + 1)
            for p in range(20):
                b, a = divmod(p, 4)
                if nxt and p == 0:
                    need_slot(nn)
                if nxt and p == 2:
                    need_slot(nn + 1)
                A.mfma(acc + (a * 5 + b) * 4, A_tr(par, a), B_tr(b), czero=(s == 0))
                if nxt and p < 4:
                    y = p >> 1
                    load_A_tr(nn, par ^ 1, [(y, (p & 1) * 2), (y, (p & 1) * 2 + 1)])
                if nxt and a == 3 and (s + 1) not in breaks:
                    bread(s + 1, b)
                if nxt and p == cfg.rel_pos:
                    A.wait_lgkm_tag(("rd", nn + 1))
                    release(nn); release(nn + 1)
                if p >= 4: pump(1)
            if s in post: post[s]()
            if nxt and (s + 1) in breaks:
                breaks[s + 1]()
                for b in range(5): bread(s + 1, b)

    def cvt(dst, a, b):
        A.valu(f"v_cvt_pk_bf16_f32 v{dst}, v{a}, v{b}", [dst], [a, b])

    stamps = []
    def stamp(name):
        if not cfg.stamp: return
        A.raw("s_memtime s[26:27]")
        A.raw("s_waitcnt lgkmcnt(0)")
        A.lgkm = []
        A.raw(f"v_writelane_b32 v255, s26, {len(stamps)}")
        stamps.append(name)
    if cfg.stamp: A.valu("v_mov_b32 v255, 0", [255], [])
    stamp("start")
    for t in range(5): x_dma(0, 0, t)
    refill(); flush_side()
    if cfg.wpre:
        A.salu(f"s_lshl_b32 s{sT0}, s{sB}, 3")
        A.salu(f"s_add_u32 s{sT0}, s{sT0}, s{sW}")
        A.salu(f"s_lshr_b32 s{sT1}, s{sB}, 1")
        A.salu(f"s_lshl_b32 s{sT1}, s{sT1}, 2")
        A.salu(f"s_add_u32 s{sT1}, s{sT1}, s{sJ}")
        V(f"v_lshrrev_b32 v0, 4, v{vLin0}", 0, [vLin0])
        V(f"v_lshrrev_b32 v1, 2, v0", 1, [0])
        V(f"v_and_b32 v2, 3, v0", 2, [0])
        V(f"v_lshlrev_b32 v2, 7, v2", 2, [2])
        V(f"v_lshl_add_u32 v2, v1, 13, v2", 2, [1, 2])
        V(f"v_mov_b32 v3, 0x4000000", 3, [])
        V(f"v_cmp_gt_u32 vcc, 7, v1", [], [1])
        A.nop(2)
        V(f"v_cndmask_b32 v2, v3, v2, vcc", 2, [2, 3])
        A.salu(f"s_mul_i32 s{sT2}, s{sT1}, {7*8192}")
        A.bload(4, 1, 2, SRD(0, 1), sT2, tag="pre")
        A.salu(f"s_lshl_b32 s{sT1}, s{sT1}, 1")
        A.salu(f"s_add_u32 s{sT1}, s{sT1}, s{sG}")
        V(f"v_lshlrev_b32 v2, 7, v0", 2, [0])
        V(f"v_cmp_gt_u32 vcc, 28, v0", [], [0])
        A.nop(2)
        V(f"v_cndmask_b32 v2, v3, v2, vcc", 2, [2, 3])
        A.salu(f"s_mul_i32 s{sT2}, s{sT1}, {28*128}")
        A.bload(5, 1, 2, SRD(0, 4), sT2, tag="pre")
    for t in range(5): x_dma(0, 1, t)

    for job in range(2):
        A.comment(f"================ job {job}: Q-proj")
        n0 = base[job, "WQ"]
        prefetch_A_tr(n0)
        A.wait_vm_tag(("x", job, 0))
        stamp('preB1'); A.barrier(); stamp('B1')
        if job == 1:
            pre = deque(lambda t=t: x_dma(1, 1, t) for t in range(5))
            pre.extend(side); side.clear(); side.extend(pre)

        def bread_x(ks, b):
            cidx, u = divmod(ks, 4)
            if ks == 8 and b == 0:
                flush_side()
                A.wait_vm_tag(("x", job, 1))
                stamp('preB2'); A.barrier(); stamp('B2')
            if cidx < 3:
                A.ds_read("ds_read_b128", B_tr(b), 4, vXR + u, cidx * 20480 + b * 4096)
            else:
                A.ds_read("ds_read_b128", B_tr(b), 4, vXRh + u, b * 4096)
        gemm_tr(14, ACC, n0, bread_x)
        flush_side()
        nk0 = base[job, "K"]
        stamp('preB3'); A.barrier(); stamp('B3')
        for b in range(5):
            for a in range(4):
                r = ACC + (a * 5 + b) * 4
                cvt(r, r, r + 1); cvt(r + 1, r + 2, r + 3)
                A.ds_write("ds_write_b64", vQW, r, 2, ((a >> 1) * 5 + b) * 1024 + (a & 1) * 512)
        need_slot(nk0)
        for s in range(2):
            A.ds_read("ds_read_b128", A_s(0, s), 4, vKR + s, (nk0 % R) * 2048, tag=("rd", nk0))
        A.wait_lgkm_all()
        release(nk0)
        stamp('preB4'); A.barrier(); stamp('B4')
        def set_qr(jj):
            A.salu(f"s_mul_i32 s{sT0}, s{sCOL+jj}, 80")
            V(f"v_add_u32 v{vQR}, s{sT0}, v{vLinG}", vQR, [vLinG])
        set_qr(0)
        for s in range(2):
            for b in range(5):
                A.ds_read("ds_read_b128", B_s(s, b), 4, vQR, (s * 5 + b) * 1024)
        maxq = deque()
        def acc_s(kt, b): return ACC + (kt * 5 + b) * 4
        for u in range(32):
            jj, kt = divmod(u, 8)
            par = u & 1
            nxt = u + 1 < 32
            nn = nk0 + u + 1
            for p in range(10):
                s, b = divmod(p, 5)
                if nxt and p == 0: need_slot(nn)
                A.mfma(acc_s(kt, b), A_s(par, s), B_s(s, b), czero=(jj == 0 and s == 0))
                if nxt and p < 2:
                    A.ds_read("ds_read_b128", A_s(par ^ 1, p), 4, vKR + p, (nn % R) * 2048, tag=("rd", nn))
                if kt == 6 and jj < 3 and p == 9: set_qr(jj + 1)
                if kt == 7 and jj < 3:
                    A.ds_read("ds_read_b128", B_s(s, b), 4, vQR, (s * 5 + b) * 1024)
                if nxt and p == cfg.s_rel_pos:
                    A.wait_lgkm_tag(("rd", nn))
                    release(nn)
                if p >= 2: pump(1)
                if maxq and p >= 4:
                    maxq.popleft()();
                    if maxq: maxq.popleft()()
            if cfg.sync_s and (u + 1) % cfg.sync_s == 0 and nxt: A.barrier()
            if jj == 3:
                for b in range(5):
                    r = acc_s(kt, b); m = vM + b
                    if kt == 0:
                        maxq.append(lambda r=r, m=m: V(f"v_max3_f32 v{m}, v{r}, v{r+1}, v{r+2}", m, [r, r+1, r+2]))
                        maxq.append(lambda r=r, m=m: V(f"v_max_f32 v{m}, v{m}, v{r+3}", m, [m, r+3]))
                    else:
                        maxq.append(lambda r=r, m=m: V(f"v_max3_f32 v{m}, v{m}, v{r}, v{r+1}", m, [m, r, r+1]))
                        maxq.append(lambda r=r, m=m: V(f"v_max3_f32 v{m}, v{m}, v{r+2}, v{r+3}", m, [m, r+2, r+3]))
        flush_side()
        while maxq: maxq.popleft()()
        stamp("Sdone")
        ML = lambda b: 176 + 2 * b
        NMC = lambda b: 186 + 2 * b
        LS = lambda b: 196 + 2 * b
        TT = lambda b: 206 + b
        def xl_reduce(src, dst, op):
            for b in range(5): V(f"v_mov_b32 v{TT(b)}, v{src(b)}", TT(b), [src(b)])
            for b in range(5): A.valu(f"v_permlane32_swap_b32 v{src(b)}, v{TT(b)}", [src(b), TT(b)], [src(b), TT(b)], kind="perm")
            for b in range(5): V(f"{op} v{src(b)}, v{src(b)}, v{TT(b)}", src(b), [src(b), TT(b)])
            for b in range(5): V(f"v_mov_b32 v{TT(b)}, v{src(b)}", TT(b), [src(b)])
            for b in range(5): A.valu(f"v_permlane16_swap_b32 v{src(b)}, v{TT(b)}", [src(b), TT(b)], [src(b), TT(b)], kind="perm")
            for b in range(5): V(f"{op} v{dst(b)}, v{src(b)}, v{TT(b)}", dst(b), [src(b), TT(b)])
        xl_reduce(lambda b: vM + b, ML, "v_max_f32")
        for b in range(5): V(f"v_mul_f32 v{NMC(b)}, s{sNC}, v{ML(b)}", NMC(b), [ML(b)])
        for kt in range(8):
            for b in range(5):
                r = acc_s(kt, b)
                for h in range(2):
                    x = r + 2 * h
                    A.valu(f"v_pk_fma_f32 v[{x}:{x+1}], v[{x}:{x+1}], s[{sC}:{sC+1}], v[{NMC(b)}:{NMC(b)+1}] op_sel_hi:[1,0,0]",
                           [x, x + 1], [x, x + 1, NMC(b)])
            for b in range(5):
                r = acc_s(kt, b)
                for e in range(4):
                    A.valu(f"v_exp_f32 v{r+e}, v{r+e}", [r + e], [r + e], kind="trans")
            for b in range(5):
                r = acc_s(kt, b); l = LS(b)
                if kt == 0:
                    A.valu(f"v_pk_add_f32 v[{l}:{l+1}], v[{r}:{r+1}], v[{r+2}:{r+3}]", [l, l + 1], rng(r, 4))
                else:
                    A.valu(f"v_pk_add_f32 v[{l}:{l+1}], v[{l}:{l+1}], v[{r}:{r+1}]", [l, l + 1], [l, l + 1, r, r + 1])
            if kt > 0:
                for b in range(5):
                    r = acc_s(kt, b); l = LS(b)
                    A.valu(f"v_pk_add_f32 v[{l}:{l+1}], v[{l}:{l+1}], v[{r+2}:{r+3}]", [l, l + 1], [l, l + 1, r + 2, r + 3])
        for b in range(5): V(f"v_add_f32 v{LS(b)}, v{LS(b)}, v{LS(b)+1}", LS(b), [LS(b), LS(b) + 1])
        xl_reduce(LS, lambda b: ML(b) + 1, "v_add_f32")
        ns = base[job, "SCR"]
        assert ns - R < st["released"]
        A.salu("s_mov_b64 exec, 0xffff")
        for b in range(5):
            A.ds_write("ds_write_b64", vSW, ML(b), 2, (ns % R) * 2048 + b * 128)
        A.salu("s_mov_b64 exec, -1")
        A.wait_lgkm_all()
        stamp('preB5'); A.barrier(); stamp('B5')
        RB = lambda b: [160, 168, 176, 196, 204][b]
        for b in range(5):
            for jj in range(4):
                A.ds_read("ds_read_b64", RB(b) + 2 * jj, 2, vSR, jj * RINGSZ + (ns % R) * 2048 + b * 128)
        MX = lambda b: vM + b
        for b in range(5):
            r = RB(b)
            V(f"v_max3_f32 v{MX(b)}, v{r}, v{r+2}, v{r+4}", MX(b), [r, r + 2, r + 4])
            V(f"v_max_f32 v{MX(b)}, v{MX(b)}, v{r+6}", MX(b), [MX(b), r + 6])
            V(f"v_mul_f32 v{MX(b)}, s{sNC}, v{MX(b)}", MX(b), [MX(b)])
            for jj in range(4):
                V(f"v_fma_f32 v{r+2*jj}, v{r+2*jj}, s{sC}, v{MX(b)}", r + 2 * jj, [r + 2 * jj, MX(b)])
            V(f"v_sub_f32 v{NMC(b)}, v{MX(b)}, v{NMC(b)}", NMC(b), [MX(b), NMC(b)])
        for b in range(5):
            r = RB(b)
            for jj in range(4):
                A.valu(f"v_exp_f32 v{r+2*jj}, v{r+2*jj}", [r + 2 * jj], [r + 2 * jj], kind="trans")
            A.valu(f"v_exp_f32 v{NMC(b)}, v{NMC(b)}", [NMC(b)], [NMC(b)], kind="trans")
        for b in range(5):
            r = RB(b)
            V(f"v_mul_f32 v{MX(b)}, v{r}, v{r+1}", MX(b), [r, r + 1])
            for jj in range(1, 4):
                V(f"v_fmac_f32 v{MX(b)}, v{r+2*jj}, v{r+2*jj+1}", MX(b), [MX(b), r + 2 * jj, r + 2 * jj + 1])
        for b in range(5):
            A.valu(f"v_rcp_f32 v{MX(b)}, v{MX(b)}", [MX(b)], [MX(b)], kind="trans")
        for b in range(5):
            V(f"v_mul_f32 v{MX(b)}, v{MX(b)}, v{NMC(b)}", MX(b), [MX(b), NMC(b)])
        for b in range(5):
            V(f"v_mov_b32 v{NMC(b)}, v{MX(b)}", NMC(b), [MX(b)])
        def packP(i, b):
            r0 = acc_s(2 * i, b); r1 = acc_s(2 * i + 1, b); f = NMC(b)
            for x in (r0, r0 + 2, r1, r1 + 2):
                A.valu(f"v_pk_mul_f32 v[{x}:{x+1}], v[{x}:{x+1}], v[{f}:{f+1}] op_sel_hi:[1,0]", [x, x + 1], [x, x + 1, f])
            cvt(r0, r0, r0 + 1); cvt(r0 + 1, r0 + 2, r0 + 3); cvt(r0 + 2, r1, r1 + 1); cvt(r0 + 3, r1 + 2, r1 + 3)
        def writeP(i, b):
            A.ds_write("ds_write_b128", vPW, acc_s(2 * i, b), 4, ((i & 1) * 5 + b) * 1024)
        for i in range(2):
            for b in range(5):
                packP(i, b); writeP(i, b)
        for i in range(2, 4):
            for b in range(5):
                packP(i, b)
        nv0 = base[job, "V"]
        prefetch_A_tr(nv0)
        A.wait_lgkm_all()
        stamp('preB6'); A.barrier(); stamp('B6')
        release(ns)
        def bread_p(ks, b):
            A.ds_read("ds_read_b128", B_tr(b), 4, vLinG, ((ks & 7) * 5 + b) * 1024)
        def mid_pv():
            stamp('preB7'); A.barrier(); stamp('B7')
            for i in range(2, 4):
                for b in range(5): writeP(i, b)
            A.wait_lgkm_all()
            stamp('preB8'); A.barrier(); stamp('B8')
        gemm_tr(16, ACC, nv0, bread_p, breaks={8: mid_pv},
                post=({k: A.barrier for k in range(15) if (k + 1) % cfg.sync_pv == 0 and k != 7} if cfg.sync_pv else {}))
        flush_side()
        stamp('preB9'); A.barrier(); stamp('B9')
        for i in range(2):
            for b in range(5):
                r0 = ACC + ((2 * i) * 5 + b) * 4; r1 = ACC + ((2 * i + 1) * 5 + b) * 4
                cvt(r0, r0, r0 + 1); cvt(r0 + 1, r0 + 2, r0 + 3); cvt(r0 + 2, r1, r1 + 1); cvt(r0 + 3, r1 + 2, r1 + 3)
                A.ds_write("ds_write_b128", vPW, r0, 4, (i * 5 + b) * 1024)
        no0 = base[job, "WO"]
        prefetch_A_tr(no0)
        A.wait_lgkm_all()
        stamp('preB10'); A.barrier(); stamp('B10')
        OA = ACC + 80
        def bread_o(ks, b):
            A.ds_read("ds_read_b128", B_tr(b), 4, vLin0 if ks < 8 else vLin1, ((ks & 7) * 5 + b) * 1024)
        def mid_o():
            stamp('preB11'); A.barrier(); stamp('B11')
            for t in range(5): side.append(lambda t=t: x_dma(1, 0, t))
        gemm_tr(16, OA, no0, bread_o, post=({7: mid_o} if job == 0 else {}))
        flush_side()
        stamp("Odone")
        def store_po(i, b, job=job):
            r0 = OA + ((2 * i) * 5 + b) * 4; r1 = OA + ((2 * i + 1) * 5 + b) * 4
            cvt(r0, r0, r0 + 1); cvt(r0 + 1, r0 + 2, r0 + 3); cvt(r0 + 2, r1, r1 + 1); cvt(r0 + 3, r1 + 2, r1 + 3)
            A.salu(f"s_add_u32 s{sT0}, s{sPOW}, {(i * 5 + b) * 1024}")
            A.bstore(r0, 4, vLin0, SRD(job, 5), sT0, flags=cfg.po_flags, tag=("po", job))
        for i in range(2):
            for b in range(5):
                if job == 0: side.append(lambda i=i, b=b: store_po(i, b))
                else: store_po(i, b)
    if cfg.stamp:
        A.wait_vm_all()
        stamp("end")
        A.salu("s_add_u32 s96, s24, 0x8000000")
        A.salu("s_addc_u32 s97, s25, 0")
        A.salu("s_and_b32 s97, s97, 0xffff")
        A.salu("s_mov_b32 s98, 0x100000")
        A.salu("s_mov_b32 s99, 0x20000")
        A.salu(f"s_lshl_b32 s{sT0}, s2, 3")
        A.salu(f"s_add_u32 s{sT0}, s{sT0}, s{sW}")
        A.salu(f"s_lshl_b32 s{sT0}, s{sT0}, 8")
        A.valu(f"v_lshrrev_b32 v0, 2, v{vLin0}", [0], [vLin0])
        A.bstore(255, 1, 0, 96, sT0)
        open(cfg.path + ".stamps", "w").write(" ".join(stamps))
    A.label("L_attn_done")
    A.raw("s_endpgm")
    return kn, A


def gen_reduce(cfg):
    A = Asm()
    kn = "reduce_kernel"
    A.label(kn)
    A.salu("s_cmp_ge_u32 s2, 560")
    A.salu("s_cbranch_scc1 L_red_done")
    A.salu("s_load_dwordx2 s[4:5], s[0:1], 80")
    A.salu("s_load_dwordx2 s[6:7], s[0:1], 96")
    def V(text, w, r): A.valu(text, w if isinstance(w, list) else [w], r)
    V("v_lshrrev_b32 v1, 6, v0", 1, [0])
    V("v_and_b32 v2, 63, v0", 2, [0])
    A.rfl(8, 1)
    A.nop(2)
    A.salu("s_lshl_b32 s9, s2, 2")
    A.salu("s_add_u32 s9, s9, s8")
    A.salu(f"s_mul_hi_u32 s10, s9, {(1 << 32) // 35 + 1}")
    A.salu("s_mul_i32 s11, s10, 35")
    A.salu("s_sub_u32 s11, s9, s11")
    A.salu("s_mul_i32 s12, s11, 52")
    A.salu("s_lshr_b32 s12, s12, 8")
    A.salu("s_mul_i32 s13, s12, 5")
    A.salu("s_sub_u32 s13, s11, s13")
    A.raw("s_waitcnt lgkmcnt(0)")
    A.salu(f"s_mul_i32 s14, s10, {8*71680}")
    A.salu("s_add_u32 s16, s6, s14")
    A.salu("s_addc_u32 s17, s7, 0")
    A.salu("s_and_b32 s17, s17, 0xffff")
    A.salu(f"s_mov_b32 s18, {8*71680}")
    A.salu("s_mov_b32 s19, 0x20000")
    A.salu("s_mov_b32 s20, s4")
    A.salu("s_and_b32 s21, s5, 0xffff")
    A.salu(f"s_mov_b32 s22, {32*80*896*2}")
    A.salu("s_mov_b32 s23, 0x20000")
    A.salu("s_mul_i32 s14, s12, 10")
    A.salu("s_add_u32 s14, s14, s13")
    A.salu("s_lshl_b32 s14, s14, 10")
    V("v_lshl_add_u32 v3, v2, 4, s14", 3, [2])
    for g in range(8):
        for i in range(2):
            A.salu(f"s_mov_b32 s15, {g * 71680 + i * 5120}")
            A.bload(16 + (g * 2 + i) * 4, 4, 3, 16, 15, flags=cfg.rd_flags)
    A.salu("s_and_b32 s24, s10, 31")
    A.salu("s_lshr_b32 s25, s10, 5")
    A.salu("s_mul_i32 s24, s24, 80")
    A.salu("s_lshl_b32 s26, s13, 4")
    A.salu("s_add_u32 s24, s24, s26")
    A.salu("s_mul_i32 s24, s24, 1792")
    A.salu("s_mul_i32 s25, s25, 896")
    A.salu("s_add_u32 s24, s24, s25")
    A.salu("s_lshl_b32 s26, s12, 7")
    A.salu("s_add_u32 s24, s24, s26")
    V("v_and_b32 v4, 15, v2", 4, [2])
    V("v_mul_u32_u24 v4, 1792, v4", 4, [4])
    V("v_bfe_u32 v5, v2, 4, 1", 5, [2])
    V("v_lshl_add_u32 v4, v5, 5, v4", 4, [4, 5])
    V("v_lshrrev_b32 v5, 5, v2", 5, [2])
    V("v_lshl_add_u32 v4, v5, 4, v4", 4, [4, 5])
    for g in range(8):
        for i in range(2):
            src = 16 + (g * 2 + i) * 4
            for d in range(4):
                lo = 80 + i * 8 + 2 * d; hi = lo + 1
                if g == 0:
                    V(f"v_lshlrev_b32 v{lo}, 16, v{src+d}", lo, [src + d])
                    V(f"v_and_b32 v{hi}, 0xffff0000, v{src+d}", hi, [src + d])
                else:
                    V(f"v_lshlrev_b32 v6, 16, v{src+d}", 6, [src + d])
                    V(f"v_and_b32 v7, 0xffff0000, v{src+d}", 7, [src + d])
                    A.valu(f"v_pk_add_f32 v[{lo}:{lo+1}], v[{lo}:{lo+1}], v[6:7]", [lo, lo + 1], [lo, lo + 1, 6, 7])
    for i in range(2):
        for d in range(4):
            lo = 80 + i * 8 + 2 * d
            V(f"v_cvt_pk_bf16_f32 v{8+i*4+d}, v{lo}, v{lo+1}", 8 + i * 4 + d, [lo, lo + 1])
    for i in range(2):
        r = 8 + i * 4
        A.valu(f"v_permlane16_swap_b32 v{r}, v{r+2}", [r, r + 2], [r, r + 2], kind="perm")
        A.valu(f"v_permlane16_swap_b32 v{r+1}, v{r+3}", [r + 1, r + 3], [r + 1, r + 3], kind="perm")
    for i in range(2):
        A.bstore(8 + i * 4, 4, 4, 20, 24, off=64 * i)
    A.label("L_red_done")
    A.raw("s_endpgm")
    return kn, A


def build(cfg, path):
    cfg.path = path
    hdr = open("cdna_kernels/" + NAME + ".s.ref").read().split("\n")
    head = [l for l in hdr if l.startswith(";") and "@launch" not in l and "Override launch" not in l and "grid=ceil" not in l]
    k1, A1 = gen_main(cfg)
    k2, A2 = gen_reduce(cfg)
    out = "\n".join(head) + "\n"
    out += f"; @launch kernel={k1} grid=(256,1,1) block=(512,1,1) lds=163840\n"
    out += f"; @launch kernel={k2} grid=(560,1,1) block=(256,1,1) lds=0\n"
    out += '.amdgcn_target "amdgcn-amd-amdhsa--gfx950"\n.text\n'
    for k, A in ((k1, A1), (k2, A2)):
        out += f".globl {k}\n.p2align 8\n.type {k},@function\n" + A.text()
    out += '.section .rodata,"a"\n.p2align 6\n'
    out += kernel_desc(k1, 256, 102, 256)
    out += ".p2align 6\n" + kernel_desc(k2, 96, 32, 96)
    open(path, "w").write(out)
    print("mfma", A1.nmfma, "lines", len(A1.lines))

if __name__ == "__main__":
    cfg = Cfg()
    for a in sys.argv[2:]:
        k, v = a.split("=")
        setattr(cfg, k, type(getattr(cfg, k))(v))
    build(cfg, sys.argv[1] if len(sys.argv) > 1 else "cdna_kernels/" + NAME + ".s")
```

```python
import sys, struct
from collections import deque
from asmlib import *

NAME = "concat_heads__gqa_block_cached__mha_block_cached__near_ridge"

class Cfg:
    R = 5
    kv_flags = "nt"
    w_flags = ""
    x_flags = ""
    po_flags = "nt"
    pof_flags = ""
    rd_flags = ""
    rel_pos = 8
    s_rel_pos = 5
    stamp = 0
    order = 2
    pre = 0
    krot = 1
    kpA = 0
    kpB = 0
    kp_per = 2
    kp_start = 0
    relx = 5
    ypos = 10
    npump = 2
    prio = 0
    stpos = 'b1'
    tlb = 0
    only = 0
    tlbk = 0
    xsplit = '4,4,2'
    late = 1
    sm_per = 2

def f32bits(x):
    return struct.unpack("<I", struct.pack("<f", x))[0]

BREG = 40960
RING0 = 81920
RINGSZ = 10240

ACC = 0
FR = 160
def A_tr(par, a): return FR + par * 16 + a * 4
def B_tr(b): return FR + 32 + 4 * b
def B_s(s, b): return FR + (s * 5 + b) * 4
def A_s(par, s): return FR + 40 + par * 8 + s * 4
_v = 216
def _alloc(n=1):
    global _v
    r = _v; _v += n
    assert _v <= 256
    return r
vKR = _alloc(2); vK = _alloc(2); vV = _alloc(2); vX = _alloc(2)
vLinG = _alloc(); vQR = _alloc(); vSW = _alloc(); vSR = _alloc(); vPW = _alloc(); vRW = _alloc(); vLin0 = _alloc()
vQW = _alloc(); vOW = _alloc()
vTR = _alloc(4); vXR = _alloc(4); vXRh = _alloc(2); vWQ = _alloc(2); vWO = _alloc(2); vLin1 = _alloc()
vM = _alloc(5); vT0 = _alloc(); vT1 = _alloc()
BORROW = [vTR + 1, vTR + 2, vTR + 3, vXR + 1, vXR + 2, vXR + 3, vXRh, vXRh + 1, vWQ + 1, vWO + 1, vLin1]
assert _v <= 255
vSTAMP = 255

sX = 28; sWQ = 32; sNX = 36; sNWQ = 40; sPO = 44
def sKV(blk, k): return 48 + blk * 12 + k * 4
def sPOB(blk): return 72 + blk * 2
sRING = 76; sOFF = 77; sC = 78
sNC = 80; sXM0 = 81; sPOW = 82; sW = 83; sJ = 84; sG = 85; sB = 86; sHG = 87
sT0 = 88; sT1 = 89; sT2 = 90; sT3 = 91; sPH = 92; sGR = 93
sCOL = 94
sWQK = 98; sWOK = 99; sSTI = 100; sPXO = 101


class Gen:
    def __init__(self, cfg):
        self.cfg = cfg
        self.A = Asm()
        self.stamps = []

    def V(self, text, w, r):
        self.A.valu(text, w if isinstance(w, list) else [w], r)

    def stamp(self, name):
        if not self.cfg.stamp: return
        A = self.A
        A.raw("s_memtime s[26:27]")
        A.raw("s_waitcnt lgkmcnt(0)")
        A.lgkm = []
        A.raw(f"s_mov_b32 m0, s{sSTI}")
        A.raw(f"s_add_u32 s{sSTI}, s{sSTI}, 1")
        A.raw(f"v_writelane_b32 v{vSTAMP}, s26, m0")
        self.m0slot = None
        self.stamps.append(name)

    def bar(self, name=None):
        self.A.barrier()
        if name: self.stamp(name)

    def setup(self):
        A = self.A; V = self.V; cfg = self.cfg
        A.salu("s_cmp_ge_u32 s2, 256")
        A.salu("s_cbranch_scc1 L_attn_done")
        if cfg.only:
            A.salu(f"s_and_b32 s3, s2, {cfg.only}")
            A.salu("s_cbranch_scc1 L_attn_done")
        A.salu("s_load_dwordx16 s[4:19], s[0:1], 0")
        A.salu("s_load_dwordx4 s[20:23], s[0:1], 64")
        A.salu("s_load_dwordx2 s[24:25], s[0:1], 96")
        vL = 4; vG = 5; vQ = 6; vTmp = 7
        t1 = 1; t2 = 2; t3 = 3
        V(f"v_lshrrev_b32 v{vTmp}, 6, v0", vTmp, [0])
        V(f"v_and_b32 v{vL}, 63, v0", vL, [0])
        A.rfl(sW, vTmp)
        V(f"v_lshrrev_b32 v{vG}, 4, v{vL}", vG, [vL])
        V(f"v_and_b32 v{vQ}, 15, v{vL}", vQ, [vL])
        A.nop(2)
        A.salu(f"s_and_b32 s{sJ}, s{sW}, 3")
        A.salu(f"s_lshr_b32 s{sG}, s{sW}, 2")
        A.salu(f"s_lshr_b32 s{sB}, s2, 3")
        A.salu(f"s_and_b32 s{sHG}, s2, 7")
        A.salu(f"s_mul_i32 s{sRING}, s{sW}, {RINGSZ}")
        A.salu(f"s_add_u32 s{sRING}, s{sRING}, {RING0}")
        A.salu(f"s_mul_i32 s{sXM0}, s{sG}, 20480")
        A.salu(f"s_lshl_b32 s{sT0}, s{sJ}, 10")
        A.salu(f"s_add_u32 s{sXM0}, s{sXM0}, s{sT0}")
        V(f"v_and_b32 v{t1}, 7, v{vL}", t1, [vL])
        V(f"v_lshlrev_b32 v{t3}, 1, v{vG}", t3, [vG])
        V(f"v_xor_b32 v{t3}, v{t3}, v{t1}", t3, [t3, t1])
        V(f"v_lshlrev_b32 v{t3}, 4, v{t3}", t3, [t3])
        V(f"v_lshrrev_b32 v{t2}, 3, v{vL}", t2, [vL])
        A.salu(f"s_lshl_b32 s{sT0}, s{sJ}, 7")
        V(f"v_lshrrev_b32 v{vTmp}, 5, v{vL}", vTmp, [vL])
        V(f"v_lshlrev_b32 v{vTmp}, 3, v{vTmp}", vTmp, [vTmp])
        V(f"v_and_b32 v{vWQ}, 3, v{t2}", vWQ, [t2])
        V(f"v_add_u32 v{vTmp}, v{vTmp}, v{vWQ}", vTmp, [vTmp, vWQ])
        V(f"v_lshl_add_u32 v{vWQ}, v{vTmp}, 13, v{t3}", vWQ, [vTmp, t3])
        V(f"v_add_u32 v{vWQ}, s{sT0}, v{vWQ}", vWQ, [vWQ])
        V(f"v_add_u32 v{vWQ+1}, {16*8192-1024}, v{vWQ}", vWQ + 1, [vWQ])
        if cfg.krot:
            A.salu(f"s_lshr_b32 s{sT3}, s{sB}, 1")
            A.salu(f"s_min_u32 s{sT3}, s{sT3}, 13")
        else:
            A.salu(f"s_mov_b32 s{sT3}, 0")
        A.salu(f"s_lshl_b32 s{sWQK}, s{sT3}, 18")
        A.salu(f"s_sub_u32 s{sWQK}, s{sWQK}, 262144")
        A.salu(f"s_cselect_b32 s{sWQK}, {13*262144}, s{sWQK}")
        A.salu(f"s_lshl_b32 s{sT1}, s{sJ}, 2")
        A.salu(f"s_lshl_b32 s{sT2}, s{sG}, 8")
        A.salu(f"s_lshl_b32 s{sT3}, s{sT3}, 6")
        A.salu(f"s_add_u32 s{sT2}, s{sT2}, s{sT3}")
        V(f"v_add_u32 v8, s{sT1}, v{vG}", 8, [vG])
        V(f"v_xor_b32 v9, v8, v{vQ}", 9, [8, vQ])
        V(f"v_lshl_add_u32 v9, v9, 4, s{sT2}", 9, [9])
        V(f"v_mul_u32_u24 v8, 896, v8", 8, [8])
        for pair in range(2):
            if pair: V(f"v_add_u32 v9, 512, v9", 9, [9])
            V(f"v_subrev_u32 v10, 896, v9", 10, [9])
            V(f"v_min_u32 v10, v10, v9", 10, [10, 9])
            V(f"v_add_u32 v{vX+pair}, v8, v10", vX + pair, [8, 10])
        V(f"v_subrev_u32 v9, s{sT3}, v9", 9, [9])
        V(f"v_mov_b32 v10, 0x4000000", 10, [])
        V(f"v_cmp_gt_u32 vcc, 896, v9", [], [9])
        A.nop(2)
        V(f"v_cndmask_b32 v{vX+1}, v10, v{vX+1}, vcc", vX + 1, [10, vX + 1])
        A.raw("s_waitcnt lgkmcnt(0)")
        def fin(srd, off_s, nrec):
            A.salu(f"s_add_u32 s{srd}, s{srd}, s{off_s}")
            A.salu(f"s_addc_u32 s{srd+1}, s{srd+1}, 0")
            A.salu(f"s_and_b32 s{srd+1}, s{srd+1}, 0xffff")
            A.salu(f"s_mov_b32 s{srd+2}, {nrec}")
            A.salu(f"s_mov_b32 s{srd+3}, 0x20000")
        if cfg.order == 2: A.salu(f"s_and_b32 s3, s{sB}, 1")
        else: A.salu(f"s_mov_b32 s3, {cfg.order}")
        A.salu("s_cmp_eq_u32 s3, 1")
        A.salu(f"s_cselect_b64 s[{sX}:{sX+1}], s[14:15], s[4:5]")
        A.salu(f"s_cselect_b64 s[{sWQ}:{sWQ+1}], s[20:21], s[10:11]")
        A.salu(f"s_cselect_b64 s[{sNX}:{sNX+1}], s[4:5], s[14:15]")
        A.salu(f"s_cselect_b64 s[{sNWQ}:{sNWQ+1}], s[10:11], s[20:21]")
        A.salu(f"s_mul_i32 s{sT2}, s{sB}, 71680")
        fin(sX, sT2, 71680)
        A.salu(f"s_lshl_b32 s{sT1}, s{sHG}, 1")
        A.salu(f"s_add_u32 s{sT1}, s{sT1}, s{sG}")
        A.salu(f"s_lshl_b32 s{sT1}, s{sT1}, 9")
        A.salu(f"s_sub_u32 s{sT3}, {448*8192}, s{sT1}")
        fin(sWQ, sT1, f"s{sT3}")
        if cfg.stamp:
            V(f"v_mov_b32 v{vSTAMP}, 0", vSTAMP, [])
            A.salu(f"s_mov_b32 s{sSTI}, 0")
        self.stamp("start")
        self.m0slot = None
        for t in range(5): self.x_dma(0, t)
        def first_loads(ns):
            for n in ns:
                if n == 2:
                    for t in range(5): self.x_load(1, t)
                for pc in range(2): self.slot_dma("WQ", n & 1, ("WQ", n), n, pc, 0)
        first_loads(range(2) if cfg.late else range(5))
        fin(sNX, sT2, 71680)
        fin(sNWQ, sT1, f"s{sT3}")
        A.salu(f"s_mul_i32 s{sPOW}, s{sW}, 10240")
        c = 1.4426950408889634 / 16.0
        A.salu(f"s_mov_b32 s{sC}, {f32bits(c):#x}")
        A.salu(f"s_mov_b32 s{sC+1}, {f32bits(c):#x}")
        A.salu(f"s_mov_b32 s{sNC}, {f32bits(-c):#x}")
        A.salu(f"s_mov_b32 s{sPH}, 0")
        A.salu(f"s_mul_i32 s{sGR}, s{sG}, {4*RINGSZ}")
        for jj in range(4):
            A.salu(f"s_xor_b32 s{sCOL+jj}, s{sJ}, {jj}")
            A.salu(f"s_lshl_b32 s{sCOL+jj}, s{sCOL+jj}, 7")
        V(f"v_lshl_add_u32 v{vV}, v{t2}, 9, v{t3}", vV, [t2, t3])
        V(f"v_add_u32 v{vV}, s{sT0}, v{vV}", vV, [vV])
        V(f"v_add_u32 v{vV+1}, {4096-1024}, v{vV}", vV + 1, [vV])
        A.salu(f"s_lshl_b32 s{sT1}, s{sW}, 7")
        A.salu(f"s_cmp_eq_u32 s{sW}, 7")
        A.salu(f"s_cselect_b32 s{sT1}, 0x4000000, s{sT1}")
        V(f"v_mul_u32_u24 v{vWO}, 896, v{t2}", vWO, [t2])
        V(f"v_add3_u32 v{vWO}, v{vWO}, v{t3}, s{sT1}", vWO, [vWO, t3])
        V(f"v_add_u32 v{vWO+1}, {8*896-1024}, v{vWO}", vWO + 1, [vWO])
        V(f"v_xor_b32 v{t1}, v{t1}, v{vG}", t1, [t1, vG])
        V(f"v_lshlrev_b32 v{t1}, 4, v{t1}", t1, [t1])
        V(f"v_lshl_add_u32 v{vK}, v{t2}, 9, v{t1}", vK, [t2, t1])
        A.salu(f"s_lshl_b32 s{sT1}, s{sJ}, 16")
        V(f"v_add_u32 v{vK}, s{sT1}, v{vK}", vK, [vK])
        V(f"v_xor_b32 v{vK+1}, 64, v{vK}", vK + 1, [vK])
        V(f"v_add_u32 v{vK+1}, {4096-1024}, v{vK+1}", vK + 1, [vK + 1])
        V(f"v_lshrrev_b32 v{t1}, 2, v{vL}", t1, [vL])
        V(f"v_lshlrev_b32 v{t1}, 7, v{t1}", t1, [t1])
        V(f"v_bfe_u32 v{t2}, v{vL}, 3, 2", t2, [vL])
        V(f"v_lshl_add_u32 v{t1}, v{t2}, 5, v{t1}", t1, [t1, t2])
        V(f"v_and_b32 v{t2}, 3, v{vL}", t2, [vL])
        V(f"v_lshl_add_u32 v{t1}, v{t2}, 3, v{t1}", t1, [t1, t2])
        V(f"v_add_u32 v{vTR}, s{sRING}, v{t1}", vTR, [t1])
        for a in range(1, 4):
            V(f"v_xor_b32 v{vTR+a}, {a << 5}, v{vTR}", vTR + a, [vTR])
        V(f"v_lshrrev_b32 v{t1}, 1, v{vQ}", t1, [vQ])
        V(f"v_xor_b32 v{t1}, v{t1}, v{vG}", t1, [t1, vG])
        V(f"v_lshlrev_b32 v{t1}, 4, v{t1}", t1, [t1])
        V(f"v_lshl_add_u32 v{t1}, v{vQ}, 7, v{t1}", t1, [t1, vQ])
        V(f"v_add_u32 v{vKR}, s{sRING}, v{t1}", vKR, [t1])
        V(f"v_xor_b32 v{vKR+1}, 64, v{vKR}", vKR + 1, [vKR])
        V(f"v_xor_b32 v{t1}, v{vG}, v{vQ}", t1, [vG, vQ])
        V(f"v_lshlrev_b32 v{t1}, 4, v{t1}", t1, [t1])
        V(f"v_lshl_add_u32 v{vXR}, v{vQ}, 8, v{t1}", vXR, [vQ, t1])
        for u in range(1, 4):
            V(f"v_xor_b32 v{vXR+u}, {u << 6}, v{vXR}", vXR + u, [vXR])
        for u in range(2):
            V(f"v_add_u32 v{vXRh+u}, 61440, v{vXR+u}", vXRh + u, [vXR + u])
        V(f"v_lshlrev_b32 v{vLin0}, 4, v{vL}", vLin0, [vL])
        V(f"v_add_u32 v{vLin1}, {BREG}, v{vLin0}", vLin1, [vLin0])
        A.salu(f"s_mul_i32 s{sT1}, s{sG}, {BREG}")
        A.salu(f"s_mul_i32 s{sT2}, s{sJ}, 10240")
        A.salu(f"s_add_u32 s{sT2}, s{sT2}, s{sT1}")
        V(f"v_add_u32 v{vLinG}, s{sT1}, v{vLin0}", vLinG, [vLin0])
        A.salu(f"s_mul_i32 s{sT3}, s{sJ}, 5120")
        V(f"v_add_u32 v{vPW}, s{sT3}, v{vLinG}", vPW, [vLinG])
        V(f"v_lshrrev_b32 v{t1}, 1, v{vG}", t1, [vG])
        V(f"v_lshlrev_b32 v{t1}, 8, v{t1}", t1, [t1])
        V(f"v_and_b32 v{t2}, 1, v{vG}", t2, [vG])
        V(f"v_lshl_add_u32 v{t1}, v{t2}, 3, v{t1}", t1, [t1, t2])
        V(f"v_lshl_add_u32 v{t1}, v{vQ}, 4, v{t1}", t1, [t1, vQ])
        V(f"v_add_u32 v{vQW}, s{sT2}, v{t1}", vQW, [t1])
        V(f"v_lshlrev_b32 v{t1}, 3, v{vQ}", t1, [vQ])
        V(f"v_add_u32 v{vSW}, s{sRING}, v{t1}", vSW, [t1])
        A.salu(f"s_add_u32 s{sT1}, s{sGR}, {RING0}")
        V(f"v_add_u32 v{vSR}, s{sT1}, v{t1}", vSR, [t1])
        V(f"v_add_u32 v{vRW}, s{sXM0}, v{vLin0}", vRW, [vLin0])
        if cfg.tlb:
            n = 65536 // cfg.tlb
            A.salu(f"s_lshl_b32 s{sT1}, s{sJ}, 16")
            A.salu(f"s_mov_b32 s{sT3}, {cfg.tlb}")
            V(f"v_mul_lo_u32 v{t1}, s{sT3}, v{vL}", t1, [vL])
            V(f"v_add_u32 v{t1}, s{sT1}, v{t1}", t1, [t1])
            V(f"v_mov_b32 v{t2}, 0x4000000", t2, [])
            V(f"v_cmp_gt_u32 vcc, {n}, v{vL}", [], [vL])
            A.nop(2)
            V(f"v_cndmask_b32 v{vT0}, v{t2}, v{t1}, vcc", vT0, [t1, t2])
        if cfg.krot:
            A.salu(f"s_lshr_b32 s{sT3}, s{sB}, 1")
            A.salu(f"s_and_b32 s{sT3}, s{sT3}, 14")
        else:
            A.salu(f"s_mov_b32 s{sT3}, 0")
        A.salu(f"s_lshl_b32 s{sT1}, s{sW}, 1")
        A.salu(f"s_sub_u32 s{sT1}, s{sT1}, s{sT3}")
        A.salu(f"s_and_b32 s{sT1}, s{sT1}, 15")
        A.salu(f"s_mul_i32 s{sT1}, s{sT1}, 5120")
        V(f"v_add_u32 v{vOW}, s{sT1}, v{vLin0}", vOW, [vLin0])
        A.salu(f"s_add_u32 s{sT3}, s{sT3}, 15")
        A.salu(f"s_and_b32 s{sT3}, s{sT3}, 15")
        A.salu(f"s_mul_i32 s{sWOK}, s{sT3}, {32*896}")
        A.salu(f"s_lshl_b32 s{sT1}, s{sB}, 3")
        A.salu(f"s_add_u32 s{sT1}, s{sT1}, s{sHG}")
        A.salu(f"s_lshl_b32 s{sT2}, s{sT1}, 18")
        A.salu(f"s_lshl_b32 s{sT3}, s{sG}, 13")
        A.salu(f"s_add_u32 s{sT2}, s{sT2}, s{sT3}")
        A.salu(f"s_sub_u32 s{sT3}, 262144, s{sT3}")
        A.salu(f"s_mov_b64 s[{sKV(0,0)}:{sKV(0,0)+1}], s[6:7]")
        A.salu(f"s_mov_b64 s[{sKV(0,1)}:{sKV(0,1)+1}], s[8:9]")
        fin(sKV(0, 0), sT2, f"s{sT3}"); fin(sKV(0, 1), sT2, f"s{sT3}")
        A.salu(f"s_lshl_b32 s{sT2}, s{sT1}, 1")
        A.salu(f"s_add_u32 s{sT2}, s{sT2}, s{sG}")
        A.salu(f"s_lshl_b32 s{sT2}, s{sT2}, 18")
        A.salu(f"s_mov_b64 s[{sKV(1,0)}:{sKV(1,0)+1}], s[16:17]")
        A.salu(f"s_mov_b64 s[{sKV(1,1)}:{sKV(1,1)+1}], s[18:19]")
        fin(sKV(1, 0), sT2, 262144); fin(sKV(1, 1), sT2, 262144)
        A.salu(f"s_mul_i32 s{sT2}, s{sHG}, {512*896}")
        A.salu(f"s_mov_b64 s[{sKV(0,2)}:{sKV(0,2)+1}], s[12:13]")
        A.salu(f"s_mov_b64 s[{sKV(1,2)}:{sKV(1,2)+1}], s[22:23]")
        fin(sKV(0, 2), sT2, 512 * 896); fin(sKV(1, 2), sT2, 512 * 896)
        for blk in range(2):
            A.salu(f"s_add_u32 s{sT2}, s{sT1}, {blk*256}")
            A.salu(f"s_mul_i32 s{sT2}, s{sT2}, 71680")
            A.salu(f"s_add_u32 s{sPOB(blk)}, s24, s{sT2}")
            A.salu(f"s_addc_u32 s{sPOB(blk)+1}, s25, 0")
            A.salu(f"s_and_b32 s{sPOB(blk)+1}, s{sPOB(blk)+1}, 0xffff")
        A.salu(f"s_mov_b64 s[{sPO}:{sPO+1}], s[{sPOB(0)}:{sPOB(0)+1}]")
        A.salu(f"s_mov_b32 s{sPO+2}, 0")
        A.salu(f"s_mov_b32 s{sPO+3}, 0x20000")
        if cfg.prio:
            A.salu(f"s_cmp_eq_u32 s{sG}, 0")
            A.salu("s_cbranch_scc1 L_noprio")
            A.salu(f"s_setprio {cfg.prio}")
            A.label("L_noprio")
        if cfg.late: first_loads(range(2, 5))
        self.canon_vm = list(A.vm)
        A.salu("s_cmp_eq_u32 s3, 1")
        A.salu("s_cbranch_scc1 L_body1")

    def wq_off(self, n):
        return n & 1

    def x_dma(self, pair, t):
        A = self.A
        A.salu(f"s_mov_b32 s{sOFF}, {t * 14336}")
        A.salu(f"s_add_u32 m0, s{sXM0}, {pair * 40960 + t * 4096}", m0=True)
        self.m0slot = None
        A.dma(vX + pair, sX, sOFF, flags=self.cfg.x_flags, tag=("x", pair))

    def x_load(self, pair, t):
        A = self.A
        A.salu(f"s_mov_b32 s{sOFF}, {t * 14336}")
        self.m0slot = None
        A.bload(ACC + 80 + (pair * 5 + t) * 4, 4, vX + pair, sX, sOFF, flags=self.cfg.x_flags, tag=("xr", pair))

    def x_write(self, pair, t):
        self.A.ds_write("ds_write_b128", vRW, ACC + 80 + (pair * 5 + t) * 4, 4, pair * 40960 + t * 4096, tag=("xw", pair))

    def store_po(self, i, b, flags):
        A = self.A
        A.salu(f"s_add_u32 s{sT0}, s{sPOW}, {(i * 5 + b) * 1024}")
        A.bstore(ACC + 120 + (i * 5 + b) * 4, 4, vLin0, sPO, sT0, flags=flags, tag="po")

    def set_off(self, typ, off, adv):
        A = self.A
        if typ in ("WQ", "WO"):
            reg, step, cnt, ystep = (sWQK, 262144, 14, 32768) if typ == "WQ" else (sWOK, 32 * 896, 16, 16 * 896)
            if adv and off == 0:
                A.salu(f"s_add_u32 s{reg}, s{reg}, {step}")
                A.salu(f"s_sub_u32 s{sOFF}, s{reg}, {step * cnt}")
                A.salu(f"s_cselect_b32 s{reg}, s{reg}, s{sOFF}")
            A.salu(f"s_add_u32 s{sOFF}, s{reg}, {off * ystep}")
        elif typ == "K": A.salu(f"s_add_u32 s{sOFF}, s{sCOL+off[1]}, {off[0]}")
        else: A.salu(f"s_mov_b32 s{sOFF}, {off}")

    def slot_dma(self, typ, off, key, phys, pc, blk):
        A = self.A; cfg = self.cfg
        vo, srd, fl = {"WQ": (vWQ, sWQ, cfg.w_flags), "K": (vK, sKV(blk, 0), cfg.kv_flags),
                       "V": (vV, sKV(blk, 1), cfg.kv_flags), "WO": (vWO, sKV(blk, 2), cfg.w_flags)}[typ]
        if pc == 0 or self.m0slot != key:
            self.set_off(typ, off, pc == 0)
            A.salu(f"s_add_u32 m0, s{sRING}, {phys * 2048}", m0=True)
            self.m0slot = key
        A.dma(vo + pc, srd, sOFF, off=1024 * pc, flags=fl, tag=key)

    def cvt(self, dst, a, b):
        self.A.valu(f"v_cvt_pk_bf16_f32 v{dst}, v{a}, v{b}", [dst], [a, b])

    def body(self, blk):
        A = self.A; V = self.V; cfg = self.cfg; R = cfg.R; cvt = self.cvt
        assert R == 5
        shared = (blk == 0)
        A.label(f"L_body{blk}")
        A.vm = list(self.canon_vm); A.lgkm = []
        self.m0slot = None
        nm = "AB"[blk]
        units = [(jj, 4 * r + k) for r in range(2) for jj in range(4) for k in range(4)]
        use = {}; phys = {}; order = []
        def add(key, typ, off):
            use[key] = (typ, off); order.append(key)
        for n in range(28):
            add(("WQ", n), "WQ", n & 1); phys["WQ", n] = n % 5
        nK = 16 if shared else 32
        for i in range(nK):
            jj, kt = units[2 * i] if shared else units[i]
            add(("K", i), "K", (kt * 8192, jj))
        half = nK // 2
        nR = cfg.kpA if shared else cfg.kpB
        nD = half - nR
        if shared:
            Dset = list(range(nD))
        else:
            assert nD >= 2
            Dset = list(range(min(4, nD)))
            rest = nD - len(Dset)
            for i in range(rest): Dset.append(4 + (i + 1) * (half - 4) // (rest + 1))
        Rlist = [i for i in range(half) if i not in Dset]
        assert len(Rlist) == nR
        add(("SCR", 0), "SCR", 0)
        nV = 16 if shared else 32
        for ks in range(16):
            t, w = divmod(ks, 4)
            key0 = 128 * w + 32 * t
            if shared: add(("V", ks), "V", key0 * 512)
            else:
                for y in range(2): add(("V", 2 * ks + y), "V", (key0 + 16 * y) * 512)
        for n in range(32): add(("WO", n), "WO", n & 1)
        for n in range(5): add(("NWQ", n), "WQ", n & 1)
        T = order[order.index(("K", half)):]
        for i, key in enumerate(T): phys[key] = (i - (len(T) - 5)) % 5
        npt = (2 if shared else 1) if nR else 0
        nfree = 5 - npt
        for i, d in enumerate(Dset): phys["K", d] = phys[T[(i - len(Dset)) % nfree]]
        for i, r in enumerate(Rlist): phys["K", r] = phys[T[nfree + (i - len(Rlist)) % npt]]
        kpreg = {r: ACC + 80 + 8 * i for i, r in enumerate(Rlist)}
        slotq = [deque(k for k in order if phys[k] == p) for p in range(5)]
        issued = set(("WQ", n) for n in range(5)); avail = set()
        side = deque(); vq = deque(); kpq = deque()
        st = {"wq_left": 23}

        def issue(key, pc):
            typ, off = use[key]
            self.slot_dma(typ, off, key, phys[key], pc, blk)
            if pc == 1:
                issued.add(key)
                if key[0] == "WQ":
                    st["wq_left"] -= 1
                    if st["wq_left"] == 0: switch_srd()

        def switch_srd():
            A.salu(f"s_mov_b64 s[{sX}:{sX+1}], s[{sNX}:{sNX+1}]")
            A.salu(f"s_mov_b32 s{sX+2}, s{sNX+2}")
            A.salu(f"s_mov_b64 s[{sWQ}:{sWQ+1}], s[{sNWQ}:{sNWQ+1}]")
            A.salu(f"s_mov_b32 s{sWQ+2}, s{sNWQ+2}")
            A.salu(f"s_mov_b32 s{sNX+2}, 0")
            A.salu(f"s_mov_b32 s{sNWQ+2}, 0")

        def release(key):
            q = slotq[phys[key]]
            assert q[0] == key, (key, q[0])
            q.popleft()
            if not q: return
            nx = q[0]
            if nx[0] == "SCR" or (nx[0] == "K" and nx[1] in kpreg):
                avail.add(nx)
            else:
                side.append(lambda: issue(nx, 0)); side.append(lambda: issue(nx, 1))

        def pump(q, k=1):
            for _ in range(k):
                if q: q.popleft()()

        def flush(q):
            while q: q.popleft()()

        def need(key):
            if key[0] == "K" and key[1] in kpreg:
                assert key in issued, key
                return
            while key not in issued:
                assert side, key
                side.popleft()()
            A.wait_vm_tag(key)

        def kp_load(i, pc):
            typ, off = use["K", i]
            self.set_off("K", off, False); self.m0slot = None
            A.bload(kpreg[i] + 4 * pc, 4, vK + pc, sKV(blk, 0), sOFF, off=1024 * pc, flags=cfg.kv_flags, tag=("kp", i))

        def fill(i, pc):
            assert ("K", i) in avail, i
            A.ds_write("ds_write_b128", vRW, kpreg[i] + 4 * pc, 4, phys["K", i] * 2048 + pc * 1024)
            if pc == 1: issued.add(("K", i))

        def tr_read(par, a, y, off, tag):
            A.ds_read("ds_read_b64_tr_b16", A_tr(par, a) + 2 * y, 2, vTR + a, off, tag=tag)

        def keys_of(typ, s, sh):
            return [(typ, s)] if sh else [(typ, 2 * s), (typ, 2 * s + 1)]
        def offs(typ, s, y, sh):
            return (phys[typ, s] * 2048 + y * 4 * RINGSZ) if sh else phys[typ, 2 * s + y] * 2048

        def gemm_tr(nk, typ, bread, sh=False, bars={}, pub={}, tail=None, kp=False, hooks={}):
            acc = ACC
            for b in range(5): bread(0, b)
            if not sh:
                A.wait_lgkm_tag(("rd", 0))
                for k in keys_of(typ, 0, sh): release(k)
                flush(side)
            for s in range(nk):
                par = s & 1
                nxt = s + 1 < nk
                for p in range(20):
                    b, a = divmod(p, 4)
                    if p == 0:
                        if nxt: need(keys_of(typ, s + 1, sh)[0])
                        if s in pub:
                            flush(vq); A.wait_lgkm_tag(pub[s])
                        if (sh and nxt) or s in bars or s in pub:
                            if sh: A.wait_lgkm_tag(("rd", s))
                            A.barrier()
                            if sh and nxt: release((typ, s))
                        if s in bars and bars[s]: bars[s]()
                        if s in hooks: hooks[s]()
                    if nxt and p == cfg.ypos and not sh:
                        need((typ, 2 * s + 3))
                    A.mfma(acc + (a * 5 + b) * 4, A_tr(par, a), B_tr(b), czero=(s == 0))
                    if nxt:
                        if sh: yy = (p >> 1, p & 1) if p < 4 else None
                        else: yy = (0, p) if p < 2 else ((1, p - cfg.ypos) if 0 <= p - cfg.ypos < 2 else None)
                        if yy:
                            y, hh = yy
                            for a2 in (hh * 2, hh * 2 + 1):
                                tr_read(par ^ 1, a2, y, offs(typ, s + 1, y, sh), ("rd", s + 1) if sh else ("rd", s + 1, y))
                    if nxt and a == 3: bread(s + 1, b)
                    if nxt and not sh:
                        for y, rp in ((0, cfg.relx), (1, cfg.ypos + cfg.relx)):
                            if p == rp:
                                A.wait_lgkm_tag(("rd", s + 1, y))
                                release((typ, 2 * s + 2 + y))
                    if p >= 2: pump(side, cfg.npump)
                    if kp and s >= cfg.kp_start and p in (14, 18, 16, 6)[:cfg.kp_per]: pump(kpq)
                    if not nxt and tail and a == 3 and b >= 1: tail(b - 1)
                    pump(vq, 1 if nxt else 3)
            if tail: tail(4)
            flush(vq)

        def prefetch_A(typ, sh=False):
            if not sh:
                need((typ, 0)); need((typ, 1))
            for y in range(2):
                for a in range(4): tr_read(0, a, y, offs(typ, 0, y, sh), ("rd", 0))

        def pair_cvt(i, b, q):
            r0 = ACC + ((2 * i) * 5 + b) * 4; r1 = ACC + ((2 * i + 1) * 5 + b) * 4
            for (d, x) in ((r0, r0), (r0 + 1, r0 + 2), (r0 + 2, r1), (r0 + 3, r1 + 2)):
                q.append(lambda d=d, x=x: cvt(d, x, x + 1))
            return r0

        prefetch_A("WQ")
        A.wait_vm_tag(("x", 0))
        self.bar(nm + "B1")
        if cfg.tlbk: A.bload(vT1, 1, vT0, sKV(blk, 0), "0", flags="nt", tag="tlb")
        if cfg.stpos == "b1":
            for i in range(2):
                for b in range(5): vq.append(lambda i=i, b=b: self.store_po(i, b, cfg.po_flags))
        for t in range(5): vq.append(lambda t=t: self.x_write(1, t))
        for i in Rlist:
            for pc in range(2): kpq.append(lambda i=i, pc=pc: kp_load(i, pc))
        def bread_x(ks, b):
            cidx, u = divmod(ks, 4)
            if ks == 8 and b == 0:
                A.wait_lgkm_tag(("xw", 1))
                self.bar(nm + "B2")
            if cidx < 3:
                A.ds_read("ds_read_b128", B_tr(b), 4, vXR + u, cidx * 20480 + b * 4096)
            else:
                A.ds_read("ds_read_b128", B_tr(b), 4, vXRh + u, b * 4096)
        def tail_q(b):
            for a in range(4):
                r = ACC + (a * 5 + b) * 4
                vq.append(lambda r=r: cvt(r, r, r + 1)); vq.append(lambda r=r: cvt(r + 1, r + 2, r + 3))
        gemm_tr(14, "WQ", bread_x, tail=tail_q, kp=True)
        flush(side); flush(kpq)
        def all_stores():
            for i in range(2):
                for b in range(5): self.store_po(i, b, cfg.po_flags)
        if cfg.stpos == "b3": all_stores()
        self.bar(nm + "B3")
        for b in range(5):
            for a in range(4):
                A.ds_write("ds_write_b64", vQW, ACC + (a * 5 + b) * 4, 2, ((a >> 1) * 5 + b) * 1024 + (a & 1) * 512)
        if cfg.stpos == "b4": all_stores()
        def set_qr(jj):
            A.salu(f"s_mul_i32 s{sT0}, s{sCOL+jj}, 80")
            V(f"v_add_u32 v{vQR}, s{sT0}, v{vLinG}", vQR, [vLinG])
        set_qr(0)
        def k_off(u):
            if shared: return phys["K", u >> 1] * 2048 + (u & 1) * 4 * RINGSZ
            return phys["K", u] * 2048
        def k_read(u, s):
            A.ds_read("ds_read_b128", A_s(u & 1, s), 4, vKR + s, k_off(u), tag=("rk", u))
        if shared:
            for t in range(2):
                if t in kpreg: fill(t, 0); fill(t, 1)
            need(("K", 0))
            for s in range(2): V(f"v_subrev_u32 v{vKR+s}, s{sGR}, v{vKR+s}", vKR + s, [vKR + s])
            A.wait_lgkm_all()
            self.bar(nm + "B4")
            for s in range(2): k_read(0, s)
        else:
            need(("K", 0))
            for s in range(2): k_read(0, s)
            A.wait_lgkm_all()
            release(("K", 0))
            self.bar(nm + "B4")
        if cfg.tlb: A.bload(vT1, 1, vT0, sKV(blk, 1), "0", flags="nt", tag="tlb")
        for s in range(2):
            for b in range(5):
                A.ds_read("ds_read_b128", B_s(s, b), 4, vQR, (s * 5 + b) * 1024)
        def acc_s(kt, b): return ACC + (kt * 5 + b) * 4
        NM1 = lambda b: BORROW[b]
        L1 = lambda b: BORROW[5 + b]
        smq = deque()
        def q_max(kt):
            for b in range(5):
                r = acc_s(kt, b); m = vM + b
                if kt == 0:
                    smq.append(lambda r=r, m=m: V(f"v_max3_f32 v{m}, v{r}, v{r+1}, v{r+2}", m, [r, r+1, r+2]))
                    smq.append(lambda r=r, m=m: V(f"v_max_f32 v{m}, v{m}, v{r+3}", m, [m, r+3]))
                else:
                    smq.append(lambda r=r, m=m: V(f"v_max3_f32 v{m}, v{m}, v{r}, v{r+1}", m, [m, r, r+1]))
                    smq.append(lambda r=r, m=m: V(f"v_max3_f32 v{m}, v{m}, v{r+2}, v{r+3}", m, [m, r+2, r+3]))
        def q_round1():
            for sw in ("v_permlane32_swap_b32", "v_permlane16_swap_b32"):
                for b in range(5): smq.append(lambda b=b: V(f"v_mov_b32 v{L1(b)}, v{vM+b}", L1(b), [vM + b]))
                for b in range(5): smq.append(lambda b=b, sw=sw: A.valu(f"{sw} v{vM+b}, v{L1(b)}", [vM + b, L1(b)], [vM + b, L1(b)], kind="perm"))
                for b in range(5): smq.append(lambda b=b: V(f"v_max_f32 v{vM+b}, v{vM+b}, v{L1(b)}", vM + b, [vM + b, L1(b)]))
            for b in range(5): smq.append(lambda b=b: V(f"v_mul_f32 v{NM1(b)}, s{sNC}, v{vM+b}", NM1(b), [vM + b]))
            for kt in range(4):
                for b in range(5):
                    r = acc_s(kt, b)
                    for e in range(4): smq.append(lambda x=r+e, b=b: V(f"v_fma_f32 v{x}, v{x}, s{sC}, v{NM1(b)}", x, [x, NM1(b)]))
                    for e in range(4): smq.append(lambda x=r+e: A.valu(f"v_exp_f32 v{x}, v{x}", [x], [x], kind="trans"))
                    if kt == 0:
                        smq.append(lambda r=r, b=b: V(f"v_add_f32 v{L1(b)}, v{r}, v{r+1}", L1(b), [r, r + 1]))
                        rest = (2, 3)
                    else: rest = (0, 1, 2, 3)
                    for e in rest: smq.append(lambda x=r+e, b=b: V(f"v_add_f32 v{L1(b)}, v{L1(b)}, v{x}", L1(b), [L1(b), x]))
        for u in range(32):
            jj, kt = units[u]
            par = u & 1
            nxt = u + 1 < 32
            last_in_pass = (kt & 3) == 3
            for p in range(10):
                s, b = divmod(p, 5)
                if nxt and p == 0:
                    if shared:
                        if u & 1:
                            need(("K", (u + 1) // 2))
                            A.wait_lgkm_tag(("rk", u))
                            A.barrier()
                            release(("K", u // 2))
                    else:
                        need(("K", u + 1))
                A.mfma(acc_s(kt, b), A_s(par, s), B_s(s, b), czero=(jj == 0 and s == 0))
                if nxt and p < 2: k_read(u + 1, p)
                if (kt & 3) == 2 and p == 9 and u + 2 < 32: set_qr(units[u + 2][0])
                if last_in_pass and nxt:
                    A.ds_read("ds_read_b128", B_s(s, b), 4, vQR, (s * 5 + b) * 1024)
                if nxt and p == cfg.s_rel_pos and not shared:
                    A.wait_lgkm_tag(("rk", u + 1))
                    release(("K", u + 1))
                if shared:
                    if (u & 1) and p in (3, 4) and (u + 3) // 2 in kpreg: fill((u + 3) // 2, p - 3)
                else:
                    if p in (cfg.s_rel_pos + 1, cfg.s_rel_pos + 2) and (u + 2) in kpreg: fill(u + 2, p - cfg.s_rel_pos - 1)
                if p >= 2: pump(side, cfg.npump)
                if cfg.stpos == "s0" and u == 0: self.store_po(p // 5, p % 5, cfg.po_flags)
                if p >= 4 or u > 16: pump(smq, cfg.sm_per)
            if jj == 3: q_max(kt)
            if u == 15: q_round1()
        flush(side); flush(smq)
        self.stamp(nm + "Sdone")
        ML = lambda b: 176 + 2 * b
        NMC = lambda b: 186 + 2 * b
        LS = lambda b: 196 + 2 * b
        TT = lambda b: 206 + b
        def xl_reduce(src, dst, op):
            for b in range(5): V(f"v_mov_b32 v{TT(b)}, v{src(b)}", TT(b), [src(b)])
            for b in range(5): A.valu(f"v_permlane32_swap_b32 v{src(b)}, v{TT(b)}", [src(b), TT(b)], [src(b), TT(b)], kind="perm")
            for b in range(5): V(f"{op} v{src(b)}, v{src(b)}, v{TT(b)}", src(b), [src(b), TT(b)])
            for b in range(5): V(f"v_mov_b32 v{TT(b)}, v{src(b)}", TT(b), [src(b)])
            for b in range(5): A.valu(f"v_permlane16_swap_b32 v{src(b)}, v{TT(b)}", [src(b), TT(b)], [src(b), TT(b)], kind="perm")
            for b in range(5): V(f"{op} v{dst(b)}, v{src(b)}, v{TT(b)}", dst(b), [src(b), TT(b)])
        xl_reduce(lambda b: vM + b, ML, "v_max_f32")
        for b in range(5): V(f"v_mul_f32 v{NMC(b)}, s{sNC}, v{ML(b)}", NMC(b), [ML(b)])
        for b in range(5): V(f"v_sub_f32 v{NM1(b)}, v{NMC(b)}, v{NM1(b)}", NM1(b), [NMC(b), NM1(b)])
        for b in range(5): A.valu(f"v_exp_f32 v{NM1(b)}, v{NM1(b)}", [NM1(b)], [NM1(b)], kind="trans")
        for kt in range(4, 8):
            for b in range(5):
                r = acc_s(kt, b)
                for h in range(2):
                    x = r + 2 * h
                    A.valu(f"v_pk_fma_f32 v[{x}:{x+1}], v[{x}:{x+1}], s[{sC}:{sC+1}], v[{NMC(b)}:{NMC(b)+1}] op_sel_hi:[1,0,0]",
                           [x, x + 1], [x, x + 1, NMC(b)])
            for b in range(5):
                r = acc_s(kt, b)
                for e in range(4):
                    A.valu(f"v_exp_f32 v{r+e}, v{r+e}", [r + e], [r + e], kind="trans")
            for b in range(5):
                r = acc_s(kt, b); l = LS(b)
                if kt == 4:
                    A.valu(f"v_pk_add_f32 v[{l}:{l+1}], v[{r}:{r+1}], v[{r+2}:{r+3}]", [l, l + 1], rng(r, 4))
                else:
                    A.valu(f"v_pk_add_f32 v[{l}:{l+1}], v[{l}:{l+1}], v[{r}:{r+1}]", [l, l + 1], [l, l + 1, r, r + 1])
            if kt > 4:
                for b in range(5):
                    r = acc_s(kt, b); l = LS(b)
                    A.valu(f"v_pk_add_f32 v[{l}:{l+1}], v[{l}:{l+1}], v[{r+2}:{r+3}]", [l, l + 1], [l, l + 1, r + 2, r + 3])
        for b in range(5): V(f"v_add_f32 v{LS(b)}, v{LS(b)}, v{LS(b)+1}", LS(b), [LS(b), LS(b) + 1])
        for b in range(5): V(f"v_fmac_f32 v{LS(b)}, v{L1(b)}, v{NM1(b)}", LS(b), [LS(b), L1(b), NM1(b)])
        xl_reduce(LS, lambda b: ML(b) + 1, "v_add_f32")
        assert ("SCR", 0) in avail
        so = phys["SCR", 0] * 2048
        A.salu("s_mov_b64 exec, 0xffff")
        for b in range(5):
            A.ds_write("ds_write_b64", vSW, ML(b), 2, so + b * 128)
        A.salu("s_mov_b64 exec, -1")
        if shared: need(("V", 0))
        A.wait_lgkm_all()
        self.bar(nm + "B5")
        if shared:
            release(("K", 15)); flush(side)
        RB = lambda b: [160, 168, 176, 196, 204][b]
        for b in range(5):
            for jj in range(4):
                A.ds_read("ds_read_b64", RB(b) + 2 * jj, 2, vSR, jj * RINGSZ + so + b * 128)
        MX = lambda b: vM + b
        for b in range(5):
            r = RB(b)
            V(f"v_max3_f32 v{MX(b)}, v{r}, v{r+2}, v{r+4}", MX(b), [r, r + 2, r + 4])
            V(f"v_max_f32 v{MX(b)}, v{MX(b)}, v{r+6}", MX(b), [MX(b), r + 6])
            V(f"v_mul_f32 v{MX(b)}, s{sNC}, v{MX(b)}", MX(b), [MX(b)])
            for jj in range(4):
                V(f"v_fma_f32 v{r+2*jj}, v{r+2*jj}, s{sC}, v{MX(b)}", r + 2 * jj, [r + 2 * jj, MX(b)])
            V(f"v_sub_f32 v{NMC(b)}, v{MX(b)}, v{NMC(b)}", NMC(b), [MX(b), NMC(b)])
        for b in range(5):
            r = RB(b)
            for jj in range(4):
                A.valu(f"v_exp_f32 v{r+2*jj}, v{r+2*jj}", [r + 2 * jj], [r + 2 * jj], kind="trans")
            A.valu(f"v_exp_f32 v{NMC(b)}, v{NMC(b)}", [NMC(b)], [NMC(b)], kind="trans")
        for b in range(5):
            r = RB(b)
            V(f"v_mul_f32 v{MX(b)}, v{r}, v{r+1}", MX(b), [r, r + 1])
            for jj in range(1, 4):
                V(f"v_fmac_f32 v{MX(b)}, v{r+2*jj}, v{r+2*jj+1}", MX(b), [MX(b), r + 2 * jj, r + 2 * jj + 1])
        for b in range(5):
            A.valu(f"v_rcp_f32 v{MX(b)}, v{MX(b)}", [MX(b)], [MX(b)], kind="trans")
        for b in range(5):
            V(f"v_mul_f32 v{MX(b)}, v{MX(b)}, v{NMC(b)}", MX(b), [MX(b), NMC(b)])
        for b in range(5):
            V(f"v_mul_f32 v{NMC(b)}, v{MX(b)}, v{NM1(b)}", NMC(b), [MX(b), NM1(b)])
        if shared:
            for s in range(2): V(f"v_add_u32 v{vKR+s}, s{sGR}, v{vKR+s}", vKR + s, [vKR + s])
            V(f"v_subrev_u32 v{vTR}, s{sGR}, v{vTR}", vTR, [vTR])
        for a in range(1, 4): V(f"v_xor_b32 v{vTR+a}, {a << 5}, v{vTR}", vTR + a, [vTR])
        prefetch_A("V", sh=shared)
        def writeP(i, b, tag=None):
            A.ds_write("ds_write_b128", vPW, acc_s(2 * i, b), 4, (i & 1) * 20480 + b * 1024, tag=tag)
        for i in range(2):
            for b in range(5):
                r0 = acc_s(2 * i, b); r1 = acc_s(2 * i + 1, b); f = NMC(b)
                for x in (r0, r0 + 2, r1, r1 + 2):
                    A.valu(f"v_pk_mul_f32 v[{x}:{x+1}], v[{x}:{x+1}], v[{f}:{f+1}] op_sel_hi:[1,0]", [x, x + 1], [x, x + 1, f])
                cvt(r0, r0, r0 + 1); cvt(r0 + 1, r0 + 2, r0 + 3); cvt(r0 + 2, r1, r1 + 1); cvt(r0 + 3, r1 + 2, r1 + 3)
                writeP(i, b)
        A.wait_lgkm_all()
        self.bar(nm + "B6")
        release(("SCR", 0))
        for u in range(1, 4): vq.append(lambda u=u: V(f"v_xor_b32 v{vXR+u}, {u << 6}, v{vXR}", vXR + u, [vXR]))
        for u in range(2): vq.append(lambda u=u: V(f"v_add_u32 v{vXRh+u}, 61440, v{vXR+u}", vXRh + u, [vXR + u]))
        vq.append(lambda: V(f"v_add_u32 v{vWQ+1}, {16*8192-1024}, v{vWQ}", vWQ + 1, [vWQ]))
        vq.append(lambda: V(f"v_add_u32 v{vWO+1}, {8*896-1024}, v{vWO}", vWO + 1, [vWO]))
        vq.append(lambda: V(f"v_add_u32 v{vLin1}, {BREG}, v{vLin0}", vLin1, [vLin0]))
        def q_pack(i):
            for b in range(5):
                r0 = acc_s(2 * i, b); r1 = acc_s(2 * i + 1, b)
                for x in rng(r0, 4) + rng(r1, 4):
                    vq.append(lambda x=x, b=b: V(f"v_mul_f32 v{x}, v{x}, v{MX(b)}", x, [x, MX(b)]))
                for (d, x) in ((r0, r0), (r0 + 1, r0 + 2), (r0 + 2, r1), (r0 + 3, r1 + 2)):
                    vq.append(lambda d=d, x=x: cvt(d, x, x + 1))
        q_pack(2)
        def q_write(i):
            for b in range(5): vq.append(lambda b=b: writeP(i, b, tag=("pw", i)))
        def at4():
            self.stamp(nm + "PV4"); q_write(2); q_pack(3)
        def at8():
            self.stamp(nm + "PV8"); q_write(3)
        def bread_p(ks, b):
            A.ds_read("ds_read_b128", B_tr(b), 4, vLinG, ((ks & 7) * 5 + b) * 1024)
        xq = deque((pair, t) for pair in range(2) for t in range(5))
        xs = [int(v) for v in cfg.xsplit.split(",")]
        def xl(n):
            for _ in range(n): self.x_load(*xq.popleft())
        def tail_o(b):
            for i in range(2): pair_cvt(i, b, vq)
        gemm_tr(16, "V", bread_p, sh=shared, bars={4: at4, 8: at8}, pub={7: ("pw", 2), 11: ("pw", 3)}, tail=tail_o)
        flush(side)
        xl(xs[0])
        self.bar(nm + "B9")
        if shared:
            release(("V", 15)); flush(side)
            for a in range(4): V(f"v_add_u32 v{vTR+a}, s{sGR}, v{vTR+a}", vTR + a, [vTR + a])
        for b in range(5):
            for i in range(2):
                A.ds_write("ds_write_b128", vOW, ACC + ((2 * i) * 5 + b) * 4, 4, (i * 5 + b) * 1024)
        prefetch_A("WO")
        xl(xs[1])
        A.wait_lgkm_all()
        self.bar(nm + "B10")
        xl(xs[2])
        def bread_o(ks, b):
            A.ds_read("ds_read_b128", B_tr(b), 4, vLin0 if ks < 8 else vLin1, ((ks & 7) * 5 + b) * 1024)
        def mid_o():
            self.stamp(nm + "B11")
            for t in range(5): vq.append(lambda t=t: self.x_write(0, t))
        def tail_po(b):
            for i in range(2):
                r0 = ACC + ((2 * i) * 5 + b) * 4; r1 = ACC + ((2 * i + 1) * 5 + b) * 4
                d = ACC + 120 + (i * 5 + b) * 4
                for e, x in enumerate((r0, r0 + 2, r1, r1 + 2)):
                    vq.append(lambda d=d + e, x=x: cvt(d, x, x + 1))
        gemm_tr(16, "WO", bread_o, bars={8: mid_o}, tail=tail_po)
        flush(side)
        A.wait_vm_tag(("NWQ", 1))
        A.wait_lgkm_all()
        A.salu(f"s_mov_b64 s[{sPO}:{sPO+1}], s[{sPOB(blk)}:{sPOB(blk)+1}]")
        A.salu(f"s_mov_b32 s{sPO+2}, 71680")
        assert all(len(q) == 1 and q[0] == ("NWQ", p) for p, q in enumerate(slotq))
        act = [("WQ", t[1]) if t[0] == "NWQ" else t for t, _ in A.vm]
        can = [t for t, _ in self.canon_vm]
        assert act == can[len(can) - len(act):], (act, can)
        self.stamp(nm + "Odone")
        A.nop(2)
        A.salu(f"s_add_u32 s{sPH}, s{sPH}, 1")
        A.salu(f"s_cmp_eq_u32 s{sPH}, 2")
        A.salu("s_cbranch_scc1 L_final")
        if blk == 1: A.salu("s_branch L_body0")

    def final(self):
        A = self.A; cfg = self.cfg
        A.label("L_final")
        A.vm = []; A.lgkm = []
        for i in range(2):
            for b in range(5): self.store_po(i, b, cfg.pof_flags)
        if cfg.stamp:
            A.raw("s_waitcnt vmcnt(0)")
            self.stamp("end")
            A.salu("s_add_u32 s28, s24, 0x8000000")
            A.salu("s_addc_u32 s29, s25, 0")
            A.salu("s_and_b32 s29, s29, 0xffff")
            A.salu("s_mov_b32 s30, 0x100000")
            A.salu("s_mov_b32 s31, 0x20000")
            A.salu(f"s_lshl_b32 s{sT0}, s2, 3")
            A.salu(f"s_add_u32 s{sT0}, s{sT0}, s{sW}")
            A.salu(f"s_lshl_b32 s{sT0}, s{sT0}, 8")
            A.valu(f"v_lshrrev_b32 v0, 2, v{vLin0}", [0], [vLin0])
            A.bstore(vSTAMP, 1, 0, 28, sT0)
            open(cfg.path + ".stamps", "w").write(" ".join(self.stamps))
        A.label("L_attn_done")
        A.raw("s_endpgm")


def gen_main(cfg):
    g = Gen(cfg)
    g.A.label("attn_kernel")
    g.setup(); g.body(0); g.body(1); g.final()
    return "attn_kernel", g.A


def build(cfg, path):
    from gen1 import gen_reduce
    cfg.path = path
    hdr = open("cdna_kernels/" + NAME + ".s.ref").read().split("\n")
    head = [l for l in hdr if l.startswith(";") and "@launch" not in l and "Override launch" not in l and "grid=ceil" not in l]
    k1, A1 = gen_main(cfg)
    k2, A2 = gen_reduce(cfg)
    out = "\n".join(head) + "\n"
    out += f"; @launch kernel={k1} grid=(256,1,1) block=(512,1,1) lds=163840\n"
    out += f"; @launch kernel={k2} grid=(560,1,1) block=(256,1,1) lds=0\n"
    out += '.amdgcn_target "amdgcn-amd-amdhsa--gfx950"\n.text\n'
    for k, A in ((k1, A1), (k2, A2)):
        out += f".globl {k}\n.p2align 8\n.type {k},@function\n" + A.text()
    out += '.section .rodata,"a"\n.p2align 6\n'
    out += kernel_desc(k1, 256, 102, 256)
    out += ".p2align 6\n" + kernel_desc(k2, 96, 32, 96)
    open(path, "w").write(out)
    print(path, "mfma", A1.nmfma, "lines", len(A1.lines))

if __name__ == "__main__":
    cfg = Cfg()
    for a in sys.argv[2:]:
        k, v = a.split("=")
        setattr(cfg, k, type(getattr(cfg, k))(v))
    build(cfg, sys.argv[1] if len(sys.argv) > 1 else "cdna_kernels/" + NAME + ".s")
```

```python
import sys, struct
from collections import deque
from asmlib import *

NAME = "concat_heads__gqa_block_cached__mha_block_cached__near_ridge"

class Cfg:
    R = 5
    kv_flags = "nt"
    w_flags = ""
    x_flags = ""
    po_flags = ""
    rd_flags = ""
    rel_pos = 8
    s_rel_pos = 5
    stamp = 0
    sync_s = 0
    sync_pv = 0
    wpre = 0
    rot = 1
    xmap = 0

def f32bits(x):
    return struct.unpack("<I", struct.pack("<f", x))[0]

BREG = 40960
RING0 = 81920
RINGSZ = 10240

ACC = 0
FR = 160
def A_tr(par, a): return FR + par * 16 + a * 4
def B_tr(b): return FR + 32 + 4 * b
def B_s(s, b): return FR + (s * 5 + b) * 4
def A_s(par, s): return FR + 40 + par * 8 + s * 4
_v = 216
def _alloc(n=1):
    global _v
    r = _v; _v += n
    assert _v <= 256
    return r
vTR = _alloc(4); vKR = _alloc(2); vV = _alloc(2); vWQ = _alloc(2); vWO = _alloc(2); vK = _alloc(2)
vX = _alloc(1); vXR = _alloc(4); vXRh = _alloc(2); vLin0 = _alloc(); vLin1 = _alloc(); vLinG = _alloc()
vPW = _alloc(); vQW = _alloc(); vSW = _alloc(); vSR = _alloc()
vM = _alloc(5)
vT0 = _alloc(); vT1 = _alloc(); vT2 = _alloc(); vT3 = _alloc()

def SRD(job, k): return 28 + job * 24 + k * 4
sRING = 76; sOFF = 77; sC = 78
sNC = 80; sXM0 = 81; sPOW = 82; sW = 83; sJ = 84; sG = 85; sB = 86; sHG = 87
sT0 = 88; sT1 = 89; sT2 = 90; sT3 = 91; sT4 = 92; sT5 = 93
sCOL = 94
vQR = 253


def gen_main(cfg):
    A = Asm()
    R = cfg.R
    kn = "attn_kernel"
    A.label(kn)
    A.salu("s_cmp_ge_u32 s2, 256")
    A.salu("s_cbranch_scc1 L_attn_done")
    A.salu("s_load_dwordx16 s[4:19], s[0:1], 0")
    A.salu("s_load_dwordx4 s[20:23], s[0:1], 64")
    A.salu("s_load_dwordx2 s[24:25], s[0:1], 96")
    vL = vT0; vG = vT1; vQ = vT2; vTmp = vT3
    t1 = 0; t2 = 1; t3 = 2
    A.valu(f"v_lshrrev_b32 v{vTmp}, 6, v0", [vTmp], [0])
    A.valu(f"v_and_b32 v{vL}, 63, v0", [vL], [0])
    A.rfl(sW, vTmp)
    A.valu(f"v_lshrrev_b32 v{vG}, 4, v{vL}", [vG], [vL])
    A.valu(f"v_and_b32 v{vQ}, 15, v{vL}", [vQ], [vL])
    A.nop(2)
    A.salu(f"s_and_b32 s{sJ}, s{sW}, 3")
    A.salu(f"s_lshr_b32 s{sG}, s{sW}, 2")
    if cfg.xmap:
        A.salu(f"s_lshr_b32 s{sB}, s2, 4")
        A.salu(f"s_bfe_u32 s{sT0}, s2, 0x10002")
        A.salu(f"s_lshl_b32 s{sT0}, s{sT0}, 4")
        A.salu(f"s_add_u32 s{sB}, s{sB}, s{sT0}")
        A.salu(f"s_and_b32 s{sHG}, s2, 3")
        A.salu(f"s_bfe_u32 s3, s2, 0x10003")
    else:
        A.salu(f"s_lshr_b32 s{sB}, s2, 3")
        A.salu(f"s_and_b32 s{sHG}, s2, 7")
    A.salu(f"s_mul_i32 s{sRING}, s{sW}, {RINGSZ}")
    A.salu(f"s_add_u32 s{sRING}, s{sRING}, {RING0}")
    A.salu(f"s_mul_i32 s{sPOW}, s{sW}, 10240")
    c = 1.4426950408889634 / 16.0
    A.salu(f"s_mov_b32 s{sC}, {f32bits(c):#x}")
    A.salu(f"s_mov_b32 s{sC+1}, {f32bits(c):#x}")
    A.salu(f"s_mov_b32 s{sNC}, {f32bits(-c):#x}")
    A.salu(f"s_mul_i32 s{sXM0}, s{sG}, 20480")
    A.salu(f"s_lshl_b32 s{sT0}, s{sJ}, 10")
    A.salu(f"s_add_u32 s{sXM0}, s{sXM0}, s{sT0}")

    for jj in range(4):
        if cfg.rot:
            A.salu(f"s_xor_b32 s{sCOL+jj}, s{sJ}, {jj}")
            A.salu(f"s_lshl_b32 s{sCOL+jj}, s{sCOL+jj}, 7")
        else:
            A.salu(f"s_mov_b32 s{sCOL+jj}, {jj*128}")
    def V(text, w, r): A.valu(text, w if isinstance(w, list) else [w], r)
    V(f"v_lshrrev_b32 v{t1}, 2, v{vL}", t1, [vL])
    V(f"v_lshlrev_b32 v{t1}, 7, v{t1}", t1, [t1])
    V(f"v_bfe_u32 v{t2}, v{vL}, 3, 2", t2, [vL])
    V(f"v_lshl_add_u32 v{t1}, v{t2}, 5, v{t1}", t1, [t1, t2])
    V(f"v_and_b32 v{t2}, 3, v{vL}", t2, [vL])
    V(f"v_lshl_add_u32 v{t1}, v{t2}, 3, v{t1}", t1, [t1, t2])
    V(f"v_add_u32 v{vTR}, s{sRING}, v{t1}", vTR, [t1])
    for a in range(1, 4):
        V(f"v_xor_b32 v{vTR+a}, {a << 5}, v{vTR}", vTR + a, [vTR])
    V(f"v_lshrrev_b32 v{t1}, 1, v{vQ}", t1, [vQ])
    V(f"v_xor_b32 v{t1}, v{t1}, v{vG}", t1, [t1, vG])
    V(f"v_lshlrev_b32 v{t1}, 4, v{t1}", t1, [t1])
    V(f"v_lshl_add_u32 v{t1}, v{vQ}, 7, v{t1}", t1, [t1, vQ])
    V(f"v_add_u32 v{vKR}, s{sRING}, v{t1}", vKR, [t1])
    V(f"v_xor_b32 v{vKR+1}, 64, v{vKR}", vKR + 1, [vKR])
    V(f"v_and_b32 v{t1}, 7, v{vL}", t1, [vL])
    V(f"v_lshlrev_b32 v{t3}, 1, v{vG}", t3, [vG])
    V(f"v_xor_b32 v{t3}, v{t3}, v{t1}", t3, [t3, t1])
    V(f"v_lshlrev_b32 v{t3}, 4, v{t3}", t3, [t3])
    V(f"v_lshrrev_b32 v{t2}, 3, v{vL}", t2, [vL])
    A.salu(f"s_lshl_b32 s{sT0}, s{sJ}, 7")
    V(f"v_lshl_add_u32 v{vV}, v{t2}, 9, v{t3}", vV, [t2, t3])
    V(f"v_add_u32 v{vV}, s{sT0}, v{vV}", vV, [vV])
    V(f"v_add_u32 v{vV+1}, {4096-1024}, v{vV}", vV + 1, [vV])
    V(f"v_lshrrev_b32 v{vTmp}, 5, v{vL}", vTmp, [vL])
    V(f"v_lshlrev_b32 v{vTmp}, 3, v{vTmp}", vTmp, [vTmp])
    V(f"v_and_b32 v{vWQ}, 3, v{t2}", vWQ, [t2])
    V(f"v_add_u32 v{vTmp}, v{vTmp}, v{vWQ}", vTmp, [vTmp, vWQ])
    V(f"v_lshl_add_u32 v{vWQ}, v{vTmp}, 13, v{t3}", vWQ, [vTmp, t3])
    V(f"v_add_u32 v{vWQ}, s{sT0}, v{vWQ}", vWQ, [vWQ])
    V(f"v_add_u32 v{vWQ+1}, {16*8192-1024}, v{vWQ}", vWQ + 1, [vWQ])
    A.salu(f"s_lshl_b32 s{sT1}, s{sW}, 7")
    A.salu(f"s_cmp_eq_u32 s{sW}, 7")
    A.salu(f"s_cselect_b32 s{sT1}, 0x4000000, s{sT1}")
    V(f"v_mul_u32_u24 v{vWO}, 896, v{t2}", vWO, [t2])
    V(f"v_add3_u32 v{vWO}, v{vWO}, v{t3}, s{sT1}", vWO, [vWO, t3])
    V(f"v_add_u32 v{vWO+1}, {8*896-1024}, v{vWO}", vWO + 1, [vWO])
    V(f"v_xor_b32 v{t1}, v{t1}, v{vG}", t1, [t1, vG])
    V(f"v_lshlrev_b32 v{t1}, 4, v{t1}", t1, [t1])
    V(f"v_lshl_add_u32 v{vK}, v{t2}, 9, v{t1}", vK, [t2, t1])
    A.salu(f"s_lshl_b32 s{sT1}, s{sJ}, 16")
    V(f"v_add_u32 v{vK}, s{sT1}, v{vK}", vK, [vK])
    V(f"v_xor_b32 v{vK+1}, 64, v{vK}", vK + 1, [vK])
    V(f"v_add_u32 v{vK+1}, {4096-1024}, v{vK+1}", vK + 1, [vK + 1])
    A.salu(f"s_lshl_b32 s{sT1}, s{sJ}, 2")
    A.salu(f"s_lshl_b32 s{sT2}, s{sG}, 8")
    V(f"v_add_u32 v{t1}, s{sT1}, v{vG}", t1, [vG])
    V(f"v_xor_b32 v{t2}, v{t1}, v{vQ}", t2, [t1, vQ])
    V(f"v_lshlrev_b32 v{t2}, 4, v{t2}", t2, [t2])
    V(f"v_mul_u32_u24 v{vX}, 896, v{t1}", vX, [t1])
    V(f"v_add3_u32 v{vX}, v{vX}, v{t2}, s{sT2}", vX, [vX, t2])
    V(f"v_xor_b32 v{t1}, v{vG}, v{vQ}", t1, [vG, vQ])
    V(f"v_lshlrev_b32 v{t1}, 4, v{t1}", t1, [t1])
    V(f"v_lshl_add_u32 v{vXR}, v{vQ}, 8, v{t1}", vXR, [vQ, t1])
    for u in range(1, 4):
        V(f"v_xor_b32 v{vXR+u}, {u << 6}, v{vXR}", vXR + u, [vXR])
    for u in range(2):
        V(f"v_add_u32 v{vXRh+u}, 61440, v{vXR+u}", vXRh + u, [vXR + u])
    V(f"v_lshlrev_b32 v{vLin0}, 4, v{vL}", vLin0, [vL])
    V(f"v_add_u32 v{vLin1}, {BREG}, v{vLin0}", vLin1, [vLin0])
    A.salu(f"s_mul_i32 s{sT1}, s{sG}, {BREG}")
    A.salu(f"s_mul_i32 s{sT2}, s{sJ}, 10240")
    A.salu(f"s_add_u32 s{sT2}, s{sT2}, s{sT1}")
    V(f"v_add_u32 v{vLinG}, s{sT1}, v{vLin0}", vLinG, [vLin0])
    V(f"v_add_u32 v{vPW}, s{sT2}, v{vLin0}", vPW, [vLin0])
    V(f"v_lshrrev_b32 v{t1}, 1, v{vG}", t1, [vG])
    V(f"v_lshlrev_b32 v{t1}, 8, v{t1}", t1, [t1])
    V(f"v_and_b32 v{t2}, 1, v{vG}", t2, [vG])
    V(f"v_lshl_add_u32 v{t1}, v{t2}, 3, v{t1}", t1, [t1, t2])
    V(f"v_lshl_add_u32 v{t1}, v{vQ}, 4, v{t1}", t1, [t1, vQ])
    V(f"v_add_u32 v{vQW}, s{sT2}, v{t1}", vQW, [t1])
    V(f"v_lshlrev_b32 v{t1}, 3, v{vQ}", t1, [vQ])
    V(f"v_add_u32 v{vSW}, s{sRING}, v{t1}", vSW, [t1])
    A.salu(f"s_mul_i32 s{sT1}, s{sG}, {4*RINGSZ}")
    A.salu(f"s_add_u32 s{sT1}, s{sT1}, {RING0}")
    V(f"v_add_u32 v{vSR}, s{sT1}, v{t1}", vSR, [t1])

    A.raw("s_waitcnt lgkmcnt(0)")
    for job in range(2):
        A.salu(f"s_and_b32 s{sT0}, s{sB}, 1")
        if job: A.salu(f"s_xor_b32 s{sT0}, s{sT0}, 1")
        def sel(dst, a, b):
            A.salu(f"s_cselect_b64 s[{dst}:{dst+1}], s[{b}:{b+1}], s[{a}:{a+1}]")
        def fin(srd, off_s, nrec):
            A.salu(f"s_add_u32 s{srd}, s{srd}, s{off_s}")
            A.salu(f"s_addc_u32 s{srd+1}, s{srd+1}, 0")
            A.salu(f"s_and_b32 s{srd+1}, s{srd+1}, 0xffff")
            if isinstance(nrec, int): A.salu(f"s_mov_b32 s{srd+2}, {nrec}")
            else: A.salu(f"s_mov_b32 s{srd+2}, {nrec}")
            A.salu(f"s_mov_b32 s{srd+3}, 0x20000")
        A.salu(f"s_cmp_eq_u32 s{sT0}, 1")
        sel(SRD(job, 0), 4, 14); sel(SRD(job, 1), 10, 20); sel(SRD(job, 2), 6, 16)
        sel(SRD(job, 3), 8, 18); sel(SRD(job, 4), 12, 22)
        if cfg.xmap:
            A.salu(f"s_lshl_b32 s{sT4}, s{sHG}, 1")
            A.salu(f"s_add_u32 s{sT4}, s{sT4}, s{sG}")
            A.salu(f"s_lshl_b32 s{sT5}, s{sT4}, 1")
            A.salu(f"s_add_u32 s{sT5}, s{sT5}, s3")
            A.salu(f"s_lshl_b32 s{sT1}, s{sB}, 3")
            A.salu(f"s_add_u32 s{sT1}, s{sT1}, s{sT4}")
            A.salu(f"s_lshl_b32 s{sT2}, s{sB}, 4")
            A.salu(f"s_add_u32 s{sT2}, s{sT2}, s{sT5}")
            A.salu(f"s_cmp_eq_u32 s{sT0}, 1")
            A.salu(f"s_cselect_b32 s{sT2}, s{sT2}, s{sT1}")
            A.salu(f"s_lshl_b32 s{sT2}, s{sT2}, 18")
            fin(SRD(job, 2), sT2, 262144)
            fin(SRD(job, 3), sT2, 262144)
            A.salu(f"s_mul_i32 s{sT2}, s{sB}, 71680")
            fin(SRD(job, 0), sT2, 71680)
            A.salu(f"s_lshl_b32 s{sT2}, s{sT5}, 9")
            A.salu(f"s_sub_u32 s{sT3}, {448*8192}, s{sT2}")
            fin(SRD(job, 1), sT2, f"s{sT3}")
            A.salu(f"s_lshl_b32 s{sT2}, s{sHG}, 2")
            A.salu(f"s_add_u32 s{sT2}, s{sT2}, s3")
            A.salu(f"s_mul_i32 s{sT2}, s{sT2}, {256*896}")
            fin(SRD(job, 4), sT2, 768 * 896)
            A.salu(f"s_lshl_b32 s{sT2}, s{sT0}, 5")
            A.salu(f"s_add_u32 s{sT2}, s{sT2}, s{sB}")
            A.salu(f"s_lshl_b32 s{sT2}, s{sT2}, 2")
            A.salu(f"s_add_u32 s{sT2}, s{sT2}, s{sHG}")
            A.salu(f"s_lshl_b32 s{sT2}, s{sT2}, 1")
            A.salu(f"s_add_u32 s{sT2}, s{sT2}, s3")
            A.salu(f"s_mul_i32 s{sT2}, s{sT2}, 71680")
            A.salu(f"s_mov_b64 s[{SRD(job,5)}:{SRD(job,5)+1}], s[24:25]")
            fin(SRD(job, 5), sT2, 71680)
            continue
        A.salu(f"s_lshl_b32 s{sT1}, s{sB}, 3")
        A.salu(f"s_add_u32 s{sT1}, s{sT1}, s{sHG}")
        A.salu(f"s_lshl_b32 s{sT2}, s{sT1}, 1")
        A.salu(f"s_add_u32 s{sT2}, s{sT2}, s{sG}")
        A.salu(f"s_cmp_eq_u32 s{sT0}, 1")
        A.salu(f"s_cselect_b32 s{sT2}, s{sT2}, s{sT1}")
        A.salu(f"s_lshl_b32 s{sT2}, s{sT2}, 18")
        fin(SRD(job, 2), sT2, 262144)
        fin(SRD(job, 3), sT2, 262144)
        A.salu(f"s_mul_i32 s{sT2}, s{sB}, 71680")
        fin(SRD(job, 0), sT2, 71680)
        A.salu(f"s_lshl_b32 s{sT2}, s{sHG}, 1")
        A.salu(f"s_add_u32 s{sT2}, s{sT2}, s{sG}")
        A.salu(f"s_lshl_b32 s{sT2}, s{sT2}, 9")
        A.salu(f"s_sub_u32 s{sT3}, {448*8192}, s{sT2}")
        fin(SRD(job, 1), sT2, f"s{sT3}")
        A.salu(f"s_mul_i32 s{sT2}, s{sHG}, {512*896}")
        fin(SRD(job, 4), sT2, 512 * 896)
        A.salu(f"s_lshl_b32 s{sT2}, s{sT0}, 8")
        A.salu(f"s_add_u32 s{sT2}, s{sT2}, s{sT1}")
        A.salu(f"s_mul_i32 s{sT2}, s{sT2}, 71680")
        A.salu(f"s_mov_b64 s[{SRD(job,5)}:{SRD(job,5)+1}], s[24:25]")
        fin(SRD(job, 5), sT2, 71680)

    seq = []
    base = {}
    for job in range(2):
        base[job, "WQ"] = len(seq)
        for s in range(14):
            for y in range(2): seq.append(("WQ", job, (32 * s + 4 * y) * 8192))
        base[job, "K"] = len(seq)
        for jj in range(4):
            for kt in range(8): seq.append(("K", job, (kt * 8192, jj)))
        base[job, "SCR"] = len(seq)
        seq.append(("SCR", job, 0))
        base[job, "V"] = len(seq)
        for hf in range(2):
            for w in range(4):
                for i in range(2):
                    key0 = 128 * w + 32 * (2 * hf + i)
                    for y in range(2): seq.append(("V", job, (key0 + 16 * y) * 512))
        base[job, "WO"] = len(seq)
        for s in range(16):
            for y in range(2): seq.append(("WO", job, (32 * s + 16 * y + (256 if (cfg.xmap and s >= 8) else 0)) * 896))
    st = {"queued": 0, "released": 0, "issued": set()}
    side = deque()

    def issue_slot_piece(n, pc):
        typ, job, off = seq[n]
        vo, srd, fl = {"WQ": (vWQ, SRD(job, 1), cfg.w_flags), "K": (vK, SRD(job, 2), cfg.kv_flags),
                       "V": (vV, SRD(job, 3), cfg.kv_flags), "WO": (vWO, SRD(job, 4), cfg.w_flags)}[typ]
        if pc == 0 or st.get("m0slot") != n:
            if typ == "K": A.salu(f"s_add_u32 s{sOFF}, s{sCOL+off[1]}, {off[0]}")
            else: A.salu(f"s_mov_b32 s{sOFF}, {off}")
            A.salu(f"s_add_u32 m0, s{sRING}, {(n % R) * 2048}", m0=True)
            st["m0slot"] = n
        A.dma(vo + pc, srd, sOFF, off=1024 * pc, flags=fl, tag=("slot", n))
        if pc == 1: st["issued"].add(n)

    def refill():
        while st["queued"] < len(seq) and st["queued"] - R < st["released"]:
            n = st["queued"]; st["queued"] += 1
            if seq[n][0] == "SCR":
                st["issued"].add(n); continue
            side.append(lambda n=n: issue_slot_piece(n, 0))
            side.append(lambda n=n: issue_slot_piece(n, 1))

    def release(n):
        assert n == st["released"], (n, st["released"])
        st["released"] += 1
        refill()

    def pump(k=1):
        for _ in range(k):
            if side: side.popleft()()

    def flush_side():
        while side: side.popleft()()

    def need_slot(n):
        while n not in st["issued"]:
            assert side, n
            side.popleft()()
        A.wait_vm_tag(("slot", n))

    def x_dma(job, pair, t):
        A.salu(f"s_mov_b32 s{sOFF}, {t * 14336 + pair * 512}")
        A.salu(f"s_add_u32 m0, s{sXM0}, {pair * 40960 + t * 4096}", m0=True)
        st["m0slot"] = None
        A.dma(vX, SRD(job, 0), sOFF, flags=cfg.x_flags, tag=("x", job, pair))

    def load_A_tr(n0, par, which):
        for (y, a) in which:
            n = n0 + y
            A.ds_read("ds_read_b64_tr_b16", A_tr(par, a) + 2 * y, 2, vTR + a, (n % R) * 2048, tag=("rd", n))

    def prefetch_A_tr(n0):
        need_slot(n0); need_slot(n0 + 1)
        load_A_tr(n0, 0, [(y, a) for y in range(2) for a in range(4)])

    def gemm_tr(nk, acc, n0, bread, breaks={}, post={}):
        for b in range(5): bread(0, b)
        A.wait_lgkm_tag(("rd", n0 + 1))
        release(n0); release(n0 + 1)
        for s in range(nk):
            par = s & 1
            nxt = s + 1 < nk
            nn = n0 + 2 * (s + 1)
            for p in range(20):
                b, a = divmod(p, 4)
                if nxt and p == 0:
                    need_slot(nn)
                if nxt and p == 2:
                    need_slot(nn + 1)
                A.mfma(acc + (a * 5 + b) * 4, A_tr(par, a), B_tr(b), czero=(s == 0))
                if nxt and p < 4:
                    y = p >> 1
                    load_A_tr(nn, par ^ 1, [(y, (p & 1) * 2), (y, (p & 1) * 2 + 1)])
                if nxt and a == 3 and (s + 1) not in breaks:
                    bread(s + 1, b)
                if nxt and p == cfg.rel_pos:
                    A.wait_lgkm_tag(("rd", nn + 1))
                    release(nn); release(nn + 1)
                if p >= 4: pump(1)
            if s in post: post[s]()
            if nxt and (s + 1) in breaks:
                breaks[s + 1]()
                for b in range(5): bread(s + 1, b)

    def cvt(dst, a, b):
        A.valu(f"v_cvt_pk_bf16_f32 v{dst}, v{a}, v{b}", [dst], [a, b])

    stamps = []
    def stamp(name):
        if not cfg.stamp: return
        A.raw("s_memtime s[26:27]")
        A.raw("s_waitcnt lgkmcnt(0)")
        A.lgkm = []
        A.raw(f"v_writelane_b32 v255, s26, {len(stamps)}")
        stamps.append(name)
    if cfg.stamp: A.valu("v_mov_b32 v255, 0", [255], [])
    stamp("start")
    for t in range(5): x_dma(0, 0, t)
    refill(); flush_side()
    if cfg.wpre:
        A.salu(f"s_lshl_b32 s{sT0}, s{sB}, 3")
        A.salu(f"s_add_u32 s{sT0}, s{sT0}, s{sW}")
        A.salu(f"s_lshr_b32 s{sT1}, s{sB}, 1")
        A.salu(f"s_lshl_b32 s{sT1}, s{sT1}, 2")
        A.salu(f"s_add_u32 s{sT1}, s{sT1}, s{sJ}")
        V(f"v_lshrrev_b32 v0, 4, v{vLin0}", 0, [vLin0])
        V(f"v_lshrrev_b32 v1, 2, v0", 1, [0])
        V(f"v_and_b32 v2, 3, v0", 2, [0])
        V(f"v_lshlrev_b32 v2, 7, v2", 2, [2])
        V(f"v_lshl_add_u32 v2, v1, 13, v2", 2, [1, 2])
        V(f"v_mov_b32 v3, 0x4000000", 3, [])
        V(f"v_cmp_gt_u32 vcc, 7, v1", [], [1])
        A.nop(2)
        V(f"v_cndmask_b32 v2, v3, v2, vcc", 2, [2, 3])
        A.salu(f"s_mul_i32 s{sT2}, s{sT1}, {7*8192}")
        A.bload(4, 1, 2, SRD(0, 1), sT2, tag="pre")
        A.salu(f"s_lshl_b32 s{sT1}, s{sT1}, 1")
        A.salu(f"s_add_u32 s{sT1}, s{sT1}, s{sG}")
        V(f"v_lshlrev_b32 v2, 7, v0", 2, [0])
        V(f"v_cmp_gt_u32 vcc, 28, v0", [], [0])
        A.nop(2)
        V(f"v_cndmask_b32 v2, v3, v2, vcc", 2, [2, 3])
        A.salu(f"s_mul_i32 s{sT2}, s{sT1}, {28*128}")
        A.bload(5, 1, 2, SRD(0, 4), sT2, tag="pre")
    for t in range(5): x_dma(0, 1, t)

    for job in range(2):
        A.comment(f"================ job {job}: Q-proj")
        n0 = base[job, "WQ"]
        prefetch_A_tr(n0)
        A.wait_vm_tag(("x", job, 0))
        stamp('preB1'); A.barrier(); stamp('B1')
        if job == 1:
            pre = deque(lambda t=t: x_dma(1, 1, t) for t in range(5))
            pre.extend(side); side.clear(); side.extend(pre)

        def bread_x(ks, b):
            cidx, u = divmod(ks, 4)
            if ks == 8 and b == 0:
                flush_side()
                A.wait_vm_tag(("x", job, 1))
                stamp('preB2'); A.barrier(); stamp('B2')
            if cidx < 3:
                A.ds_read("ds_read_b128", B_tr(b), 4, vXR + u, cidx * 20480 + b * 4096)
            else:
                A.ds_read("ds_read_b128", B_tr(b), 4, vXRh + u, b * 4096)
        gemm_tr(14, ACC, n0, bread_x)
        flush_side()
        nk0 = base[job, "K"]
        stamp('preB3'); A.barrier(); stamp('B3')
        for b in range(5):
            for a in range(4):
                r = ACC + (a * 5 + b) * 4
                cvt(r, r, r + 1); cvt(r + 1, r + 2, r + 3)
                A.ds_write("ds_write_b64", vQW, r, 2, ((a >> 1) * 5 + b) * 1024 + (a & 1) * 512)
        need_slot(nk0)
        for s in range(2):
            A.ds_read("ds_read_b128", A_s(0, s), 4, vKR + s, (nk0 % R) * 2048, tag=("rd", nk0))
        A.wait_lgkm_all()
        release(nk0)
        stamp('preB4'); A.barrier(); stamp('B4')
        def set_qr(jj):
            A.salu(f"s_mul_i32 s{sT0}, s{sCOL+jj}, 80")
            V(f"v_add_u32 v{vQR}, s{sT0}, v{vLinG}", vQR, [vLinG])
        set_qr(0)
        for s in range(2):
            for b in range(5):
                A.ds_read("ds_read_b128", B_s(s, b), 4, vQR, (s * 5 + b) * 1024)
        maxq = deque()
        def acc_s(kt, b): return ACC + (kt * 5 + b) * 4
        for u in range(32):
            jj, kt = divmod(u, 8)
            par = u & 1
            nxt = u + 1 < 32
            nn = nk0 + u + 1
            for p in range(10):
                s, b = divmod(p, 5)
                if nxt and p == 0: need_slot(nn)
                A.mfma(acc_s(kt, b), A_s(par, s), B_s(s, b), czero=(jj == 0 and s == 0))
                if nxt and p < 2:
                    A.ds_read("ds_read_b128", A_s(par ^ 1, p), 4, vKR + p, (nn % R) * 2048, tag=("rd", nn))
                if kt == 6 and jj < 3 and p == 9: set_qr(jj + 1)
                if kt == 7 and jj < 3:
                    A.ds_read("ds_read_b128", B_s(s, b), 4, vQR, (s * 5 + b) * 1024)
                if nxt and p == cfg.s_rel_pos:
                    A.wait_lgkm_tag(("rd", nn))
                    release(nn)
                if p >= 2: pump(1)
                if maxq and p >= 4:
                    maxq.popleft()();
                    if maxq: maxq.popleft()()
            if cfg.sync_s and (u + 1) % cfg.sync_s == 0 and nxt: A.barrier()
            if jj == 3:
                for b in range(5):
                    r = acc_s(kt, b); m = vM + b
                    if kt == 0:
                        maxq.append(lambda r=r, m=m: V(f"v_max3_f32 v{m}, v{r}, v{r+1}, v{r+2}", m, [r, r+1, r+2]))
                        maxq.append(lambda r=r, m=m: V(f"v_max_f32 v{m}, v{m}, v{r+3}", m, [m, r+3]))
                    else:
                        maxq.append(lambda r=r, m=m: V(f"v_max3_f32 v{m}, v{m}, v{r}, v{r+1}", m, [m, r, r+1]))
                        maxq.append(lambda r=r, m=m: V(f"v_max3_f32 v{m}, v{m}, v{r+2}, v{r+3}", m, [m, r+2, r+3]))
        flush_side()
        while maxq: maxq.popleft()()
        stamp("Sdone")
        ML = lambda b: 176 + 2 * b
        NMC = lambda b: 186 + 2 * b
        LS = lambda b: 196 + 2 * b
        TT = lambda b: 206 + b
        def xl_reduce(src, dst, op):
            for b in range(5): V(f"v_mov_b32 v{TT(b)}, v{src(b)}", TT(b), [src(b)])
            for b in range(5): A.valu(f"v_permlane32_swap_b32 v{src(b)}, v{TT(b)}", [src(b), TT(b)], [src(b), TT(b)], kind="perm")
            for b in range(5): V(f"{op} v{src(b)}, v{src(b)}, v{TT(b)}", src(b), [src(b), TT(b)])
            for b in range(5): V(f"v_mov_b32 v{TT(b)}, v{src(b)}", TT(b), [src(b)])
            for b in range(5): A.valu(f"v_permlane16_swap_b32 v{src(b)}, v{TT(b)}", [src(b), TT(b)], [src(b), TT(b)], kind="perm")
            for b in range(5): V(f"{op} v{dst(b)}, v{src(b)}, v{TT(b)}", dst(b), [src(b), TT(b)])
        xl_reduce(lambda b: vM + b, ML, "v_max_f32")
        for b in range(5): V(f"v_mul_f32 v{NMC(b)}, s{sNC}, v{ML(b)}", NMC(b), [ML(b)])
        for kt in range(8):
            for b in range(5):
                r = acc_s(kt, b)
                for h in range(2):
                    x = r + 2 * h
                    A.valu(f"v_pk_fma_f32 v[{x}:{x+1}], v[{x}:{x+1}], s[{sC}:{sC+1}], v[{NMC(b)}:{NMC(b)+1}] op_sel_hi:[1,0,0]",
                           [x, x + 1], [x, x + 1, NMC(b)])
            for b in range(5):
                r = acc_s(kt, b)
                for e in range(4):
                    A.valu(f"v_exp_f32 v{r+e}, v{r+e}", [r + e], [r + e], kind="trans")
            for b in range(5):
                r = acc_s(kt, b); l = LS(b)
                if kt == 0:
                    A.valu(f"v_pk_add_f32 v[{l}:{l+1}], v[{r}:{r+1}], v[{r+2}:{r+3}]", [l, l + 1], rng(r, 4))
                else:
                    A.valu(f"v_pk_add_f32 v[{l}:{l+1}], v[{l}:{l+1}], v[{r}:{r+1}]", [l, l + 1], [l, l + 1, r, r + 1])
            if kt > 0:
                for b in range(5):
                    r = acc_s(kt, b); l = LS(b)
                    A.valu(f"v_pk_add_f32 v[{l}:{l+1}], v[{l}:{l+1}], v[{r+2}:{r+3}]", [l, l + 1], [l, l + 1, r + 2, r + 3])
        for b in range(5): V(f"v_add_f32 v{LS(b)}, v{LS(b)}, v{LS(b)+1}", LS(b), [LS(b), LS(b) + 1])
        xl_reduce(LS, lambda b: ML(b) + 1, "v_add_f32")
        ns = base[job, "SCR"]
        assert ns - R < st["released"]
        A.salu("s_mov_b64 exec, 0xffff")
        for b in range(5):
            A.ds_write("ds_write_b64", vSW, ML(b), 2, (ns % R) * 2048 + b * 128)
        A.salu("s_mov_b64 exec, -1")
        A.wait_lgkm_all()
        stamp('preB5'); A.barrier(); stamp('B5')
        RB = lambda b: [160, 168, 176, 196, 204][b]
        for b in range(5):
            for jj in range(4):
                A.ds_read("ds_read_b64", RB(b) + 2 * jj, 2, vSR, jj * RINGSZ + (ns % R) * 2048 + b * 128)
        MX = lambda b: vM + b
        for b in range(5):
            r = RB(b)
            V(f"v_max3_f32 v{MX(b)}, v{r}, v{r+2}, v{r+4}", MX(b), [r, r + 2, r + 4])
            V(f"v_max_f32 v{MX(b)}, v{MX(b)}, v{r+6}", MX(b), [MX(b), r + 6])
            V(f"v_mul_f32 v{MX(b)}, s{sNC}, v{MX(b)}", MX(b), [MX(b)])
            for jj in range(4):
                V(f"v_fma_f32 v{r+2*jj}, v{r+2*jj}, s{sC}, v{MX(b)}", r + 2 * jj, [r + 2 * jj, MX(b)])
            V(f"v_sub_f32 v{NMC(b)}, v{MX(b)}, v{NMC(b)}", NMC(b), [MX(b), NMC(b)])
        for b in range(5):
            r = RB(b)
            for jj in range(4):
                A.valu(f"v_exp_f32 v{r+2*jj}, v{r+2*jj}", [r + 2 * jj], [r + 2 * jj], kind="trans")
            A.valu(f"v_exp_f32 v{NMC(b)}, v{NMC(b)}", [NMC(b)], [NMC(b)], kind="trans")
        for b in range(5):
            r = RB(b)
            V(f"v_mul_f32 v{MX(b)}, v{r}, v{r+1}", MX(b), [r, r + 1])
            for jj in range(1, 4):
                V(f"v_fmac_f32 v{MX(b)}, v{r+2*jj}, v{r+2*jj+1}", MX(b), [MX(b), r + 2 * jj, r + 2 * jj + 1])
        for b in range(5):
            A.valu(f"v_rcp_f32 v{MX(b)}, v{MX(b)}", [MX(b)], [MX(b)], kind="trans")
        for b in range(5):
            V(f"v_mul_f32 v{MX(b)}, v{MX(b)}, v{NMC(b)}", MX(b), [MX(b), NMC(b)])
        for b in range(5):
            V(f"v_mov_b32 v{NMC(b)}, v{MX(b)}", NMC(b), [MX(b)])
        def packP(i, b):
            r0 = acc_s(2 * i, b); r1 = acc_s(2 * i + 1, b); f = NMC(b)
            for x in (r0, r0 + 2, r1, r1 + 2):
                A.valu(f"v_pk_mul_f32 v[{x}:{x+1}], v[{x}:{x+1}], v[{f}:{f+1}] op_sel_hi:[1,0]", [x, x + 1], [x, x + 1, f])
            cvt(r0, r0, r0 + 1); cvt(r0 + 1, r0 + 2, r0 + 3); cvt(r0 + 2, r1, r1 + 1); cvt(r0 + 3, r1 + 2, r1 + 3)
        def writeP(i, b):
            A.ds_write("ds_write_b128", vPW, acc_s(2 * i, b), 4, ((i & 1) * 5 + b) * 1024)
        for i in range(2):
            for b in range(5):
                packP(i, b); writeP(i, b)
        for i in range(2, 4):
            for b in range(5):
                packP(i, b)
        nv0 = base[job, "V"]
        prefetch_A_tr(nv0)
        A.wait_lgkm_all()
        stamp('preB6'); A.barrier(); stamp('B6')
        release(ns)
        def bread_p(ks, b):
            A.ds_read("ds_read_b128", B_tr(b), 4, vLinG, ((ks & 7) * 5 + b) * 1024)
        def mid_pv():
            stamp('preB7'); A.barrier(); stamp('B7')
            for i in range(2, 4):
                for b in range(5): writeP(i, b)
            A.wait_lgkm_all()
            stamp('preB8'); A.barrier(); stamp('B8')
        gemm_tr(16, ACC, nv0, bread_p, breaks={8: mid_pv},
                post=({k: A.barrier for k in range(15) if (k + 1) % cfg.sync_pv == 0 and k != 7} if cfg.sync_pv else {}))
        flush_side()
        stamp('preB9'); A.barrier(); stamp('B9')
        for i in range(2):
            for b in range(5):
                r0 = ACC + ((2 * i) * 5 + b) * 4; r1 = ACC + ((2 * i + 1) * 5 + b) * 4
                cvt(r0, r0, r0 + 1); cvt(r0 + 1, r0 + 2, r0 + 3); cvt(r0 + 2, r1, r1 + 1); cvt(r0 + 3, r1 + 2, r1 + 3)
                A.ds_write("ds_write_b128", vPW, r0, 4, (i * 5 + b) * 1024)
        no0 = base[job, "WO"]
        prefetch_A_tr(no0)
        A.wait_lgkm_all()
        stamp('preB10'); A.barrier(); stamp('B10')
        OA = ACC + 80
        def bread_o(ks, b):
            A.ds_read("ds_read_b128", B_tr(b), 4, vLin0 if ks < 8 else vLin1, ((ks & 7) * 5 + b) * 1024)
        def mid_o():
            stamp('preB11'); A.barrier(); stamp('B11')
            for t in range(5): side.append(lambda t=t: x_dma(1, 0, t))
        gemm_tr(16, OA, no0, bread_o, post=({7: mid_o} if job == 0 else {}))
        flush_side()
        stamp("Odone")
        def store_po(i, b, job=job):
            r0 = OA + ((2 * i) * 5 + b) * 4; r1 = OA + ((2 * i + 1) * 5 + b) * 4
            cvt(r0, r0, r0 + 1); cvt(r0 + 1, r0 + 2, r0 + 3); cvt(r0 + 2, r1, r1 + 1); cvt(r0 + 3, r1 + 2, r1 + 3)
            A.salu(f"s_add_u32 s{sT0}, s{sPOW}, {(i * 5 + b) * 1024}")
            A.bstore(r0, 4, vLin0, SRD(job, 5), sT0, flags=cfg.po_flags, tag=("po", job))
        for i in range(2):
            for b in range(5):
                if job == 0: side.append(lambda i=i, b=b: store_po(i, b))
                else: store_po(i, b)
    if cfg.stamp:
        A.wait_vm_all()
        stamp("end")
        A.salu("s_add_u32 s96, s24, 0x8000000")
        A.salu("s_addc_u32 s97, s25, 0")
        A.salu("s_and_b32 s97, s97, 0xffff")
        A.salu("s_mov_b32 s98, 0x100000")
        A.salu("s_mov_b32 s99, 0x20000")
        A.salu(f"s_lshl_b32 s{sT0}, s2, 3")
        A.salu(f"s_add_u32 s{sT0}, s{sT0}, s{sW}")
        A.salu(f"s_lshl_b32 s{sT0}, s{sT0}, 8")
        A.valu(f"v_lshrrev_b32 v0, 2, v{vLin0}", [0], [vLin0])
        A.bstore(255, 1, 0, 96, sT0)
        open(cfg.path + ".stamps", "w").write(" ".join(stamps))
    A.label("L_attn_done")
    A.raw("s_endpgm")
    return kn, A


def gen_reduce(cfg):
    A = Asm()
    kn = "reduce_kernel"
    A.label(kn)
    if getattr(cfg, "span", 0): A.raw("s_memrealtime s[28:29]")
    rw = getattr(cfg, "rw", 4)
    A.salu(f"s_cmp_ge_u32 s2, {2240 // rw}")
    A.salu("s_cbranch_scc1 L_red_done")
    A.salu("s_load_dwordx2 s[4:5], s[0:1], 80")
    A.salu("s_load_dwordx2 s[6:7], s[0:1], 96")
    def V(text, w, r): A.valu(text, w if isinstance(w, list) else [w], r)
    V("v_lshrrev_b32 v1, 6, v0", 1, [0])
    V("v_and_b32 v2, 63, v0", 2, [0])
    A.rfl(8, 1)
    A.nop(2)
    A.salu(f"s_mul_i32 s9, s2, {rw}")
    A.salu("s_add_u32 s9, s9, s8")
    A.salu(f"s_mul_hi_u32 s10, s9, {(1 << 32) // 35 + 1}")
    A.salu("s_mul_i32 s11, s10, 35")
    A.salu("s_sub_u32 s11, s9, s11")
    A.salu("s_mul_i32 s12, s11, 52")
    A.salu("s_lshr_b32 s12, s12, 8")
    A.salu("s_mul_i32 s13, s12, 5")
    A.salu("s_sub_u32 s13, s11, s13")
    A.raw("s_waitcnt lgkmcnt(0)")
    A.salu(f"s_mul_i32 s14, s10, {8*71680}")
    A.salu("s_add_u32 s16, s6, s14")
    A.salu("s_addc_u32 s17, s7, 0")
    A.salu("s_and_b32 s17, s17, 0xffff")
    A.salu(f"s_mov_b32 s18, {8*71680}")
    A.salu("s_mov_b32 s19, 0x20000")
    A.salu("s_mov_b32 s20, s4")
    A.salu("s_and_b32 s21, s5, 0xffff")
    A.salu(f"s_mov_b32 s22, {32*80*896*2}")
    A.salu("s_mov_b32 s23, 0x20000")
    A.salu("s_mul_i32 s14, s12, 10")
    A.salu("s_add_u32 s14, s14, s13")
    A.salu("s_lshl_b32 s14, s14, 10")
    V("v_lshl_add_u32 v3, v2, 4, s14", 3, [2])
    for g in range(8):
        for i in range(2):
            A.salu(f"s_mov_b32 s15, {g * 71680 + i * 5120}")
            A.bload(16 + (g * 2 + i) * 4, 4, 3, 16, 15, flags=cfg.rd_flags)
    A.salu("s_and_b32 s24, s10, 31")
    A.salu("s_lshr_b32 s25, s10, 5")
    A.salu("s_mul_i32 s24, s24, 80")
    A.salu("s_lshl_b32 s26, s13, 4")
    A.salu("s_add_u32 s24, s24, s26")
    A.salu("s_mul_i32 s24, s24, 1792")
    A.salu("s_mul_i32 s25, s25, 896")
    A.salu("s_add_u32 s24, s24, s25")
    A.salu("s_lshl_b32 s26, s12, 7")
    A.salu("s_add_u32 s24, s24, s26")
    V("v_and_b32 v4, 15, v2", 4, [2])
    V("v_mul_u32_u24 v4, 1792, v4", 4, [4])
    V("v_bfe_u32 v5, v2, 4, 1", 5, [2])
    V("v_lshl_add_u32 v4, v5, 5, v4", 4, [4, 5])
    V("v_lshrrev_b32 v5, 5, v2", 5, [2])
    V("v_lshl_add_u32 v4, v5, 4, v4", 4, [4, 5])
    for g in range(8):
        for i in range(2):
            src = 16 + (g * 2 + i) * 4
            for d in range(4):
                lo = 80 + i * 8 + 2 * d; hi = lo + 1
                if g == 0:
                    V(f"v_lshlrev_b32 v{lo}, 16, v{src+d}", lo, [src + d])
                    V(f"v_and_b32 v{hi}, 0xffff0000, v{src+d}", hi, [src + d])
                else:
                    V(f"v_lshlrev_b32 v6, 16, v{src+d}", 6, [src + d])
                    V(f"v_and_b32 v7, 0xffff0000, v{src+d}", 7, [src + d])
                    A.valu(f"v_pk_add_f32 v[{lo}:{lo+1}], v[{lo}:{lo+1}], v[6:7]", [lo, lo + 1], [lo, lo + 1, 6, 7])
    for i in range(2):
        for d in range(4):
            lo = 80 + i * 8 + 2 * d
            V(f"v_cvt_pk_bf16_f32 v{8+i*4+d}, v{lo}, v{lo+1}", 8 + i * 4 + d, [lo, lo + 1])
    for i in range(2):
        r = 8 + i * 4
        A.valu(f"v_permlane16_swap_b32 v{r}, v{r+2}", [r, r + 2], [r, r + 2], kind="perm")
        A.valu(f"v_permlane16_swap_b32 v{r+1}, v{r+3}", [r + 1, r + 3], [r + 1, r + 3], kind="perm")
    for i in range(2):
        A.bstore(8 + i * 4, 4, 4, 20, 24, off=64 * i)
    if getattr(cfg, "span", 0):
        A.raw("s_waitcnt vmcnt(0)")
        A.raw("s_memrealtime s[30:31]")
        A.raw("s_waitcnt lgkmcnt(0)")
        A.raw("v_mov_b32 v8, s28"); A.raw("v_mov_b32 v9, s30"); A.raw("v_mov_b32 v10, 0")
        A.salu("s_add_u32 s16, s6, 0x8100000"); A.salu("s_addc_u32 s17, s7, 0"); A.salu("s_and_b32 s17, s17, 0xffff")
        A.salu("s_mov_b32 s18, 0x100000"); A.salu("s_lshl_b32 s15, s9, 3")
        A.raw("buffer_store_dwordx2 v[8:9], v10, s[16:19], s15 offen")
    A.label("L_red_done")
    A.raw("s_endpgm")
    return kn, A


def build(cfg, path):
    cfg.path = path
    hdr = open("cdna_kernels/" + NAME + ".s.ref").read().split("\n")
    head = [l for l in hdr if l.startswith(";") and "@launch" not in l and "Override launch" not in l and "grid=ceil" not in l]
    k1, A1 = gen_main(cfg)
    k2, A2 = gen_reduce(cfg)
    out = "\n".join(head) + "\n"
    out += f"; @launch kernel={k1} grid=(256,1,1) block=(512,1,1) lds=163840\n"
    out += f"; @launch kernel={k2} grid=(560,1,1) block=(256,1,1) lds=0\n"
    out += '.amdgcn_target "amdgcn-amd-amdhsa--gfx950"\n.text\n'
    for k, A in ((k1, A1), (k2, A2)):
        out += f".globl {k}\n.p2align 8\n.type {k},@function\n" + A.text()
    out += '.section .rodata,"a"\n.p2align 6\n'
    out += kernel_desc(k1, 256, 102, 256)
    out += ".p2align 6\n" + kernel_desc(k2, 96, 32, 96)
    open(path, "w").write(out)
    print("mfma", A1.nmfma, "lines", len(A1.lines))

if __name__ == "__main__":
    cfg = Cfg()
    for a in sys.argv[2:]:
        k, v = a.split("=")
        setattr(cfg, k, type(getattr(cfg, k))(v))
    build(cfg, sys.argv[1] if len(sys.argv) > 1 else "cdna_kernels/" + NAME + ".s")
```

```python
import sys, struct
from collections import deque
from asmlib import *

NAME = "concat_heads__gqa_block_cached__mha_block_cached__near_ridge"

class Cfg:
    R = 5
    kv_flags = "nt"
    w_flags = ""
    x_flags = ""
    po_flags = "sc1"
    pof_flags = "sc1"
    rd_flags = ""
    rel_pos = 8
    s_rel_pos = 5
    stamp = 0
    order = 2
    pre = 0
    krot = 1
    kpA = 0
    kpB = 0
    kp_per = 2
    kp_start = 0
    relx = 5
    ypos = 10
    npump = 2
    prio = 0
    stpos = 'b1'
    tlb = 0
    only = 0
    rt = 0
    fuse = 0
    rw = 4
    spin = 3000
    slp = 0
    shflags = 'sc1'
    pollflags = 'sc0 sc1'
    listfmt = 1
    span = 0
    fair = 1
    fairs = 0
    kst = ''
    xpos = '0,12,24'
    st0 = 1
    pro = 1
    cond = 1
    kpat = '2,5,8,11'
    kpn = 4
    kpbar = 1
    hack = ''
    dbgstart = 0
    tlbk = 0
    xsplit = '4,4,2'
    late = 1
    sm_per = 2

def f32bits(x):
    return struct.unpack("<I", struct.pack("<f", x))[0]

BREG = 40960
RING0 = 81920
RINGSZ = 10240

ACC = 0
FR = 160
def A_tr(par, a): return FR + par * 16 + a * 4
def B_tr(b): return FR + 32 + 4 * b
def B_s(s, b): return FR + (s * 5 + b) * 4
def A_s(par, s): return FR + 40 + par * 8 + s * 4
_v = 216
def _alloc(n=1):
    global _v
    r = _v; _v += n
    assert _v <= 256
    return r
vKR = _alloc(2); vK = _alloc(2); vV = _alloc(2); vX = _alloc(2)
vLinG = _alloc(); vQR = _alloc(); vSW = _alloc(); vSR = _alloc(); vPW = _alloc(); vRW = _alloc(); vLin0 = _alloc()
vQW = _alloc(); vOW = _alloc()
vTR = _alloc(4); vXR = _alloc(4); vXRh = _alloc(2); vWQ = _alloc(2); vWO = _alloc(2); vLin1 = _alloc()
vM = _alloc(5); vT0 = _alloc(); vT1 = _alloc()
BORROW = [vTR + 1, vTR + 2, vTR + 3, vXR + 1, vXR + 2, vXR + 3, vXRh, vXRh + 1, vWQ + 1, vWO + 1, vLin1]
assert _v <= 255
vSTAMP = 255

sX = 28; sWQ = 32; sNX = 36; sNWQ = 40; sPO = 44
def sKV(blk, k): return 48 + blk * 12 + k * 4
def sPOB(blk): return 72 + blk * 2
sRING = 76; sOFF = 77; sC = 78
sNC = 80; sXM0 = 81; sPOW = 82; sW = 83; sJ = 84; sG = 85; sB = 86; sHG = 87
sT0 = 88; sT1 = 89; sT2 = 90; sT3 = 91; sPH = 92; sGR = 93
sCOL = 94
sWQK = 98; sWOK = 99; sSTI = 100; sPXO = 101


class Gen:
    def __init__(self, cfg):
        self.cfg = cfg
        self.A = Asm()
        self.stamps = []

    def V(self, text, w, r):
        self.A.valu(text, w if isinstance(w, list) else [w], r)

    def stamp(self, name):
        if not self.cfg.stamp: return
        if self.cfg.span and name != "end": return
        A = self.A
        A.raw("s_memrealtime s[26:27]" if self.cfg.rt else "s_memtime s[26:27]")
        A.raw("s_waitcnt lgkmcnt(0)")
        A.lgkm = []
        A.raw(f"s_mov_b32 m0, s{sSTI}")
        A.raw(f"s_add_u32 s{sSTI}, s{sSTI}, 1")
        A.raw(f"s_min_u32 s{sSTI}, s{sSTI}, 62")
        A.raw(f"v_writelane_b32 v{vSTAMP}, s26, m0")
        self.m0slot = None
        self.stamps.append(name)

    def bar(self, name=None):
        self.A.barrier()
        if name: self.stamp(name)

    def setup(self):
        A = self.A; V = self.V; cfg = self.cfg
        if cfg.rt: A.raw("s_memrealtime s[70:71]")
        A.salu("s_cmp_ge_u32 s2, 256")
        A.salu("s_cbranch_scc1 L_attn_done")
        if cfg.only:
            A.salu(f"s_and_b32 s3, s2, {cfg.only}")
            A.salu("s_cbranch_scc1 L_attn_done")
        A.salu("s_load_dwordx16 s[4:19], s[0:1], 0")
        A.salu("s_load_dwordx4 s[20:23], s[0:1], 64")
        A.salu("s_load_dwordx2 s[24:25], s[0:1], 96")
        vL = 4; vG = 5; vQ = 6; vTmp = 7
        t1 = 1; t2 = 2; t3 = 3
        V(f"v_lshrrev_b32 v{vTmp}, 6, v0", vTmp, [0])
        V(f"v_and_b32 v{vL}, 63, v0", vL, [0])
        A.rfl(sW, vTmp)
        V(f"v_lshrrev_b32 v{vG}, 4, v{vL}", vG, [vL])
        V(f"v_and_b32 v{vQ}, 15, v{vL}", vQ, [vL])
        A.nop(2)
        A.salu(f"s_and_b32 s{sJ}, s{sW}, 3")
        A.salu(f"s_lshr_b32 s{sG}, s{sW}, 2")
        A.salu(f"s_lshr_b32 s{sB}, s2, 3")
        A.salu(f"s_and_b32 s{sHG}, s2, 7")
        A.salu(f"s_mul_i32 s{sRING}, s{sW}, {RINGSZ}")
        A.salu(f"s_add_u32 s{sRING}, s{sRING}, {RING0}")
        A.salu(f"s_mul_i32 s{sXM0}, s{sG}, 20480")
        A.salu(f"s_lshl_b32 s{sT0}, s{sJ}, 10")
        A.salu(f"s_add_u32 s{sXM0}, s{sXM0}, s{sT0}")
        V(f"v_and_b32 v{t1}, 7, v{vL}", t1, [vL])
        V(f"v_lshlrev_b32 v{t3}, 1, v{vG}", t3, [vG])
        V(f"v_xor_b32 v{t3}, v{t3}, v{t1}", t3, [t3, t1])
        V(f"v_lshlrev_b32 v{t3}, 4, v{t3}", t3, [t3])
        V(f"v_lshrrev_b32 v{t2}, 3, v{vL}", t2, [vL])
        A.salu(f"s_lshl_b32 s{sT0}, s{sJ}, 7")
        V(f"v_lshrrev_b32 v{vTmp}, 5, v{vL}", vTmp, [vL])
        V(f"v_lshlrev_b32 v{vTmp}, 3, v{vTmp}", vTmp, [vTmp])
        V(f"v_and_b32 v{vWQ}, 3, v{t2}", vWQ, [t2])
        V(f"v_add_u32 v{vTmp}, v{vTmp}, v{vWQ}", vTmp, [vTmp, vWQ])
        V(f"v_lshl_add_u32 v{vWQ}, v{vTmp}, 13, v{t3}", vWQ, [vTmp, t3])
        V(f"v_add_u32 v{vWQ}, s{sT0}, v{vWQ}", vWQ, [vWQ])
        V(f"v_add_u32 v{vWQ+1}, {16*8192-1024}, v{vWQ}", vWQ + 1, [vWQ])
        if cfg.krot:
            A.salu(f"s_lshr_b32 s{sT3}, s{sB}, 1")
            A.salu(f"s_min_u32 s{sT3}, s{sT3}, 13")
        else:
            A.salu(f"s_mov_b32 s{sT3}, 0")
        A.salu(f"s_lshl_b32 s{sWQK}, s{sT3}, 18")
        A.salu(f"s_sub_u32 s{sWQK}, s{sWQK}, 262144")
        A.salu(f"s_cselect_b32 s{sWQK}, {13*262144}, s{sWQK}")
        A.salu(f"s_lshl_b32 s{sT1}, s{sJ}, 2")
        A.salu(f"s_lshl_b32 s{sT2}, s{sG}, 8")
        A.salu(f"s_lshl_b32 s{sT3}, s{sT3}, 6")
        A.salu(f"s_add_u32 s{sT2}, s{sT2}, s{sT3}")
        V(f"v_add_u32 v8, s{sT1}, v{vG}", 8, [vG])
        V(f"v_xor_b32 v9, v8, v{vQ}", 9, [8, vQ])
        V(f"v_lshl_add_u32 v9, v9, 4, s{sT2}", 9, [9])
        V(f"v_mul_u32_u24 v8, 896, v8", 8, [8])
        for pair in range(2):
            if pair: V(f"v_add_u32 v9, 512, v9", 9, [9])
            V(f"v_subrev_u32 v10, 896, v9", 10, [9])
            V(f"v_min_u32 v10, v10, v9", 10, [10, 9])
            V(f"v_add_u32 v{vX+pair}, v8, v10", vX + pair, [8, 10])
        V(f"v_subrev_u32 v9, s{sT3}, v9", 9, [9])
        V(f"v_mov_b32 v10, 0x4000000", 10, [])
        V(f"v_cmp_gt_u32 vcc, 896, v9", [], [9])
        A.nop(2)
        V(f"v_cndmask_b32 v{vX+1}, v10, v{vX+1}, vcc", vX + 1, [10, vX + 1])
        A.raw("s_waitcnt lgkmcnt(0)")
        def fin(srd, off_s, nrec):
            A.salu(f"s_add_u32 s{srd}, s{srd}, s{off_s}")
            A.salu(f"s_addc_u32 s{srd+1}, s{srd+1}, 0")
            A.salu(f"s_and_b32 s{srd+1}, s{srd+1}, 0xffff")
            A.salu(f"s_mov_b32 s{srd+2}, {nrec}")
            A.salu(f"s_mov_b32 s{srd+3}, 0x20000")
        if cfg.order == 2: A.salu(f"s_and_b32 s3, s{sB}, 1")
        elif cfg.order == 3: A.salu(f"s_and_b32 s3, s{sHG}, 1")
        elif cfg.order == 4:
            A.salu(f"s_and_b32 s3, s{sB}, 7"); A.salu("s_cmp_lt_u32 s3, 3"); A.salu("s_cselect_b32 s3, 1, 0")
        elif cfg.order == 5:
            A.salu(f"s_and_b32 s3, s{sB}, 7"); A.salu("s_cmp_lt_u32 s3, 5"); A.salu("s_cselect_b32 s3, 1, 0")
        else: A.salu(f"s_mov_b32 s3, {cfg.order}")
        A.salu("s_cmp_eq_u32 s3, 1")
        A.salu(f"s_cselect_b64 s[{sX}:{sX+1}], s[14:15], s[4:5]")
        A.salu(f"s_cselect_b64 s[{sWQ}:{sWQ+1}], s[20:21], s[10:11]")
        A.salu(f"s_cselect_b64 s[{sNX}:{sNX+1}], s[4:5], s[14:15]")
        A.salu(f"s_cselect_b64 s[{sNWQ}:{sNWQ+1}], s[10:11], s[20:21]")
        A.salu(f"s_mul_i32 s{sT2}, s{sB}, 71680")
        fin(sX, sT2, 71680)
        A.salu(f"s_lshl_b32 s{sT1}, s{sHG}, 1")
        A.salu(f"s_add_u32 s{sT1}, s{sT1}, s{sG}")
        A.salu(f"s_lshl_b32 s{sT1}, s{sT1}, 9")
        A.salu(f"s_sub_u32 s{sT3}, {448*8192}, s{sT1}")
        fin(sWQ, sT1, f"s{sT3}")
        if cfg.stamp:
            V(f"v_mov_b32 v{vSTAMP}, 0", vSTAMP, [])
            A.salu(f"s_mov_b32 s{sSTI}, 0")
        if cfg.rt: A.raw(f"v_writelane_b32 v{vSTAMP}, s70, 63")
        self.stamp("start")
        self.m0slot = None
        for n in range(2):
            for pc in range(2): self.slot_dma("WQ", n & 1, ("WQ", n), n, pc, 0)
        if cfg.pro & 1: A.barrier()
        for t in range(5): self.x_dma(0, t)
        if cfg.pro & 2: A.barrier()
        for t in range(5):
            if cfg.cond: self.x_dma(1, t)
            else: self.x_load(1, t)
        fin(sNX, sT2, 71680)
        fin(sNWQ, sT1, f"s{sT3}")
        A.salu(f"s_mul_i32 s{sPOW}, s{sW}, 10240")
        c = 1.4426950408889634 / 16.0
        A.salu(f"s_mov_b32 s{sC}, {f32bits(c):#x}")
        A.salu(f"s_mov_b32 s{sC+1}, {f32bits(c):#x}")
        A.salu(f"s_mov_b32 s{sNC}, {f32bits(-c):#x}")
        A.salu(f"s_mov_b32 s{sPH}, 0")
        A.salu(f"s_mul_i32 s{sGR}, s{sG}, {4*RINGSZ}")
        for jj in range(4):
            A.salu(f"s_xor_b32 s{sCOL+jj}, s{sJ}, {jj}")
            A.salu(f"s_lshl_b32 s{sCOL+jj}, s{sCOL+jj}, 7")
        V(f"v_lshl_add_u32 v{vV}, v{t2}, 9, v{t3}", vV, [t2, t3])
        V(f"v_add_u32 v{vV}, s{sT0}, v{vV}", vV, [vV])
        V(f"v_add_u32 v{vV+1}, {4096-1024}, v{vV}", vV + 1, [vV])
        A.salu(f"s_lshl_b32 s{sT1}, s{sW}, 7")
        A.salu(f"s_cmp_eq_u32 s{sW}, 7")
        A.salu(f"s_cselect_b32 s{sT1}, 0x4000000, s{sT1}")
        V(f"v_mul_u32_u24 v{vWO}, 896, v{t2}", vWO, [t2])
        V(f"v_add3_u32 v{vWO}, v{vWO}, v{t3}, s{sT1}", vWO, [vWO, t3])
        V(f"v_add_u32 v{vWO+1}, {8*896-1024}, v{vWO}", vWO + 1, [vWO])
        V(f"v_xor_b32 v{t1}, v{t1}, v{vG}", t1, [t1, vG])
        V(f"v_lshlrev_b32 v{t1}, 4, v{t1}", t1, [t1])
        V(f"v_lshl_add_u32 v{vK}, v{t2}, 9, v{t1}", vK, [t2, t1])
        A.salu(f"s_lshl_b32 s{sT1}, s{sJ}, 16")
        V(f"v_add_u32 v{vK}, s{sT1}, v{vK}", vK, [vK])
        V(f"v_xor_b32 v{vK+1}, 64, v{vK}", vK + 1, [vK])
        V(f"v_add_u32 v{vK+1}, {4096-1024}, v{vK+1}", vK + 1, [vK + 1])
        V(f"v_lshrrev_b32 v{t1}, 2, v{vL}", t1, [vL])
        V(f"v_lshlrev_b32 v{t1}, 7, v{t1}", t1, [t1])
        V(f"v_bfe_u32 v{t2}, v{vL}, 3, 2", t2, [vL])
        V(f"v_lshl_add_u32 v{t1}, v{t2}, 5, v{t1}", t1, [t1, t2])
        V(f"v_and_b32 v{t2}, 3, v{vL}", t2, [vL])
        V(f"v_lshl_add_u32 v{t1}, v{t2}, 3, v{t1}", t1, [t1, t2])
        V(f"v_add_u32 v{vTR}, s{sRING}, v{t1}", vTR, [t1])
        for a in range(1, 4):
            V(f"v_xor_b32 v{vTR+a}, {a << 5}, v{vTR}", vTR + a, [vTR])
        V(f"v_lshrrev_b32 v{t1}, 1, v{vQ}", t1, [vQ])
        V(f"v_xor_b32 v{t1}, v{t1}, v{vG}", t1, [t1, vG])
        V(f"v_lshlrev_b32 v{t1}, 4, v{t1}", t1, [t1])
        V(f"v_lshl_add_u32 v{t1}, v{vQ}, 7, v{t1}", t1, [t1, vQ])
        V(f"v_add_u32 v{vKR}, s{sRING}, v{t1}", vKR, [t1])
        V(f"v_xor_b32 v{vKR+1}, 64, v{vKR}", vKR + 1, [vKR])
        V(f"v_xor_b32 v{t1}, v{vG}, v{vQ}", t1, [vG, vQ])
        V(f"v_lshlrev_b32 v{t1}, 4, v{t1}", t1, [t1])
        V(f"v_lshl_add_u32 v{vXR}, v{vQ}, 8, v{t1}", vXR, [vQ, t1])
        for u in range(1, 4):
            V(f"v_xor_b32 v{vXR+u}, {u << 6}, v{vXR}", vXR + u, [vXR])
        for u in range(2):
            V(f"v_add_u32 v{vXRh+u}, 61440, v{vXR+u}", vXRh + u, [vXR + u])
        V(f"v_lshlrev_b32 v{vLin0}, 4, v{vL}", vLin0, [vL])
        V(f"v_add_u32 v{vLin1}, {BREG}, v{vLin0}", vLin1, [vLin0])
        A.salu(f"s_mul_i32 s{sT1}, s{sG}, {BREG}")
        A.salu(f"s_mul_i32 s{sT2}, s{sJ}, 10240")
        A.salu(f"s_add_u32 s{sT2}, s{sT2}, s{sT1}")
        V(f"v_add_u32 v{vLinG}, s{sT1}, v{vLin0}", vLinG, [vLin0])
        A.salu(f"s_mul_i32 s{sT3}, s{sJ}, 5120")
        V(f"v_add_u32 v{vPW}, s{sT3}, v{vLinG}", vPW, [vLinG])
        V(f"v_lshrrev_b32 v{t1}, 1, v{vG}", t1, [vG])
        V(f"v_lshlrev_b32 v{t1}, 8, v{t1}", t1, [t1])
        V(f"v_and_b32 v{t2}, 1, v{vG}", t2, [vG])
        V(f"v_lshl_add_u32 v{t1}, v{t2}, 9, v{t1}", t1, [t1, t2])
        V(f"v_lshl_add_u32 v{t1}, v{vQ}, 4, v{t1}", t1, [t1, vQ])
        V(f"v_add_u32 v{vQW}, s{sT2}, v{t1}", vQW, [t1])
        V(f"v_lshlrev_b32 v{t1}, 3, v{vQ}", t1, [vQ])
        V(f"v_add_u32 v{vSW}, s{sRING}, v{t1}", vSW, [t1])
        A.salu(f"s_add_u32 s{sT1}, s{sGR}, {RING0}")
        V(f"v_add_u32 v{vSR}, s{sT1}, v{t1}", vSR, [t1])
        V(f"v_add_u32 v{vRW}, s{sXM0}, v{vLin0}", vRW, [vLin0])
        if cfg.krot:
            A.salu(f"s_lshr_b32 s{sT3}, s{sB}, 1")
            A.salu(f"s_and_b32 s{sT3}, s{sT3}, 14")
        else:
            A.salu(f"s_mov_b32 s{sT3}, 0")
        A.salu(f"s_lshl_b32 s{sT1}, s{sW}, 1")
        A.salu(f"s_sub_u32 s{sT1}, s{sT1}, s{sT3}")
        A.salu(f"s_and_b32 s{sT1}, s{sT1}, 15")
        A.salu(f"s_mul_i32 s{sT1}, s{sT1}, 5120")
        V(f"v_add_u32 v{vOW}, s{sT1}, v{vLin0}", vOW, [vLin0])
        A.salu(f"s_add_u32 s{sT3}, s{sT3}, 15")
        A.salu(f"s_and_b32 s{sT3}, s{sT3}, 15")
        A.salu(f"s_mul_i32 s{sWOK}, s{sT3}, {32*896}")
        A.salu(f"s_lshl_b32 s{sT1}, s{sB}, 3")
        A.salu(f"s_add_u32 s{sT1}, s{sT1}, s{sHG}")
        A.salu(f"s_lshl_b32 s{sT2}, s{sT1}, 18")
        A.salu(f"s_lshl_b32 s{sT3}, s{sG}, 13")
        A.salu(f"s_add_u32 s{sT2}, s{sT2}, s{sT3}")
        A.salu(f"s_sub_u32 s{sT3}, 262144, s{sT3}")
        A.salu(f"s_mov_b64 s[{sKV(0,0)}:{sKV(0,0)+1}], s[6:7]")
        A.salu(f"s_mov_b64 s[{sKV(0,1)}:{sKV(0,1)+1}], s[8:9]")
        fin(sKV(0, 0), sT2, f"s{sT3}"); fin(sKV(0, 1), sT2, f"s{sT3}")
        A.salu(f"s_lshl_b32 s{sT2}, s{sT1}, 1")
        A.salu(f"s_add_u32 s{sT2}, s{sT2}, s{sG}")
        A.salu(f"s_lshl_b32 s{sT2}, s{sT2}, 18")
        A.salu(f"s_mov_b64 s[{sKV(1,0)}:{sKV(1,0)+1}], s[16:17]")
        A.salu(f"s_mov_b64 s[{sKV(1,1)}:{sKV(1,1)+1}], s[18:19]")
        fin(sKV(1, 0), sT2, 262144); fin(sKV(1, 1), sT2, 262144)
        A.salu(f"s_mul_i32 s{sT2}, s{sHG}, {512*896}")
        A.salu(f"s_mov_b64 s[{sKV(0,2)}:{sKV(0,2)+1}], s[12:13]")
        A.salu(f"s_mov_b64 s[{sKV(1,2)}:{sKV(1,2)+1}], s[22:23]")
        fin(sKV(0, 2), sT2, 512 * 896); fin(sKV(1, 2), sT2, 512 * 896)
        for blk in range(2):
            A.salu(f"s_add_u32 s{sT2}, s{sT1}, {blk*256}")
            A.salu(f"s_mul_i32 s{sT2}, s{sT2}, 71680")
            A.salu(f"s_add_u32 s{sPOB(blk)}, s24, s{sT2}")
            A.salu(f"s_addc_u32 s{sPOB(blk)+1}, s25, 0")
            A.salu(f"s_and_b32 s{sPOB(blk)+1}, s{sPOB(blk)+1}, 0xffff")
        A.salu(f"s_mov_b64 s[{sPO}:{sPO+1}], s[{sPOB(0)}:{sPOB(0)+1}]")
        A.salu(f"s_mov_b32 s{sPO+2}, 0")
        A.salu(f"s_mov_b32 s{sPO+3}, 0x20000")
        if "now" in cfg.hack:
            for r in (sWQ, sNWQ, sKV(0, 2), sKV(1, 2)): A.salu(f"s_mov_b32 s{r+2}, 0")
        if "nokv" in cfg.hack:
            for r in (sKV(0, 0), sKV(0, 1), sKV(1, 0), sKV(1, 1)): A.salu(f"s_mov_b32 s{r+2}, 0")
        if "nox" in cfg.hack:
            A.salu(f"s_mov_b32 s{sNX+2}, 0")
        if cfg.prio:
            A.salu(f"s_cmp_eq_u32 s{sG}, 0")
            A.salu("s_cbranch_scc1 L_noprio")
            A.salu(f"s_setprio {cfg.prio}")
            A.label("L_noprio")
        for n in range(2, 5):
            for pc in range(2): self.slot_dma("WQ", n & 1, ("WQ", n), n, pc, 0)
        A.wait_vm_tag(("WQ", 1))
        for y in range(2):
            for a in range(4):
                A.ds_read("ds_read_b64_tr_b16", A_tr(0, a) + 2 * y, 2, vTR + a, y * 2048)
        A.wait_vm_tag(("x", 0))
        A.wait_lgkm_all()
        self.bar("AB1")
        for b in range(5): A.ds_read("ds_read_b128", B_tr(b), 4, vXR, b * 4096)
        for n in range(5, 7):
            for pc in range(2): self.slot_dma("WQ", n & 1, ("WQ", n), n % 5, pc, 0)
        A.wait_lgkm_all()
        self.canon_vm = [e for e in A.vm if e[0][0] == "WQ"]
        assert [e[0][1] for e in self.canon_vm] == [2, 2, 3, 3, 4, 4, 5, 5, 6, 6]
        self.canon_lgkm = None
        A.salu("s_cmp_eq_u32 s3, 1")
        A.salu("s_cbranch_scc1 L_body1")

    def wq_off(self, n):
        return n & 1

    def x_dma(self, pair, t):
        A = self.A
        A.salu(f"s_mov_b32 s{sOFF}, {t * 14336}")
        A.salu(f"s_add_u32 m0, s{sXM0}, {pair * 40960 + t * 4096}", m0=True)
        self.m0slot = None
        A.dma(vX + pair, sX, sOFF, flags=self.cfg.x_flags, tag=("x", pair))

    def skip_begin(self, ph):
        self.nlab = getattr(self, "nlab", 0) + 1
        self.A.salu(f"s_cmp_eq_u32 s{sPH}, {ph}")
        self.A.salu(f"s_cbranch_scc1 L_sk{self.nlab}")

    def skip_end(self):
        self.A.label(f"L_sk{self.nlab}")

    def x_load_c(self, pair, t):
        A = self.A
        r = ACC + 80 + (pair * 5 + t) * 4
        A._mem_ready(rng(r, 4)); A._haz("mem", [vX + pair], rng(r, 4))
        self.skip_begin(1)
        A.raw(f"s_mov_b32 s{sT0}, {t * 14336}", 0)
        A.raw(f"buffer_load_dwordx4 v[{r}:{r+3}], v{vX+pair}, s[{sX}:{sX+3}], s{sT0} offen {self.cfg.x_flags}", 0)
        self.skip_end()

    def x_write_c(self, pair, t):
        A = self.A
        r = ACC + 80 + (pair * 5 + t) * 4
        if len(A.lgkm) >= 13: A._wait_lgkm_idx(len(A.lgkm) - 13)
        self.skip_begin(1 - pair)
        A.raw(f"ds_write_b128 v{vRW}, v[{r}:{r+3}] offset:{pair * 40960 + t * 4096}", 0)
        self.skip_end()
        self.xw_mark = True

    def x_load(self, pair, t):
        A = self.A
        A.salu(f"s_mov_b32 s{sOFF}, {t * 14336}")
        self.m0slot = None
        A.bload(ACC + 80 + (pair * 5 + t) * 4, 4, vX + pair, sX, sOFF, flags=self.cfg.x_flags, tag=("xr", pair))

    def x_write(self, pair, t):
        self.A.ds_write("ds_write_b128", vRW, ACC + 80 + (pair * 5 + t) * 4, 4, pair * 40960 + t * 4096, tag=("xw", pair))

    def store_po_cond(self, i, b, flags):
        A = self.A
        self.nlab = getattr(self, "nlab", 0) + 1
        r = ACC + 120 + (i * 5 + b) * 4
        A.salu(f"s_cmp_eq_u32 s{sPH}, 0")
        A.salu(f"s_cbranch_scc1 L_sk{self.nlab}")
        A.raw(f"s_add_u32 s{sT0}, s{sPOW}, {(i * 5 + b) * 1024}", 0)
        A.raw(f"buffer_store_dwordx4 v[{r}:{r+3}], v{vLin0}, s[{sPO}:{sPO+3}], s{sT0} offen {flags}", 0)
        A.label(f"L_sk{self.nlab}")

    def store_po(self, i, b, flags):
        A = self.A
        A.salu(f"s_add_u32 s{sT0}, s{sPOW}, {(i * 5 + b) * 1024}")
        A.bstore(ACC + 120 + (i * 5 + b) * 4, 4, vLin0, sPO, sT0, flags=flags, tag="po")

    def set_off(self, typ, off, adv):
        A = self.A
        if typ in ("WQ", "WO"):
            reg, step, cnt, ystep = (sWQK, 262144, 14, 32768) if typ == "WQ" else (sWOK, 32 * 896, 16, 16 * 896)
            if adv and off == 0:
                A.salu(f"s_add_u32 s{reg}, s{reg}, {step}")
                A.salu(f"s_sub_u32 s{sOFF}, s{reg}, {step * cnt}")
                A.salu(f"s_cselect_b32 s{reg}, s{reg}, s{sOFF}")
            A.salu(f"s_add_u32 s{sOFF}, s{reg}, {off * ystep}")
        elif typ == "K": A.salu(f"s_add_u32 s{sOFF}, s{sCOL+off[1]}, {off[0]}")
        else: A.salu(f"s_mov_b32 s{sOFF}, {off}")

    def slot_dma(self, typ, off, key, phys, pc, blk):
        A = self.A; cfg = self.cfg
        vo, srd, fl = {"WQ": (vWQ, sWQ, cfg.w_flags), "K": (vK, sKV(blk, 0), cfg.kv_flags),
                       "V": (vV, sKV(blk, 1), cfg.kv_flags), "WO": (vWO, sKV(blk, 2), cfg.w_flags)}[typ]
        if pc == 0 or self.m0slot != key:
            self.set_off(typ, off, pc == 0)
            A.salu(f"s_add_u32 m0, s{sRING}, {phys * 2048}", m0=True)
            self.m0slot = key
        A.dma(vo + pc, srd, sOFF, off=1024 * pc, flags=fl, tag=key)

    def cvt(self, dst, a, b):
        self.A.valu(f"v_cvt_pk_bf16_f32 v{dst}, v{a}, v{b}", [dst], [a, b])

    def body(self, blk):
        A = self.A; V = self.V; cfg = self.cfg; R = cfg.R; cvt = self.cvt
        assert R == 5
        shared = (blk == 0)
        A.label(f"L_body{blk}")
        A.vm = list(self.canon_vm)
        can_l = []
        for a in range(4): can_l.append((None, set(rng(A_tr(0, a), 2))))
        for a in range(4): can_l.append((None, set(rng(A_tr(0, a) + 2, 2))))
        for b in range(5): can_l.append((None, set(rng(B_tr(b), 4))))
        A.lgkm = list(can_l)
        A.vw = {}; A.mfma_c_read = {}
        self.m0slot = None
        nm = "AB"[blk]
        units = [(jj, 4 * r + k) for r in range(2) for jj in range(4) for k in range(4)]
        use = {}; phys = {}; order = []
        def add(key, typ, off):
            use[key] = (typ, off); order.append(key)
        for n in range(2, 28):
            add(("WQ", n), "WQ", n & 1); phys["WQ", n] = n % 5
        nK = 16 if shared else 32
        for i in range(nK):
            jj, kt = units[2 * i] if shared else units[i]
            add(("K", i), "K", (kt * 8192, jj))
        kpreg = {}
        add(("SCR", 0), "SCR", 0)
        for ks in range(16):
            t, w = divmod(ks, 4)
            key0 = 128 * w + 32 * t
            if shared: add(("V", ks), "V", key0 * 512)
            else:
                for y in range(2): add(("V", 2 * ks + y), "V", (key0 + 16 * y) * 512)
        for n in range(32): add(("WO", n), "WO", n & 1)
        for n in range(7): add(("NWQ", n), "WQ", n & 1)
        T = order[order.index(("K", 0)):]
        for i, key in enumerate(T): phys[key] = (i - (len(T) - 7)) % 5
        slotq = [deque(k for k in order if phys[k] == p) for p in range(5)]
        issued = set(("WQ", n) for n in range(7)); avail = set()
        side = deque(); vq = deque(); slow = deque()
        st = {"wq_left": 21, "pr": 0}

        def issue(key, pc):
            typ, off = use[key]
            self.slot_dma(typ, off, key, phys[key], pc, blk)
            if pc == 1:
                issued.add(key)
                if key[0] == "WQ":
                    st["wq_left"] -= 1
                    if st["wq_left"] == 0: switch_srd()

        def switch_srd():
            A.salu(f"s_mov_b64 s[{sX}:{sX+1}], s[{sNX}:{sNX+1}]")
            A.salu(f"s_mov_b32 s{sX+2}, s{sNX+2}")
            A.salu(f"s_mov_b64 s[{sWQ}:{sWQ+1}], s[{sNWQ}:{sNWQ+1}]")
            A.salu(f"s_mov_b32 s{sWQ+2}, s{sNWQ+2}")
            A.salu(f"s_mov_b32 s{sNX+2}, 0")
            A.salu(f"s_mov_b32 s{sNWQ+2}, 0")

        def release(key):
            q = slotq[phys[key]]
            assert q[0] == key, (key, q[0])
            q.popleft()
            if not q: return
            nx = q[0]
            if nx[0] == "SCR": avail.add(nx)
            else:
                side.append(lambda: issue(nx, 0)); side.append(lambda: issue(nx, 1))

        def pump(q, k=1):
            for _ in range(k):
                if q: q.popleft()()

        def flush(q):
            while q: q.popleft()()

        def need(key):
            while key not in issued:
                assert side, key
                side.popleft()()
            A.wait_vm_tag(key)

        def tr_read(par, a, y, off, tag):
            A.ds_read("ds_read_b64_tr_b16", A_tr(par, a) + 2 * y, 2, vTR + a, off, tag=tag)

        def offs(typ, s, y, sh):
            return (phys[typ, s] * 2048 + y * 4 * RINGSZ) if sh else phys[typ, 2 * s + y] * 2048

        def prio():
            if cfg.fair:
                A.salu(f"s_setprio {3 - st['pr'] % 4}"); st["pr"] += 1

        def kstep(par, czero, nx, bread, cur_sh=None, barrier=False, pub=None, after=None, extra=None, tail=None, label=None):
            typ, s, sh = nx
            for p in range(20):
                b, a = divmod(p, 4)
                if p == 0:
                    if label and label[0] in cfg.kst.split(","): self.stamp(nm + label[0] + str(label[1]))
                    if not sh: prio()
                    need((typ, s) if sh else (typ, 2 * s))
                    if pub:
                        if pub[0] == "xw": assert not slow
                        flush(vq); flush(slow); A.wait_lgkm_tag(pub)
                    if sh or barrier or pub:
                        if cur_sh: A.wait_lgkm_tag(("rd",) + cur_sh)
                        A.barrier()
                        if cur_sh: release(cur_sh)
                    if after: after()
                if p == cfg.ypos and not sh: need((typ, 2 * s + 1))
                A.mfma(ACC + (a * 5 + b) * 4, A_tr(par, a), B_tr(b), czero=czero)
                if sh: yy = (p >> 1, p & 1) if p < 4 else None
                else: yy = (0, p) if p < 2 else ((1, p - cfg.ypos) if 0 <= p - cfg.ypos < 2 else None)
                if yy:
                    y, hh = yy
                    for a2 in (hh * 2, hh * 2 + 1):
                        tr_read(par ^ 1, a2, y, offs(typ, s, y, sh), ("rd", typ, s) if sh else ("rd", typ, 2 * s + y))
                if a == 3 and bread: bread(b)
                if a == 1 and extra: extra(b)
                if not sh:
                    for y, rp in ((0, cfg.relx), (1, cfg.ypos + cfg.relx)):
                        if p == rp:
                            A.wait_lgkm_tag(("rd", typ, 2 * s + y))
                            release((typ, 2 * s + y))
                if p >= 2: pump(side, cfg.npump)
                if p in (8, 18): pump(slow)
                if tail and a == 3 and b >= 1: tail(b - 1)
                pump(vq, 3 if tail else 1)
            if tail:
                tail(4); flush(vq)

        def joint(nx, BX, done, cur_sh=None, hooks={}):
            typ, s, sh = nx
            groups = [(0, 0), (0, 1), (1, 0), (0, 2), (1, 1), (0, 3), (1, 2), (0, 4), (1, 3), (1, 4)]
            pend = None
            for gi, (o, b) in enumerate(groups):
                for a in range(4):
                    p = gi * 4 + a
                    if p == 0:
                        if not sh: prio()
                        need((typ, s) if sh else (typ, 2 * s))
                        if sh:
                            A.wait_lgkm_tag(("rd",) + cur_sh)
                            A.barrier()
                            release(cur_sh)
                    if p == 2 and not sh: need((typ, 2 * s + 1))
                    if p == 20 and not sh: prio()
                    if p == 8:
                        A.wait_lgkm_all()
                        if not sh:
                            release((typ, 2 * s)); release((typ, 2 * s + 1))
                        A.barrier()
                        if sh: release((typ, s))
                    A.mfma(ACC + (a * 5 + b) * 4, A_tr(o, a), (BX + 4 * b) if o else B_tr(b))
                    if p < 4:
                        y, hh = p >> 1, p & 1
                        for a2 in (hh * 2, hh * 2 + 1):
                            tr_read(1, a2, y, offs(typ, s, y, sh), None)
                    if p in hooks: hooks[p]()
                    if p >= 4: pump(side, cfg.npump)
                    if a == 2 and pend is not None:
                        done(pend); pend = None
                    pump(vq, 3)
                if o: pend = b
            done(pend); flush(vq)
            if cfg.fair: A.salu("s_setprio 0")

        def prefetch_A(typ, sh=False):
            if not sh:
                need((typ, 0)); need((typ, 1))
            for y in range(2):
                for a in range(4): tr_read(0, a, y, offs(typ, 0, y, sh), ("rd", typ, 0))

        def pair_cvt(i, b, q):
            r0 = ACC + ((2 * i) * 5 + b) * 4; r1 = ACC + ((2 * i + 1) * 5 + b) * 4
            for (d, x) in ((r0, r0), (r0 + 1, r0 + 2), (r0 + 2, r1), (r0 + 3, r1 + 2)):
                q.append(lambda d=d, x=x: cvt(d, x, x + 1))
            return r0

        def read_x(ks, b, dst):
            cidx, u = divmod(ks, 4)
            if cidx < 3: A.ds_read("ds_read_b128", dst, 4, vXR + u, cidx * 20480 + b * 4096)
            else: A.ds_read("ds_read_b128", dst, 4, vXRh + u, b * 4096)
        def q_after1():
            for t in range(5): slow.append(lambda t=t: (self.x_write_c if cfg.cond else self.x_write)(1, t))
        BXQ = ACC + 80
        stq = deque((i, b) for i in range(2) for b in range(5))
        for s in range(12):
            def ex(b, s=s):
                if s == 10: read_x(13, b, BXQ + 4 * b)
                if b == 3 and s >= cfg.st0 and stq: self.store_po_cond(*stq.popleft(), cfg.po_flags)
            kstep(s & 1, s == 0, ("WQ", s + 1, False), lambda b, s=s: read_x(s + 1, b, B_tr(b)),
                  barrier=(s == 1), after=(q_after1 if s == 1 else None), pub=(("xw", 1) if s == 7 else None),
                  extra=ex, label=("WQ", s))
        assert not stq
        def set_qr(jj):
            A.salu(f"s_mul_i32 s{sT0}, s{sCOL+jj}, 80")
            V(f"v_add_u32 v{vQR}, s{sT0}, v{vLinG}", vQR, [vLinG])
        def k_off(u):
            if shared: return phys["K", u >> 1] * 2048 + (u & 1) * 4 * RINGSZ
            return phys["K", u] * 2048
        def k_read(u, s):
            A.ds_read("ds_read_b128", A_s(u & 1, s), 4, vKR + s, k_off(u), tag=("rk", u))
        def done_q(b):
            for i in range(2):
                r0 = pair_cvt(i, b, vq)
            for i in range(2):
                r0 = ACC + ((2 * i) * 5 + b) * 4
                for e in range(2):
                    vq.append(lambda r=r0 + e: A.valu(f"v_permlane16_swap_b32 v{r}, v{r+2}", [r, r + 2], [r, r + 2], kind="perm"))
            for i in range(2):
                r0 = ACC + ((2 * i) * 5 + b) * 4
                vq.append(lambda r0=r0, i=i: A.ds_write("ds_write_b128", vQW, r0, 4, (i * 5 + b) * 1024))
        def q_h10():
            set_qr(0)
            if shared:
                for s in range(2): V(f"v_subrev_u32 v{vKR+s}, s{sGR}, v{vKR+s}", vKR + s, [vKR + s])
        self.stamp(nm + "Qj")
        joint(("WQ", 13, False), BXQ, done_q, hooks={10: q_h10})
        flush(side)
        need(("K", 0))
        if shared:
            A.wait_lgkm_all()
            self.bar(nm + "B4")
            for s in range(2): k_read(0, s)
        else:
            for s in range(2): k_read(0, s)
            A.wait_lgkm_all()
            release(("K", 0))
            self.bar(nm + "B4")
        for s in range(2):
            for b in range(5):
                A.ds_read("ds_read_b128", B_s(s, b), 4, vQR, (s * 5 + b) * 1024)
        def acc_s(kt, b): return ACC + (kt * 5 + b) * 4
        NM1 = lambda b: BORROW[b]
        L1 = lambda b: BORROW[5 + b]
        smq = deque()
        def q_max(kt):
            for b in range(5):
                r = acc_s(kt, b); m = vM + b
                if kt == 0:
                    smq.append(lambda r=r, m=m: V(f"v_max3_f32 v{m}, v{r}, v{r+1}, v{r+2}", m, [r, r+1, r+2]))
                    smq.append(lambda r=r, m=m: V(f"v_max_f32 v{m}, v{m}, v{r+3}", m, [m, r+3]))
                else:
                    smq.append(lambda r=r, m=m: V(f"v_max3_f32 v{m}, v{m}, v{r}, v{r+1}", m, [m, r, r+1]))
                    smq.append(lambda r=r, m=m: V(f"v_max3_f32 v{m}, v{m}, v{r+2}, v{r+3}", m, [m, r+2, r+3]))
        def q_round1():
            for sw in ("v_permlane32_swap_b32", "v_permlane16_swap_b32"):
                for b in range(5): smq.append(lambda b=b: V(f"v_mov_b32 v{L1(b)}, v{vM+b}", L1(b), [vM + b]))
                for b in range(5): smq.append(lambda b=b, sw=sw: A.valu(f"{sw} v{vM+b}, v{L1(b)}", [vM + b, L1(b)], [vM + b, L1(b)], kind="perm"))
                for b in range(5): smq.append(lambda b=b: V(f"v_max_f32 v{vM+b}, v{vM+b}, v{L1(b)}", vM + b, [vM + b, L1(b)]))
            for b in range(5): smq.append(lambda b=b: V(f"v_mul_f32 v{NM1(b)}, s{sNC}, v{vM+b}", NM1(b), [vM + b]))
            for kt in range(4):
                for b in range(5):
                    r = acc_s(kt, b)
                    for e in range(4): smq.append(lambda x=r+e, b=b: V(f"v_fma_f32 v{x}, v{x}, s{sC}, v{NM1(b)}", x, [x, NM1(b)]))
                    for e in range(4): smq.append(lambda x=r+e: A.valu(f"v_exp_f32 v{x}, v{x}", [x], [x], kind="trans"))
                    if kt == 0:
                        smq.append(lambda r=r, b=b: V(f"v_add_f32 v{L1(b)}, v{r}, v{r+1}", L1(b), [r, r + 1]))
                        rest = (2, 3)
                    else: rest = (0, 1, 2, 3)
                    for e in rest: smq.append(lambda x=r+e, b=b: V(f"v_add_f32 v{L1(b)}, v{L1(b)}, v{x}", L1(b), [L1(b), x]))
        for u in range(32):
            jj, kt = units[u]
            par = u & 1
            nxt = u + 1 < 32
            last_in_pass = (kt & 3) == 3
            for p in range(10):
                s, b = divmod(p, 5)
                if p == 0 and cfg.fairs and not shared and u % cfg.fairs == 0: A.salu(f"s_setprio {3 - (u // cfg.fairs) % 4}")
                if nxt and p == 0:
                    if shared:
                        if u & 1:
                            need(("K", (u + 1) // 2))
                            A.wait_lgkm_tag(("rk", u))
                            if "nobar" not in cfg.hack: A.barrier()
                            release(("K", u // 2))
                    else:
                        need(("K", u + 1))
                A.mfma(acc_s(kt, b), A_s(par, s), B_s(s, b), czero=(jj == 0 and s == 0))
                if nxt and p < 2: k_read(u + 1, p)
                if (kt & 3) == 2 and p == 9 and u + 2 < 32: set_qr(units[u + 2][0])
                if last_in_pass and nxt:
                    A.ds_read("ds_read_b128", B_s(s, b), 4, vQR, (s * 5 + b) * 1024)
                if nxt and p == cfg.s_rel_pos and not shared:
                    A.wait_lgkm_tag(("rk", u + 1))
                    release(("K", u + 1))
                if p >= 2: pump(side, cfg.npump)
                if p >= 4 or u > 16: pump(smq, cfg.sm_per)
            if jj == 3: q_max(kt)
            if u == 15: q_round1()
        flush(side); flush(smq)
        if cfg.fairs and not shared: A.salu("s_setprio 0")
        self.stamp(nm + "Sdone")
        ML = lambda b: 176 + 2 * b
        NMC = lambda b: 186 + 2 * b
        LS = lambda b: 196 + 2 * b
        TT = lambda b: 206 + b
        def xl_reduce(src, dst, op):
            for b in range(5): V(f"v_mov_b32 v{TT(b)}, v{src(b)}", TT(b), [src(b)])
            for b in range(5): A.valu(f"v_permlane32_swap_b32 v{src(b)}, v{TT(b)}", [src(b), TT(b)], [src(b), TT(b)], kind="perm")
            for b in range(5): V(f"{op} v{src(b)}, v{src(b)}, v{TT(b)}", src(b), [src(b), TT(b)])
            for b in range(5): V(f"v_mov_b32 v{TT(b)}, v{src(b)}", TT(b), [src(b)])
            for b in range(5): A.valu(f"v_permlane16_swap_b32 v{src(b)}, v{TT(b)}", [src(b), TT(b)], [src(b), TT(b)], kind="perm")
            for b in range(5): V(f"{op} v{dst(b)}, v{src(b)}, v{TT(b)}", dst(b), [src(b), TT(b)])
        xl_reduce(lambda b: vM + b, ML, "v_max_f32")
        for b in range(5): V(f"v_mul_f32 v{NMC(b)}, s{sNC}, v{ML(b)}", NMC(b), [ML(b)])
        for b in range(5): V(f"v_sub_f32 v{NM1(b)}, v{NMC(b)}, v{NM1(b)}", NM1(b), [NMC(b), NM1(b)])
        for b in range(5): A.valu(f"v_exp_f32 v{NM1(b)}, v{NM1(b)}", [NM1(b)], [NM1(b)], kind="trans")
        for kt in (range(4, 5) if "nosm" in cfg.hack else range(4, 8)):
            for b in range(5):
                r = acc_s(kt, b)
                for h in range(2):
                    x = r + 2 * h
                    A.valu(f"v_pk_fma_f32 v[{x}:{x+1}], v[{x}:{x+1}], s[{sC}:{sC+1}], v[{NMC(b)}:{NMC(b)+1}] op_sel_hi:[1,0,0]",
                           [x, x + 1], [x, x + 1, NMC(b)])
            for b in range(5):
                r = acc_s(kt, b)
                for e in range(4):
                    A.valu(f"v_exp_f32 v{r+e}, v{r+e}", [r + e], [r + e], kind="trans")
            for b in range(5):
                r = acc_s(kt, b); l = LS(b)
                if kt == 4:
                    A.valu(f"v_pk_add_f32 v[{l}:{l+1}], v[{r}:{r+1}], v[{r+2}:{r+3}]", [l, l + 1], rng(r, 4))
                else:
                    A.valu(f"v_pk_add_f32 v[{l}:{l+1}], v[{l}:{l+1}], v[{r}:{r+1}]", [l, l + 1], [l, l + 1, r, r + 1])
            if kt > 4:
                for b in range(5):
                    r = acc_s(kt, b); l = LS(b)
                    A.valu(f"v_pk_add_f32 v[{l}:{l+1}], v[{l}:{l+1}], v[{r+2}:{r+3}]", [l, l + 1], [l, l + 1, r + 2, r + 3])
        for b in range(5): V(f"v_add_f32 v{LS(b)}, v{LS(b)}, v{LS(b)+1}", LS(b), [LS(b), LS(b) + 1])
        for b in range(5): V(f"v_fmac_f32 v{LS(b)}, v{L1(b)}, v{NM1(b)}", LS(b), [LS(b), L1(b), NM1(b)])
        xl_reduce(LS, lambda b: ML(b) + 1, "v_add_f32")
        assert ("SCR", 0) in avail
        so = phys["SCR", 0] * 2048
        A.salu("s_mov_b64 exec, 0xffff")
        for b in range(5):
            A.ds_write("ds_write_b64", vSW, ML(b), 2, so + b * 128)
        A.salu("s_mov_b64 exec, -1")
        if shared: need(("V", 0))
        A.wait_lgkm_all()
        self.bar(nm + "B5")
        if shared:
            release(("K", 15)); flush(side)
        RB = lambda b: [160, 168, 176, 196, 204][b]
        for b in range(5):
            for jj in range(4):
                A.ds_read("ds_read_b64", RB(b) + 2 * jj, 2, vSR, jj * RINGSZ + so + b * 128)
        MX = lambda b: vM + b
        for b in range(5):
            r = RB(b)
            V(f"v_max3_f32 v{MX(b)}, v{r}, v{r+2}, v{r+4}", MX(b), [r, r + 2, r + 4])
            V(f"v_max_f32 v{MX(b)}, v{MX(b)}, v{r+6}", MX(b), [MX(b), r + 6])
            V(f"v_mul_f32 v{MX(b)}, s{sNC}, v{MX(b)}", MX(b), [MX(b)])
            for jj in range(4):
                V(f"v_fma_f32 v{r+2*jj}, v{r+2*jj}, s{sC}, v{MX(b)}", r + 2 * jj, [r + 2 * jj, MX(b)])
            V(f"v_sub_f32 v{NMC(b)}, v{MX(b)}, v{NMC(b)}", NMC(b), [MX(b), NMC(b)])
        for b in range(5):
            r = RB(b)
            for jj in range(4):
                A.valu(f"v_exp_f32 v{r+2*jj}, v{r+2*jj}", [r + 2 * jj], [r + 2 * jj], kind="trans")
            A.valu(f"v_exp_f32 v{NMC(b)}, v{NMC(b)}", [NMC(b)], [NMC(b)], kind="trans")
        for b in range(5):
            r = RB(b)
            V(f"v_mul_f32 v{MX(b)}, v{r}, v{r+1}", MX(b), [r, r + 1])
            for jj in range(1, 4):
                V(f"v_fmac_f32 v{MX(b)}, v{r+2*jj}, v{r+2*jj+1}", MX(b), [MX(b), r + 2 * jj, r + 2 * jj + 1])
        for b in range(5):
            A.valu(f"v_rcp_f32 v{MX(b)}, v{MX(b)}", [MX(b)], [MX(b)], kind="trans")
        for b in range(5):
            V(f"v_mul_f32 v{MX(b)}, v{MX(b)}, v{NMC(b)}", MX(b), [MX(b), NMC(b)])
        for b in range(5):
            V(f"v_mul_f32 v{NMC(b)}, v{MX(b)}, v{NM1(b)}", NMC(b), [MX(b), NM1(b)])
        if shared:
            for s in range(2): V(f"v_add_u32 v{vKR+s}, s{sGR}, v{vKR+s}", vKR + s, [vKR + s])
            V(f"v_subrev_u32 v{vTR}, s{sGR}, v{vTR}", vTR, [vTR])
        for a in range(1, 4): V(f"v_xor_b32 v{vTR+a}, {a << 5}, v{vTR}", vTR + a, [vTR])
        prefetch_A("V", sh=shared)
        def writeP(i, b, tag=None):
            A.ds_write("ds_write_b128", vPW, acc_s(2 * i, b), 4, (i & 1) * 20480 + b * 1024, tag=tag)
        for i in range(2):
            for b in range(5):
                r0 = acc_s(2 * i, b); r1 = acc_s(2 * i + 1, b); f = NMC(b)
                for x in (r0, r0 + 2, r1, r1 + 2):
                    A.valu(f"v_pk_mul_f32 v[{x}:{x+1}], v[{x}:{x+1}], v[{f}:{f+1}] op_sel_hi:[1,0]", [x, x + 1], [x, x + 1, f])
                cvt(r0, r0, r0 + 1); cvt(r0 + 1, r0 + 2, r0 + 3); cvt(r0 + 2, r1, r1 + 1); cvt(r0 + 3, r1 + 2, r1 + 3)
                writeP(i, b)
        A.wait_lgkm_all()
        self.bar(nm + "B6")
        release(("SCR", 0))
        for u in range(1, 4): vq.append(lambda u=u: V(f"v_xor_b32 v{vXR+u}, {u << 6}, v{vXR}", vXR + u, [vXR]))
        for u in range(2): vq.append(lambda u=u: V(f"v_add_u32 v{vXRh+u}, 61440, v{vXR+u}", vXRh + u, [vXR + u]))
        vq.append(lambda: V(f"v_add_u32 v{vWQ+1}, {16*8192-1024}, v{vWQ}", vWQ + 1, [vWQ]))
        vq.append(lambda: V(f"v_add_u32 v{vWO+1}, {8*896-1024}, v{vWO}", vWO + 1, [vWO]))
        vq.append(lambda: V(f"v_add_u32 v{vLin1}, {BREG}, v{vLin0}", vLin1, [vLin0]))
        def q_pack(i):
            for b in range(5):
                r0 = acc_s(2 * i, b); r1 = acc_s(2 * i + 1, b)
                for x in rng(r0, 4) + rng(r1, 4):
                    vq.append(lambda x=x, b=b: V(f"v_mul_f32 v{x}, v{x}, v{MX(b)}", x, [x, MX(b)]))
                for (d, x) in ((r0, r0), (r0 + 1, r0 + 2), (r0 + 2, r1), (r0 + 3, r1 + 2)):
                    vq.append(lambda d=d, x=x: cvt(d, x, x + 1))
        q_pack(2)
        def q_write(i):
            for b in range(5): slow.append(lambda b=b: writeP(i, b, tag=("pw", i)))
        def at4():
            flush(vq); q_write(2); q_pack(3)
        def at8():
            q_write(3)
        def read_p(ks, b, dst):
            A.ds_read("ds_read_b128", dst, 4, vLinG, ((ks & 7) * 5 + b) * 1024)
        for b in range(5): read_p(0, b, B_tr(b))
        if not shared:
            release(("V", 0)); release(("V", 1))
        BXP = ACC + 140
        for s in range(14):
            kstep(s & 1, s == 0, ("V", s + 1, shared), lambda b, s=s: read_p(s + 1, b, B_tr(b)),
                  cur_sh=(("V", s) if shared else None), barrier=(s in (4, 8)),
                  after={4: at4, 8: at8}.get(s), pub={7: ("pw", 2), 11: ("pw", 3)}.get(s),
                  extra=((lambda b: read_p(15, b, BXP + 4 * b)) if s == 12 else None), label=("V", s))
        xq = deque((pair, t) for pair in range(2) for t in range(5))
        xs = [int(v) for v in cfg.xsplit.split(",")]
        xp = [int(v) for v in cfg.xpos.split(",")]
        def xl(n):
            for _ in range(n): side.append(lambda e=xq.popleft(): (self.x_load_c if cfg.cond else self.x_load)(*e))
        def done_o(b):
            for i in range(2): pair_cvt(i, b, vq)
            for i in range(2):
                r0 = ACC + ((2 * i) * 5 + b) * 4
                vq.append(lambda r0=r0, i=i: A.ds_write("ds_write_b128", vOW, r0, 4, (i * 5 + b) * 1024))
        hooks = {}
        for n, p in zip(xs, xp): hooks[p + 9] = (lambda n=n: xl(n))
        def o_h5():
            if shared:
                for a in range(4): V(f"v_add_u32 v{vTR+a}, s{sGR}, v{vTR+a}", vTR + a, [vTR + a])
        hooks[5] = o_h5
        hooks[32] = lambda: prefetch_A("WO")
        self.stamp(nm + "Pj")
        joint(("V", 15, shared), BXP, done_o, cur_sh=(("V", 14) if shared else None), hooks=hooks)
        A.wait_lgkm_all()
        release(("WO", 0)); release(("WO", 1))
        self.bar(nm + "B10")
        def read_o(ks, b):
            A.ds_read("ds_read_b128", B_tr(b), 4, vLin0 if ks < 8 else vLin1, ((ks & 7) * 5 + b) * 1024)
        for b in range(5): read_o(0, b)
        def mid_o():
            for t in range(5): slow.append(lambda t=t: (self.x_write_c if cfg.cond else self.x_write)(0, t))
        def tail_po(b):
            for i in range(2):
                r0 = ACC + ((2 * i) * 5 + b) * 4; r1 = ACC + ((2 * i + 1) * 5 + b) * 4
                d = ACC + 120 + (i * 5 + b) * 4
                for e, x in enumerate((r0, r0 + 2, r1, r1 + 2)):
                    vq.append(lambda d=d + e, x=x: cvt(d, x, x + 1))
        st["pr"] = 0
        for s in range(16):
            last = s == 15
            kstep(s & 1, s == 0, ("NWQ", 0, False) if last else ("WO", s + 1, False),
                  (lambda b: read_x(0, b, B_tr(b))) if last else (lambda b, s=s: read_o(s + 1, b)),
                  barrier=(s == 8), after=(mid_o if s == 8 else None), pub=(("xw", 0) if s == 13 else None),
                  tail=(tail_po if last else None), label=("WO", s))
        flush(side)
        A.salu(f"s_mov_b64 s[{sPO}:{sPO+1}], s[{sPOB(blk)}:{sPOB(blk)+1}]")
        A.salu(f"s_mov_b32 s{sPO+2}, 71680")
        assert sorted(q[0][1] for q in slotq) == [2, 3, 4, 5, 6] and all(len(q) == 1 for q in slotq)
        act = [("WQ", t[1]) if t[0] == "NWQ" else t for t, _ in A.vm]
        can = [t for t, _ in self.canon_vm]
        assert act == can[len(can) - len(act):], (act, can)
        actl = [d for _, d in A.lgkm]; canl = [d for _, d in can_l]
        assert actl == canl[len(canl) - len(actl):], (actl, canl)
        self.stamp(nm + "Odone")
        A.salu(f"s_add_u32 s{sPH}, s{sPH}, 1")
        A.salu(f"s_cmp_eq_u32 s{sPH}, 2")
        A.salu("s_cbranch_scc1 L_final")
        if blk == 1: A.salu("s_branch L_body0")

    def final(self):
        A = self.A; cfg = self.cfg
        A.label("L_final")
        A.vm = []; A.lgkm = []
        V = self.V
        if cfg.fuse: A.raw("s_load_dwordx4 s[4:7], s[0:1], 80")
        for i in range(2):
            for b in range(5): self.store_po(i, b, cfg.pof_flags)
        if cfg.fuse:
            R = A.raw
            BS = 256 * 71680
            V(f"v_lshrrev_b32 v2, 4, v{vLin0}", 2, [vLin0])
            V("v_and_b32 v4, 15, v2", 4, [2])
            V("v_mul_u32_u24 v4, 1792, v4", 4, [4])
            V("v_bfe_u32 v5, v2, 4, 1", 5, [2])
            V("v_lshl_add_u32 v4, v5, 5, v4", 4, [4, 5])
            V("v_lshrrev_b32 v5, 5, v2", 5, [2])
            V("v_lshl_add_u32 v4, v5, 4, v4", 4, [4, 5])
            R(f"s_lshl_b32 s20, s{sB}, 2")
            V("v_mov_b32 v2, s20", 2, [])
            V("v_mov_b32 v1, 1", 1, [])
            V("v_mov_b32 v3, 0", 3, [])
            R(f"s_mul_i32 s20, s{sB}, {8*71680}")
            R("s_add_u32 s16, s24, s20"); R("s_addc_u32 s17, s25, 0"); R("s_and_b32 s17, s17, 0xffff")
            R(f"s_mov_b32 s18, {BS + 8*71680}"); R("s_mov_b32 s19, 0x20000")
            R(f"s_lshl_b32 s21, 1, s{sHG}")
            R("s_waitcnt vmcnt(0) lgkmcnt(0)")
            R("s_mov_b32 s8, s6"); R("s_and_b32 s9, s7, 0xffff"); R("s_mov_b32 s10, 256"); R("s_mov_b32 s11, 0x20000")
            R("s_mov_b32 s12, s4"); R("s_and_b32 s13, s5, 0xffff"); R(f"s_mov_b32 s14, {32*80*896*2}"); R("s_mov_b32 s15, 0x20000")
            R("s_barrier")
            self.stamp("drain")
            R(f"s_cmp_lg_u32 s{sW}, 0")
            R("s_cbranch_scc1 L_wait")
            R("s_mov_b64 exec, 1")
            R("buffer_atomic_add v1, v2, s[8:11], 0 offen sc0 sc1")
            R("s_waitcnt vmcnt(0)")
            R("v_readfirstlane_b32 s20, v1")
            R("s_nop 3")
            R("s_lshr_b32 s23, s20, 8"); R("s_or_b32 s23, s23, s21")
            R("s_and_b32 s20, s20, 0xff"); R("s_cmp_eq_u32 s20, 7")
            R("s_cbranch_scc1 L_pub")
            R("s_mov_b32 s23, s21")
            R(f"s_mov_b32 s22, {cfg.spin}")
            A.label("L_poll")
            if cfg.slp: R(f"s_sleep {cfg.slp}")
            R(f"buffer_load_dword v1, v2, s[8:11], 0 offen {cfg.pollflags}")
            R("s_waitcnt vmcnt(0)")
            R("v_readfirstlane_b32 s20, v1")
            R("s_nop 3")
            R("s_and_b32 s20, s20, 0xff"); R("s_cmp_eq_u32 s20, 8")
            R("s_cbranch_scc1 L_pub")
            R("s_sub_u32 s22, s22, 1"); R("s_cmp_lg_u32 s22, 0")
            R("s_cbranch_scc1 L_poll")
            R("s_lshl_b32 s20, s21, 8")
            R("v_mov_b32 v1, s20")
            R("buffer_atomic_or v1, v2, s[8:11], 0 offen sc0 sc1")
            R("s_waitcnt vmcnt(0)")
            R("v_readfirstlane_b32 s20, v1")
            R("s_nop 3")
            R("s_and_b32 s20, s20, 0xff"); R("s_cmp_eq_u32 s20, 8")
            R("s_cselect_b32 s23, s21, 0")
            A.label("L_pub")
            R("v_mov_b32 v1, s23")
            R("ds_write_b32 v3, v1")
            R("s_waitcnt lgkmcnt(0)")
            R("s_mov_b64 exec, -1")
            A.label("L_wait")
            R("s_barrier")
            R("ds_read_b32 v1, v3")
            R("s_waitcnt lgkmcnt(0)")
            R("v_readfirstlane_b32 s23, v1")
            R("s_nop 3")
            self.stamp("go")
            A.label("L_share")
            R("s_cmp_eq_u32 s23, 0")
            R("s_cbranch_scc1 L_shares_done")
            R("s_ff1_i32_b32 s20, s23")
            R("s_bitset0_b32 s23, s20")
            R(f"s_lshl_b32 s22, s{sW}, 3"); R("s_add_u32 s22, s22, s20")
            A.vm = []; A.lgkm = []; A.vw = {}
            for r in range(3):
                so = 28 + r
                R(f"s_add_u32 s32, s22, {64*r}")
                R("s_cmp_ge_u32 s32, 70"); R("s_cselect_b32 s33, 1, 0")
                R("s_mul_i32 s34, s33, 70"); R("s_sub_u32 s34, s32, s34")
                R("s_mul_i32 s35, s34, 205"); R("s_lshr_b32 s35, s35, 10")
                R("s_mul_i32 s36, s35, 5"); R("s_sub_u32 s36, s34, s36")
                R(f"s_mul_i32 s37, s{sB}, 80"); R("s_lshl_b32 s36, s36, 4"); R("s_add_u32 s37, s37, s36")
                R("s_mul_i32 s37, s37, 1792"); R("s_mul_i32 s36, s33, 896"); R("s_add_u32 s37, s37, s36")
                R("s_lshl_b32 s35, s35, 6"); R(f"s_add_u32 s{so}, s37, s35")
                R(f"s_mul_i32 s33, s33, {BS}"); R("s_lshl_b32 s34, s34, 10"); R("s_add_u32 s33, s33, s34")
                if r == 2:
                    R("s_cmp_lt_u32 s32, 140")
                    R("s_cselect_b32 s33, s33, 0x40000000"); R(f"s_cselect_b32 s{so}, s{so}, 0x40000000")
                for g in range(8):
                    A.bload(32 + (r * 8 + g) * 4, 4, vLin0, 16, 33, flags=cfg.shflags)
                    if g < 7: R("s_add_u32 s33, s33, 71680")
            for r in range(3):
                for g in range(8):
                    src = 32 + (r * 8 + g) * 4
                    for d in range(4):
                        lo = 16 + 2 * d; hi = lo + 1
                        if g == 0:
                            V(f"v_lshlrev_b32 v{lo}, 16, v{src+d}", lo, [src + d])
                            V(f"v_and_b32 v{hi}, 0xffff0000, v{src+d}", hi, [src + d])
                        else:
                            V(f"v_lshlrev_b32 v6, 16, v{src+d}", 6, [src + d])
                            V(f"v_and_b32 v7, 0xffff0000, v{src+d}", 7, [src + d])
                            A.valu(f"v_pk_add_f32 v[{lo}:{lo+1}], v[{lo}:{lo+1}], v[6:7]", [lo, lo + 1], [lo, lo + 1, 6, 7])
                o = 8 + 4 * (r & 1)
                for d in range(4): V(f"v_cvt_pk_bf16_f32 v{o+d}, v{16+2*d}, v{17+2*d}", o + d, [16 + 2 * d, 17 + 2 * d])
                A.valu(f"v_permlane16_swap_b32 v{o}, v{o+2}", [o, o + 2], [o, o + 2], kind="perm")
                A.valu(f"v_permlane16_swap_b32 v{o+1}, v{o+3}", [o + 1, o + 3], [o + 1, o + 3], kind="perm")
                A.bstore(o, 4, 4, 12, 28 + r)
            A.nop(2)
            R("s_branch L_share")
            A.label("L_shares_done")
        if cfg.stamp:
            A.raw("s_waitcnt vmcnt(0)")
            self.stamp("end")
            A.salu("s_add_u32 s28, s24, 0x8000000")
            A.salu("s_addc_u32 s29, s25, 0")
            A.salu("s_and_b32 s29, s29, 0xffff")
            A.salu("s_mov_b32 s30, 0x100000")
            A.salu("s_mov_b32 s31, 0x20000")
            A.salu(f"s_lshl_b32 s{sT0}, s2, 3")
            A.salu(f"s_add_u32 s{sT0}, s{sT0}, s{sW}")
            A.salu(f"s_lshl_b32 s{sT0}, s{sT0}, 8")
            A.valu(f"v_lshrrev_b32 v0, 2, v{vLin0}", [0], [vLin0])
            A.bstore(vSTAMP, 1, 0, 28, sT0)
            open(cfg.path + ".stamps", "w").write(" ".join(self.stamps))
        A.label("L_attn_done")
        A.raw("s_endpgm")


def gen_main(cfg):
    g = Gen(cfg)
    if "nomfma" in cfg.hack:
        om = g.A.mfma
        def fake(d, a, b, czero=False):
            g.A._mem_ready(rng(a, 4) + rng(b, 4))
        g.A.mfma = fake
    kn = NAME + "_kernel"
    g.A.label(kn)
    g.setup(); g.body(0); g.body(1); g.final()
    return kn, g.A


def build(cfg, path):
    from gen1 import gen_reduce
    cfg.path = path
    hdr = open("cdna_kernels/" + NAME + ".s.ref").read().split("\n")
    head = [l for l in hdr if l.startswith(";") and "@launch" not in l and "Override launch" not in l and "grid=ceil" not in l]
    k1, A1 = gen_main(cfg)
    ks = [(k1, A1)]
    out = "\n".join(head) + "\n"
    if cfg.listfmt: out += f"; @launch kernel={k1} grid=(256,1,1) block=(512,1,1) lds=163840\n"
    else: out += f"; @launch grid=(256,1,1) block=(512,1,1) lds=163840\n"
    if not cfg.fuse:
        k2, A2 = gen_reduce(cfg)
        ks.append((k2, A2))
        out += f"; @launch kernel={k2} grid=({2240 // cfg.rw},1,1) block=({64 * cfg.rw},1,1) lds=0\n"
    out += '.amdgcn_target "amdgcn-amd-amdhsa--gfx950"\n.text\n'
    for k, A in ks:
        out += f".globl {k}\n.p2align 8\n.type {k},@function\n" + A.text()
    out += '.section .rodata,"a"\n.p2align 6\n'
    out += kernel_desc(k1, 256, 102, 256)
    if not cfg.fuse: out += ".p2align 6\n" + kernel_desc(k2, 96, 32, 96)
    open(path, "w").write(out)
    print(path, "mfma", A1.nmfma, "lines", len(A1.lines))

if __name__ == "__main__":
    cfg = Cfg()
    for a in sys.argv[2:]:
        k, v = a.split("=")
        setattr(cfg, k, type(getattr(cfg, k))(v))
    if cfg.span: cfg.stamp = 1; cfg.rt = 1
    build(cfg, sys.argv[1] if len(sys.argv) > 1 else "cdna_kernels/" + NAME + ".s")
```

```python
import sys, struct
from collections import deque
from asmlib import *

NAME = "concat_heads__gqa_block_cached__mha_block_cached__near_ridge"

class Cfg:
    R = 5
    kv_flags = "nt"
    w_flags = ""
    x_flags = ""
    po_flags = "sc1"
    pof_flags = "sc1"
    rd_flags = ""
    rel_pos = 8
    s_rel_pos = 5
    stamp = 0
    order = 2
    pre = 0
    krot = 1
    kpA = 0
    kpB = 0
    kp_per = 2
    kp_start = 0
    relx = 5
    ypos = 10
    npump = 2
    prio = 0
    stpos = 'b1'
    tlb = 0
    only = 0
    rt = 0
    fuse = 0
    rw = 2
    spin = 3000
    slp = 0
    shflags = 'sc1'
    pollflags = 'sc0 sc1'
    listfmt = 1
    span = 0
    fair = 1
    fairs = 0
    kst = ''
    xpos = '0,12,24'
    st0 = 1
    pro = 1
    cond = 1
    early = 0
    w7 = 1
    noearly = 0
    epos = '4,8'
    ecomp = 11
    kpat = '2,5,8,11'
    kpn = 4
    kpbar = 1
    hack = ''
    dbgstart = 0
    tlbk = 0
    xsplit = '4,4,2'
    late = 1
    sm_per = 2

def f32bits(x):
    return struct.unpack("<I", struct.pack("<f", x))[0]

BREG = 40960
RING0 = 81920
RINGSZ = 10240

ACC = 0
FR = 160
def A_tr(par, a): return FR + par * 16 + a * 4
def B_tr(b): return FR + 32 + 4 * b
def B_s(s, b): return FR + (s * 5 + b) * 4
def A_s(par, s): return FR + 40 + par * 8 + s * 4
_v = 216
def _alloc(n=1):
    global _v
    r = _v; _v += n
    assert _v <= 256
    return r
vKR = _alloc(2); vK = _alloc(2); vV = _alloc(2); vX = _alloc(2)
vLinG = _alloc(); vQR = _alloc(); vSW = _alloc(); vSR = _alloc(); vPW = _alloc(); vRW = _alloc(); vLin0 = _alloc()
vQW = _alloc(); vOW = _alloc()
vTR = _alloc(4); vXR = _alloc(4); vXRh = _alloc(2); vWQ = _alloc(2); vWO = _alloc(2); vLin1 = _alloc()
vM = _alloc(5); vT0 = _alloc(); vT1 = _alloc()
BORROW = [vTR + 1, vTR + 2, vTR + 3, vXR + 1, vXR + 2, vXR + 3, vXRh, vXRh + 1, vWQ + 1, vWO + 1, vLin1]
assert _v <= 255
vSTAMP = 255

sX = 28; sWQ = 32; sNX = 36; sNWQ = 40; sPO = 44
def sKV(blk, k): return 48 + blk * 12 + k * 4
def sPOB(blk): return 72 + blk * 2
sRING = 76; sOFF = 77; sC = 78
sNC = 80; sXM0 = 81; sPOW = 82; sW = 83; sJ = 84; sG = 85; sB = 86; sHG = 87
sT0 = 88; sT1 = 89; sT2 = 90; sT3 = 91; sPH = 92; sGR = 93
sCOL = 94
sWQK = 98; sWOK = 99; sSTI = 100; sSIG = 101


class Gen:
    def __init__(self, cfg):
        self.cfg = cfg
        self.A = Asm()
        self.stamps = []

    def V(self, text, w, r):
        self.A.valu(text, w if isinstance(w, list) else [w], r)

    def stamp(self, name):
        if not self.cfg.stamp: return
        if self.cfg.span and name != "end": return
        A = self.A
        A.raw("s_memrealtime s[26:27]" if self.cfg.rt else "s_memtime s[26:27]")
        A.raw("s_waitcnt lgkmcnt(0)")
        A.lgkm = []
        A.raw(f"s_mov_b32 m0, s{sSTI}")
        A.raw(f"s_add_u32 s{sSTI}, s{sSTI}, 1")
        A.raw(f"s_min_u32 s{sSTI}, s{sSTI}, 62")
        A.raw(f"v_writelane_b32 v{vSTAMP}, s26, m0")
        self.m0slot = None
        self.stamps.append(name)

    def bar(self, name=None):
        self.A.barrier()
        if name: self.stamp(name)

    def setup(self):
        A = self.A; V = self.V; cfg = self.cfg
        if cfg.rt: A.raw("s_memrealtime s[70:71]")
        A.salu("s_cmp_ge_u32 s2, 256")
        A.salu("s_cbranch_scc1 L_attn_done")
        if cfg.only:
            A.salu(f"s_and_b32 s3, s2, {cfg.only}")
            A.salu("s_cbranch_scc1 L_attn_done")
        A.salu("s_load_dwordx16 s[4:19], s[0:1], 0")
        A.salu("s_load_dwordx4 s[20:23], s[0:1], 64")
        A.salu("s_load_dwordx2 s[24:25], s[0:1], 96")
        vL = 4; vG = 5; vQ = 6; vTmp = 7
        t1 = 1; t2 = 2; t3 = 3
        V(f"v_lshrrev_b32 v{vTmp}, 6, v0", vTmp, [0])
        V(f"v_and_b32 v{vL}, 63, v0", vL, [0])
        A.rfl(sW, vTmp)
        V(f"v_lshrrev_b32 v{vG}, 4, v{vL}", vG, [vL])
        V(f"v_and_b32 v{vQ}, 15, v{vL}", vQ, [vL])
        A.nop(2)
        A.salu(f"s_and_b32 s{sJ}, s{sW}, 3")
        A.salu(f"s_lshr_b32 s{sG}, s{sW}, 2")
        A.salu(f"s_lshr_b32 s{sB}, s2, 3")
        A.salu(f"s_and_b32 s{sHG}, s2, 7")
        A.salu(f"s_mul_i32 s{sRING}, s{sW}, {RINGSZ}")
        A.salu(f"s_add_u32 s{sRING}, s{sRING}, {RING0}")
        A.salu(f"s_mul_i32 s{sXM0}, s{sG}, 20480")
        A.salu(f"s_lshl_b32 s{sT0}, s{sJ}, 10")
        A.salu(f"s_add_u32 s{sXM0}, s{sXM0}, s{sT0}")
        V(f"v_and_b32 v{t1}, 7, v{vL}", t1, [vL])
        V(f"v_lshlrev_b32 v{t3}, 1, v{vG}", t3, [vG])
        V(f"v_xor_b32 v{t3}, v{t3}, v{t1}", t3, [t3, t1])
        V(f"v_lshlrev_b32 v{t3}, 4, v{t3}", t3, [t3])
        V(f"v_lshrrev_b32 v{t2}, 3, v{vL}", t2, [vL])
        A.salu(f"s_lshl_b32 s{sT0}, s{sJ}, 7")
        V(f"v_lshrrev_b32 v{vTmp}, 5, v{vL}", vTmp, [vL])
        V(f"v_lshlrev_b32 v{vTmp}, 3, v{vTmp}", vTmp, [vTmp])
        V(f"v_and_b32 v{vWQ}, 3, v{t2}", vWQ, [t2])
        V(f"v_add_u32 v{vTmp}, v{vTmp}, v{vWQ}", vTmp, [vTmp, vWQ])
        V(f"v_lshl_add_u32 v{vWQ}, v{vTmp}, 13, v{t3}", vWQ, [vTmp, t3])
        V(f"v_add_u32 v{vWQ}, s{sT0}, v{vWQ}", vWQ, [vWQ])
        V(f"v_add_u32 v{vWQ+1}, {16*8192-1024}, v{vWQ}", vWQ + 1, [vWQ])
        if cfg.krot:
            A.salu(f"s_lshr_b32 s{sT3}, s{sB}, 1")
            A.salu(f"s_min_u32 s{sT3}, s{sT3}, 13")
        else:
            A.salu(f"s_mov_b32 s{sT3}, 0")
        A.salu(f"s_lshl_b32 s{sWQK}, s{sT3}, 18")
        A.salu(f"s_sub_u32 s{sWQK}, s{sWQK}, 262144")
        A.salu(f"s_cselect_b32 s{sWQK}, {13*262144}, s{sWQK}")
        A.salu(f"s_lshl_b32 s{sT1}, s{sJ}, 2")
        A.salu(f"s_lshl_b32 s{sT2}, s{sG}, 8")
        A.salu(f"s_lshl_b32 s{sT3}, s{sT3}, 6")
        A.salu(f"s_add_u32 s{sT2}, s{sT2}, s{sT3}")
        V(f"v_add_u32 v8, s{sT1}, v{vG}", 8, [vG])
        V(f"v_xor_b32 v9, v8, v{vQ}", 9, [8, vQ])
        V(f"v_lshl_add_u32 v9, v9, 4, s{sT2}", 9, [9])
        V(f"v_mul_u32_u24 v8, 896, v8", 8, [8])
        for pair in range(2):
            if pair: V(f"v_add_u32 v9, 512, v9", 9, [9])
            V(f"v_subrev_u32 v10, 896, v9", 10, [9])
            V(f"v_min_u32 v10, v10, v9", 10, [10, 9])
            V(f"v_add_u32 v{vX+pair}, v8, v10", vX + pair, [8, 10])
        V(f"v_subrev_u32 v9, s{sT3}, v9", 9, [9])
        V(f"v_mov_b32 v10, 0x4000000", 10, [])
        V(f"v_cmp_gt_u32 vcc, 896, v9", [], [9])
        A.nop(2)
        V(f"v_cndmask_b32 v{vX+1}, v10, v{vX+1}, vcc", vX + 1, [10, vX + 1])
        A.raw("s_waitcnt lgkmcnt(0)")
        def fin(srd, off_s, nrec):
            A.salu(f"s_add_u32 s{srd}, s{srd}, s{off_s}")
            A.salu(f"s_addc_u32 s{srd+1}, s{srd+1}, 0")
            A.salu(f"s_and_b32 s{srd+1}, s{srd+1}, 0xffff")
            A.salu(f"s_mov_b32 s{srd+2}, {nrec}")
            A.salu(f"s_mov_b32 s{srd+3}, 0x20000")
        if cfg.order == 2: A.salu(f"s_and_b32 s3, s{sB}, 1")
        elif cfg.order == 3: A.salu(f"s_and_b32 s3, s{sHG}, 1")
        elif cfg.order == 4:
            A.salu(f"s_and_b32 s3, s{sB}, 7"); A.salu("s_cmp_lt_u32 s3, 3"); A.salu("s_cselect_b32 s3, 1, 0")
        elif cfg.order == 5:
            A.salu(f"s_and_b32 s3, s{sB}, 7"); A.salu("s_cmp_lt_u32 s3, 5"); A.salu("s_cselect_b32 s3, 1, 0")
        else: A.salu(f"s_mov_b32 s3, {cfg.order}")
        A.salu("s_cmp_eq_u32 s3, 1")
        A.salu(f"s_cselect_b64 s[{sX}:{sX+1}], s[14:15], s[4:5]")
        A.salu(f"s_cselect_b64 s[{sWQ}:{sWQ+1}], s[20:21], s[10:11]")
        A.salu(f"s_cselect_b64 s[{sNX}:{sNX+1}], s[4:5], s[14:15]")
        A.salu(f"s_cselect_b64 s[{sNWQ}:{sNWQ+1}], s[10:11], s[20:21]")
        A.salu(f"s_mul_i32 s{sT2}, s{sB}, 71680")
        fin(sX, sT2, 71680)
        A.salu(f"s_lshl_b32 s{sT1}, s{sHG}, 1")
        A.salu(f"s_add_u32 s{sT1}, s{sT1}, s{sG}")
        A.salu(f"s_lshl_b32 s{sT1}, s{sT1}, 9")
        A.salu(f"s_sub_u32 s{sT3}, {448*8192}, s{sT1}")
        fin(sWQ, sT1, f"s{sT3}")
        if cfg.stamp:
            V(f"v_mov_b32 v{vSTAMP}, 0", vSTAMP, [])
            A.salu(f"s_mov_b32 s{sSTI}, 0")
        if cfg.rt: A.raw(f"v_writelane_b32 v{vSTAMP}, s70, 63")
        self.stamp("start")
        self.m0slot = None
        for n in range(2):
            for pc in range(2): self.slot_dma("WQ", n & 1, ("WQ", n), n, pc, 0)
        if cfg.pro & 1: A.barrier()
        for t in range(5): self.x_dma(0, t)
        if cfg.pro & 2: A.barrier()
        for t in range(5):
            if cfg.cond: self.x_dma(1, t)
            else: self.x_load(1, t)
        fin(sNX, sT2, 71680)
        fin(sNWQ, sT1, f"s{sT3}")
        A.salu(f"s_mul_i32 s{sPOW}, s{sW}, 10240")
        c = 1.4426950408889634 / 16.0
        A.salu(f"s_mov_b32 s{sC}, {f32bits(c):#x}")
        A.salu(f"s_mov_b32 s{sC+1}, {f32bits(c):#x}")
        A.salu(f"s_mov_b32 s{sNC}, {f32bits(-c):#x}")
        A.salu(f"s_mov_b32 s{sPH}, 0")
        A.salu(f"s_mul_i32 s{sGR}, s{sG}, {4*RINGSZ}")
        for jj in range(4):
            A.salu(f"s_xor_b32 s{sCOL+jj}, s{sJ}, {jj}")
            A.salu(f"s_lshl_b32 s{sCOL+jj}, s{sCOL+jj}, 7")
        V(f"v_lshl_add_u32 v{vV}, v{t2}, 9, v{t3}", vV, [t2, t3])
        V(f"v_add_u32 v{vV}, s{sT0}, v{vV}", vV, [vV])
        V(f"v_add_u32 v{vV+1}, {4096-1024}, v{vV}", vV + 1, [vV])
        A.salu(f"s_lshl_b32 s{sT1}, s{sW}, 7")
        A.salu(f"s_cmp_eq_u32 s{sW}, 7")
        A.salu(f"s_cselect_b32 s{sT1}, 0x4000000, s{sT1}")
        V(f"v_mul_u32_u24 v{vWO}, 896, v{t2}", vWO, [t2])
        V(f"v_add3_u32 v{vWO}, v{vWO}, v{t3}, s{sT1}", vWO, [vWO, t3])
        V(f"v_add_u32 v{vWO+1}, {8*896-1024}, v{vWO}", vWO + 1, [vWO])
        V(f"v_xor_b32 v{t1}, v{t1}, v{vG}", t1, [t1, vG])
        V(f"v_lshlrev_b32 v{t1}, 4, v{t1}", t1, [t1])
        V(f"v_lshl_add_u32 v{vK}, v{t2}, 9, v{t1}", vK, [t2, t1])
        A.salu(f"s_lshl_b32 s{sT1}, s{sJ}, 16")
        V(f"v_add_u32 v{vK}, s{sT1}, v{vK}", vK, [vK])
        V(f"v_xor_b32 v{vK+1}, 64, v{vK}", vK + 1, [vK])
        V(f"v_add_u32 v{vK+1}, {4096-1024}, v{vK+1}", vK + 1, [vK + 1])
        V(f"v_lshrrev_b32 v{t1}, 2, v{vL}", t1, [vL])
        V(f"v_lshlrev_b32 v{t1}, 7, v{t1}", t1, [t1])
        V(f"v_bfe_u32 v{t2}, v{vL}, 3, 2", t2, [vL])
        V(f"v_lshl_add_u32 v{t1}, v{t2}, 5, v{t1}", t1, [t1, t2])
        V(f"v_and_b32 v{t2}, 3, v{vL}", t2, [vL])
        V(f"v_lshl_add_u32 v{t1}, v{t2}, 3, v{t1}", t1, [t1, t2])
        V(f"v_add_u32 v{vTR}, s{sRING}, v{t1}", vTR, [t1])
        for a in range(1, 4):
            V(f"v_xor_b32 v{vTR+a}, {a << 5}, v{vTR}", vTR + a, [vTR])
        V(f"v_lshrrev_b32 v{t1}, 1, v{vQ}", t1, [vQ])
        V(f"v_xor_b32 v{t1}, v{t1}, v{vG}", t1, [t1, vG])
        V(f"v_lshlrev_b32 v{t1}, 4, v{t1}", t1, [t1])
        V(f"v_lshl_add_u32 v{t1}, v{vQ}, 7, v{t1}", t1, [t1, vQ])
        V(f"v_add_u32 v{vKR}, s{sRING}, v{t1}", vKR, [t1])
        V(f"v_xor_b32 v{vKR+1}, 64, v{vKR}", vKR + 1, [vKR])
        V(f"v_xor_b32 v{t1}, v{vG}, v{vQ}", t1, [vG, vQ])
        V(f"v_lshlrev_b32 v{t1}, 4, v{t1}", t1, [t1])
        V(f"v_lshl_add_u32 v{vXR}, v{vQ}, 8, v{t1}", vXR, [vQ, t1])
        for u in range(1, 4):
            V(f"v_xor_b32 v{vXR+u}, {u << 6}, v{vXR}", vXR + u, [vXR])
        for u in range(2):
            V(f"v_add_u32 v{vXRh+u}, 61440, v{vXR+u}", vXRh + u, [vXR + u])
        V(f"v_lshlrev_b32 v{vLin0}, 4, v{vL}", vLin0, [vL])
        V(f"v_add_u32 v{vLin1}, {BREG}, v{vLin0}", vLin1, [vLin0])
        A.salu(f"s_mul_i32 s{sT1}, s{sG}, {BREG}")
        A.salu(f"s_mul_i32 s{sT2}, s{sJ}, 10240")
        A.salu(f"s_add_u32 s{sT2}, s{sT2}, s{sT1}")
        V(f"v_add_u32 v{vLinG}, s{sT1}, v{vLin0}", vLinG, [vLin0])
        A.salu(f"s_mul_i32 s{sT3}, s{sJ}, 5120")
        V(f"v_add_u32 v{vPW}, s{sT3}, v{vLinG}", vPW, [vLinG])
        V(f"v_lshrrev_b32 v{t1}, 1, v{vG}", t1, [vG])
        V(f"v_lshlrev_b32 v{t1}, 8, v{t1}", t1, [t1])
        V(f"v_and_b32 v{t2}, 1, v{vG}", t2, [vG])
        V(f"v_lshl_add_u32 v{t1}, v{t2}, 9, v{t1}", t1, [t1, t2])
        V(f"v_lshl_add_u32 v{t1}, v{vQ}, 4, v{t1}", t1, [t1, vQ])
        V(f"v_add_u32 v{vQW}, s{sT2}, v{t1}", vQW, [t1])
        V(f"v_lshlrev_b32 v{t1}, 3, v{vQ}", t1, [vQ])
        V(f"v_add_u32 v{vSW}, s{sRING}, v{t1}", vSW, [t1])
        A.salu(f"s_add_u32 s{sT1}, s{sGR}, {RING0}")
        V(f"v_add_u32 v{vSR}, s{sT1}, v{t1}", vSR, [t1])
        V(f"v_add_u32 v{vRW}, s{sXM0}, v{vLin0}", vRW, [vLin0])
        if cfg.krot:
            A.salu(f"s_lshr_b32 s{sT3}, s{sB}, 1")
            A.salu(f"s_and_b32 s{sT3}, s{sT3}, 14")
        else:
            A.salu(f"s_mov_b32 s{sT3}, 0")
        A.salu(f"s_lshl_b32 s{sT1}, s{sW}, 1")
        A.salu(f"s_sub_u32 s{sT1}, s{sT1}, s{sT3}")
        A.salu(f"s_and_b32 s{sT1}, s{sT1}, 15")
        A.salu(f"s_mul_i32 s{sT1}, s{sT1}, 5120")
        V(f"v_add_u32 v{vOW}, s{sT1}, v{vLin0}", vOW, [vLin0])
        A.salu(f"s_add_u32 s{sT3}, s{sT3}, 15")
        A.salu(f"s_and_b32 s{sT3}, s{sT3}, 15")
        A.salu(f"s_mul_i32 s{sWOK}, s{sT3}, {32*896}")
        A.salu(f"s_lshl_b32 s{sT1}, s{sB}, 3")
        A.salu(f"s_add_u32 s{sT1}, s{sT1}, s{sHG}")
        A.salu(f"s_lshl_b32 s{sT2}, s{sT1}, 18")
        A.salu(f"s_lshl_b32 s{sT3}, s{sG}, 13")
        A.salu(f"s_add_u32 s{sT2}, s{sT2}, s{sT3}")
        A.salu(f"s_sub_u32 s{sT3}, 262144, s{sT3}")
        A.salu(f"s_mov_b64 s[{sKV(0,0)}:{sKV(0,0)+1}], s[6:7]")
        A.salu(f"s_mov_b64 s[{sKV(0,1)}:{sKV(0,1)+1}], s[8:9]")
        fin(sKV(0, 0), sT2, f"s{sT3}"); fin(sKV(0, 1), sT2, f"s{sT3}")
        A.salu(f"s_lshl_b32 s{sT2}, s{sT1}, 1")
        A.salu(f"s_add_u32 s{sT2}, s{sT2}, s{sG}")
        A.salu(f"s_lshl_b32 s{sT2}, s{sT2}, 18")
        A.salu(f"s_mov_b64 s[{sKV(1,0)}:{sKV(1,0)+1}], s[16:17]")
        A.salu(f"s_mov_b64 s[{sKV(1,1)}:{sKV(1,1)+1}], s[18:19]")
        fin(sKV(1, 0), sT2, 262144); fin(sKV(1, 1), sT2, 262144)
        A.salu(f"s_mul_i32 s{sT2}, s{sHG}, {512*896}")
        A.salu(f"s_mov_b64 s[{sKV(0,2)}:{sKV(0,2)+1}], s[12:13]")
        A.salu(f"s_mov_b64 s[{sKV(1,2)}:{sKV(1,2)+1}], s[22:23]")
        fin(sKV(0, 2), sT2, 512 * 896); fin(sKV(1, 2), sT2, 512 * 896)
        for blk in range(2):
            A.salu(f"s_add_u32 s{sT2}, s{sT1}, {blk*256}")
            A.salu(f"s_mul_i32 s{sT2}, s{sT2}, 71680")
            A.salu(f"s_add_u32 s{sPOB(blk)}, s24, s{sT2}")
            A.salu(f"s_addc_u32 s{sPOB(blk)+1}, s25, 0")
            A.salu(f"s_and_b32 s{sPOB(blk)+1}, s{sPOB(blk)+1}, 0xffff")
        A.salu(f"s_mov_b64 s[{sPO}:{sPO+1}], s[{sPOB(0)}:{sPOB(0)+1}]")
        A.salu(f"s_mov_b32 s{sPO+2}, 0")
        A.salu(f"s_mov_b32 s{sPO+3}, 0x20000")
        if "now" in cfg.hack:
            for r in (sWQ, sNWQ, sKV(0, 2), sKV(1, 2)): A.salu(f"s_mov_b32 s{r+2}, 0")
        if "nokv" in cfg.hack:
            for r in (sKV(0, 0), sKV(0, 1), sKV(1, 0), sKV(1, 1)): A.salu(f"s_mov_b32 s{r+2}, 0")
        if "nox" in cfg.hack:
            A.salu(f"s_mov_b32 s{sNX+2}, 0")
        if cfg.prio:
            A.salu(f"s_cmp_eq_u32 s{sG}, 0")
            A.salu("s_cbranch_scc1 L_noprio")
            A.salu(f"s_setprio {cfg.prio}")
            A.label("L_noprio")
        if cfg.early:
            assert cfg.order == 2
            R_ = A.salu
            R_("s_load_dwordx4 s[4:7], s[0:1], 80")
            R_(f"s_lshl_b32 s{sT0}, s3, 5"); R_(f"s_add_u32 s{sT0}, s{sT0}, s{sB}")
            R_(f"s_mul_i32 s{sT0}, s{sT0}, {8*71680}")
            R_(f"s_add_u32 s16, s24, s{sT0}"); R_("s_addc_u32 s17, s25, 0"); R_("s_and_b32 s17, s17, 0xffff")
            R_(f"s_mov_b32 s18, {8*71680}"); R_("s_mov_b32 s19, 0x20000")
            R_(f"s_lshl_b32 s{sT0}, s{sHG}, 3"); R_(f"s_add_u32 s{sT0}, s{sT0}, s{sW}")
            R_(f"s_lshl_b32 s20, s{sT0}, 10")
            R_(f"s_lshl_b32 s23, s{sB}, 6"); R_(f"s_add_u32 s23, s23, s{sT0}"); R_("s_lshl_b32 s23, s23, 2")
            R_("s_add_u32 s23, s23, 0x4000000")
            R_(f"s_mul_i32 s{sT1}, s{sT0}, 205"); R_(f"s_lshr_b32 s{sT1}, s{sT1}, 10")
            R_(f"s_mul_i32 s{sT2}, s{sT1}, 5"); R_(f"s_sub_u32 s{sT2}, s{sT0}, s{sT2}")
            R_(f"s_mul_i32 s21, s{sB}, 80"); R_(f"s_lshl_b32 s{sT2}, s{sT2}, 4"); R_(f"s_add_u32 s21, s21, s{sT2}")
            R_("s_mul_i32 s21, s21, 1792"); R_(f"s_mul_i32 s{sT2}, s3, 896"); R_(f"s_add_u32 s21, s21, s{sT2}")
            R_(f"s_lshl_b32 s{sT1}, s{sT1}, 6"); R_(f"s_add_u32 s21, s21, s{sT1}")
            R_("s_mov_b32 s22, 0")
            R_(f"s_cmp_eq_u32 s{sW}, 0"); R_(f"s_cselect_b32 s{sSIG}, 1, 2")
            R_(f"s_lshl_b32 s{sT0}, s{sB}, 2")
            V(f"v_mov_b32 v{vT1}, s{sT0}", vT1, [])
            V(f"v_mov_b32 v{vT0}, 1", vT0, [])
        for n in range(2, 5):
            for pc in range(2): self.slot_dma("WQ", n & 1, ("WQ", n), n, pc, 0)
        if cfg.early:
            A.raw("s_waitcnt lgkmcnt(0)")
            R_("s_mov_b32 s8, s6"); R_("s_and_b32 s9, s7, 0xffff"); R_("s_mov_b32 s10, 256"); R_("s_mov_b32 s11, 0x20000")
            R_("s_mov_b32 s12, s4"); R_("s_and_b32 s13, s5, 0xffff"); R_(f"s_mov_b32 s14, {32*80*896*2}"); R_("s_mov_b32 s15, 0x20000")
        A.wait_vm_tag(("WQ", 1))
        for y in range(2):
            for a in range(4):
                A.ds_read("ds_read_b64_tr_b16", A_tr(0, a) + 2 * y, 2, vTR + a, y * 2048)
        A.wait_vm_tag(("x", 0))
        A.wait_lgkm_all()
        self.bar("AB1")
        for b in range(5): A.ds_read("ds_read_b128", B_tr(b), 4, vXR, b * 4096)
        for n in range(5, 7):
            for pc in range(2): self.slot_dma("WQ", n & 1, ("WQ", n), n % 5, pc, 0)
        A.wait_lgkm_all()
        self.canon_vm = [e for e in A.vm if e[0][0] == "WQ"]
        assert [e[0][1] for e in self.canon_vm] == [2, 2, 3, 3, 4, 4, 5, 5, 6, 6]
        self.canon_lgkm = None
        A.salu("s_cmp_eq_u32 s3, 1")
        A.salu("s_cbranch_scc1 L_body1")

    def wq_off(self, n):
        return n & 1

    def x_dma(self, pair, t):
        A = self.A
        A.salu(f"s_mov_b32 s{sOFF}, {t * 14336}")
        A.salu(f"s_add_u32 m0, s{sXM0}, {pair * 40960 + t * 4096}", m0=True)
        self.m0slot = None
        A.dma(vX + pair, sX, sOFF, flags=self.cfg.x_flags, tag=("x", pair))

    def skip_begin(self, ph):
        self.nlab = getattr(self, "nlab", 0) + 1
        self.A.salu(f"s_cmp_eq_u32 s{sPH}, {ph}")
        self.A.salu(f"s_cbranch_scc1 L_sk{self.nlab}")

    def skip_end(self):
        self.A.label(f"L_sk{self.nlab}")

    def cond_block(self, cmp, lines):
        self.nlab = getattr(self, "nlab", 0) + 1
        A = self.A
        A.salu(cmp)
        A.salu(f"s_cbranch_scc0 L_sk{self.nlab}")
        for l in lines: A.raw(l, 0)
        A.label(f"L_sk{self.nlab}")

    def x_load_c(self, pair, t):
        A = self.A
        r = ACC + 80 + (pair * 5 + t) * 4
        A._mem_ready(rng(r, 4)); A._haz("mem", [vX + pair], rng(r, 4))
        self.skip_begin(1)
        A.raw(f"s_mov_b32 s{sT0}, {t * 14336}", 0)
        A.raw(f"buffer_load_dwordx4 v[{r}:{r+3}], v{vX+pair}, s[{sX}:{sX+3}], s{sT0} offen {self.cfg.x_flags}", 0)
        self.skip_end()

    def x_write_c(self, pair, t):
        A = self.A
        r = ACC + 80 + (pair * 5 + t) * 4
        if len(A.lgkm) >= 13: A._wait_lgkm_idx(len(A.lgkm) - 13)
        self.skip_begin(1 - pair)
        A.raw(f"ds_write_b128 v{vRW}, v[{r}:{r+3}] offset:{pair * 40960 + t * 4096}", 0)
        self.skip_end()
        self.xw_mark = True

    def x_load(self, pair, t):
        A = self.A
        A.salu(f"s_mov_b32 s{sOFF}, {t * 14336}")
        self.m0slot = None
        A.bload(ACC + 80 + (pair * 5 + t) * 4, 4, vX + pair, sX, sOFF, flags=self.cfg.x_flags, tag=("xr", pair))

    def x_write(self, pair, t):
        self.A.ds_write("ds_write_b128", vRW, ACC + 80 + (pair * 5 + t) * 4, 4, pair * 40960 + t * 4096, tag=("xw", pair))

    def store_po_cond(self, i, b, flags):
        A = self.A
        self.nlab = getattr(self, "nlab", 0) + 1
        r = ACC + 120 + (i * 5 + b) * 4
        A.salu(f"s_cmp_eq_u32 s{sPH}, 0")
        A.salu(f"s_cbranch_scc1 L_sk{self.nlab}")
        A.raw(f"s_add_u32 s{sT0}, s{sPOW}, {(i * 5 + b) * 1024}", 0)
        A.raw(f"buffer_store_dwordx4 v[{r}:{r+3}], v{vLin0}, s[{sPO}:{sPO+3}], s{sT0} offen {flags}", 0)
        A.label(f"L_sk{self.nlab}")

    def store_po(self, i, b, flags):
        A = self.A
        A.salu(f"s_add_u32 s{sT0}, s{sPOW}, {(i * 5 + b) * 1024}")
        A.bstore(ACC + 120 + (i * 5 + b) * 4, 4, vLin0, sPO, sT0, flags=flags, tag="po")

    def set_off(self, typ, off, adv):
        A = self.A
        if typ in ("WQ", "WO"):
            reg, step, cnt, ystep = (sWQK, 262144, 14, 32768) if typ == "WQ" else (sWOK, 32 * 896, 16, 16 * 896)
            if adv and off == 0:
                A.salu(f"s_add_u32 s{reg}, s{reg}, {step}")
                A.salu(f"s_sub_u32 s{sOFF}, s{reg}, {step * cnt}")
                A.salu(f"s_cselect_b32 s{reg}, s{reg}, s{sOFF}")
            A.salu(f"s_add_u32 s{sOFF}, s{reg}, {off * ystep}")
        elif typ == "K": A.salu(f"s_add_u32 s{sOFF}, s{sCOL+off[1]}, {off[0]}")
        else: A.salu(f"s_mov_b32 s{sOFF}, {off}")

    def slot_dma(self, typ, off, key, phys, pc, blk):
        A = self.A; cfg = self.cfg
        vo, srd, fl = {"WQ": (vWQ, sWQ, cfg.w_flags), "K": (vK, sKV(blk, 0), cfg.kv_flags),
                       "V": (vV, sKV(blk, 1), cfg.kv_flags), "WO": (vWO, sKV(blk, 2), cfg.w_flags)}[typ]
        if pc == 0 or self.m0slot != key:
            self.set_off(typ, off, pc == 0)
            A.salu(f"s_add_u32 m0, s{sRING}, {phys * 2048}", m0=True)
            self.m0slot = key
        A.dma(vo + pc, srd, sOFF, off=1024 * pc, flags=fl, tag=key)

    def cvt(self, dst, a, b):
        self.A.valu(f"v_cvt_pk_bf16_f32 v{dst}, v{a}, v{b}", [dst], [a, b])

    def body(self, blk):
        A = self.A; V = self.V; cfg = self.cfg; R = cfg.R; cvt = self.cvt
        assert R == 5
        shared = (blk == 0)
        A.label(f"L_body{blk}")
        A.vm = list(self.canon_vm)
        can_l = []
        for a in range(4): can_l.append((None, set(rng(A_tr(0, a), 2))))
        for a in range(4): can_l.append((None, set(rng(A_tr(0, a) + 2, 2))))
        for b in range(5): can_l.append((None, set(rng(B_tr(b), 4))))
        A.lgkm = list(can_l)
        A.vw = {}; A.mfma_c_read = {}
        self.m0slot = None
        nm = "AB"[blk]
        units = [(jj, 4 * r + k) for r in range(2) for jj in range(4) for k in range(4)]
        use = {}; phys = {}; order = []
        def add(key, typ, off):
            use[key] = (typ, off); order.append(key)
        for n in range(2, 28):
            add(("WQ", n), "WQ", n & 1); phys["WQ", n] = n % 5
        nK = 16 if shared else 32
        for i in range(nK):
            jj, kt = units[2 * i] if shared else units[i]
            add(("K", i), "K", (kt * 8192, jj))
        kpreg = {}
        add(("SCR", 0), "SCR", 0)
        for ks in range(16):
            t, w = divmod(ks, 4)
            key0 = 128 * w + 32 * t
            if shared: add(("V", ks), "V", key0 * 512)
            else:
                for y in range(2): add(("V", 2 * ks + y), "V", (key0 + 16 * y) * 512)
        for n in range(32): add(("WO", n), "WO", n & 1)
        for n in range(7): add(("NWQ", n), "WQ", n & 1)
        T = order[order.index(("K", 0)):]
        for i, key in enumerate(T): phys[key] = (i - (len(T) - 7)) % 5
        slotq = [deque(k for k in order if phys[k] == p) for p in range(5)]
        issued = set(("WQ", n) for n in range(7)); avail = set()
        side = deque(); vq = deque(); slow = deque()
        st = {"wq_left": 21, "pr": 0}

        def issue(key, pc):
            typ, off = use[key]
            self.slot_dma(typ, off, key, phys[key], pc, blk)
            if pc == 1:
                issued.add(key)
                if key[0] == "WQ":
                    st["wq_left"] -= 1
                    if st["wq_left"] == 0: switch_srd()

        def switch_srd():
            A.salu(f"s_mov_b64 s[{sX}:{sX+1}], s[{sNX}:{sNX+1}]")
            A.salu(f"s_mov_b32 s{sX+2}, s{sNX+2}")
            A.salu(f"s_mov_b64 s[{sWQ}:{sWQ+1}], s[{sNWQ}:{sNWQ+1}]")
            A.salu(f"s_mov_b32 s{sWQ+2}, s{sNWQ+2}")
            A.salu(f"s_mov_b32 s{sNX+2}, 0")
            A.salu(f"s_mov_b32 s{sNWQ+2}, 0")

        def release(key):
            q = slotq[phys[key]]
            assert q[0] == key, (key, q[0])
            q.popleft()
            if not q: return
            nx = q[0]
            if nx[0] == "SCR": avail.add(nx)
            else:
                side.append(lambda: issue(nx, 0)); side.append(lambda: issue(nx, 1))

        def pump(q, k=1):
            for _ in range(k):
                if q: q.popleft()()

        def flush(q):
            while q: q.popleft()()

        def need(key):
            while key not in issued:
                assert side, key
                side.popleft()()
            A.wait_vm_tag(key)

        def tr_read(par, a, y, off, tag):
            A.ds_read("ds_read_b64_tr_b16", A_tr(par, a) + 2 * y, 2, vTR + a, off, tag=tag)

        def offs(typ, s, y, sh):
            return (phys[typ, s] * 2048 + y * 4 * RINGSZ) if sh else phys[typ, 2 * s + y] * 2048

        def prio():
            if cfg.fair:
                A.salu(f"s_setprio {3 - st['pr'] % 4}"); st["pr"] += 1

        def kstep(par, czero, nx, bread, cur_sh=None, barrier=False, pub=None, after=None, extra=None, tail=None, label=None):
            typ, s, sh = nx
            for p in range(20):
                b, a = divmod(p, 4)
                if p == 0:
                    if label and label[0] in cfg.kst.split(","): self.stamp(nm + label[0] + str(label[1]))
                    if not sh: prio()
                    need((typ, s) if sh else (typ, 2 * s))
                    if pub:
                        if pub[0] == "xw": assert not slow
                        flush(vq); flush(slow); A.wait_lgkm_tag(pub)
                    if sh or barrier or pub:
                        if cur_sh: A.wait_lgkm_tag(("rd",) + cur_sh)
                        A.barrier()
                        if cur_sh: release(cur_sh)
                    if after: after()
                if p == cfg.ypos and not sh: need((typ, 2 * s + 1))
                A.mfma(ACC + (a * 5 + b) * 4, A_tr(par, a), B_tr(b), czero=czero)
                if sh: yy = (p >> 1, p & 1) if p < 4 else None
                else: yy = (0, p) if p < 2 else ((1, p - cfg.ypos) if 0 <= p - cfg.ypos < 2 else None)
                if yy:
                    y, hh = yy
                    for a2 in (hh * 2, hh * 2 + 1):
                        tr_read(par ^ 1, a2, y, offs(typ, s, y, sh), ("rd", typ, s) if sh else ("rd", typ, 2 * s + y))
                if a == 3 and bread: bread(b)
                if a == 1 and extra: extra(b)
                if not sh:
                    for y, rp in ((0, cfg.relx), (1, cfg.ypos + cfg.relx)):
                        if p == rp:
                            A.wait_lgkm_tag(("rd", typ, 2 * s + y))
                            release((typ, 2 * s + y))
                if p >= 2: pump(side, cfg.npump)
                if p in (8, 18): pump(slow)
                if tail and a == 3 and b >= 1: tail(b - 1)
                pump(vq, 3 if tail else 1)
            if tail:
                tail(4); flush(vq)

        def joint(nx, BX, done, cur_sh=None, hooks={}):
            typ, s, sh = nx
            groups = [(0, 0), (0, 1), (1, 0), (0, 2), (1, 1), (0, 3), (1, 2), (0, 4), (1, 3), (1, 4)]
            pend = None
            for gi, (o, b) in enumerate(groups):
                for a in range(4):
                    p = gi * 4 + a
                    if p == 0:
                        if not sh: prio()
                        need((typ, s) if sh else (typ, 2 * s))
                        if sh:
                            A.wait_lgkm_tag(("rd",) + cur_sh)
                            A.barrier()
                            release(cur_sh)
                    if p == 2 and not sh: need((typ, 2 * s + 1))
                    if p == 20 and not sh: prio()
                    if p == 8:
                        A.wait_lgkm_all()
                        if not sh:
                            release((typ, 2 * s)); release((typ, 2 * s + 1))
                        A.barrier()
                        if sh: release((typ, s))
                    A.mfma(ACC + (a * 5 + b) * 4, A_tr(o, a), (BX + 4 * b) if o else B_tr(b))
                    if p < 4:
                        y, hh = p >> 1, p & 1
                        for a2 in (hh * 2, hh * 2 + 1):
                            tr_read(1, a2, y, offs(typ, s, y, sh), None)
                    if p in hooks: hooks[p]()
                    if p >= 4: pump(side, cfg.npump)
                    if a == 2 and pend is not None:
                        done(pend); pend = None
                    pump(vq, 3)
                if o: pend = b
            done(pend); flush(vq)
            if cfg.fair: A.salu("s_setprio 0")

        def prefetch_A(typ, sh=False):
            if not sh:
                need((typ, 0)); need((typ, 1))
            for y in range(2):
                for a in range(4): tr_read(0, a, y, offs(typ, 0, y, sh), ("rd", typ, 0))

        def pair_cvt(i, b, q):
            r0 = ACC + ((2 * i) * 5 + b) * 4; r1 = ACC + ((2 * i + 1) * 5 + b) * 4
            for (d, x) in ((r0, r0), (r0 + 1, r0 + 2), (r0 + 2, r1), (r0 + 3, r1 + 2)):
                q.append(lambda d=d, x=x: cvt(d, x, x + 1))
            return r0

        def read_x(ks, b, dst):
            cidx, u = divmod(ks, 4)
            if cidx < 3: A.ds_read("ds_read_b128", dst, 4, vXR + u, cidx * 20480 + b * 4096)
            else: A.ds_read("ds_read_b128", dst, 4, vXRh + u, b * 4096)
        def q_after1():
            for t in range(5): slow.append(lambda t=t: (self.x_write_c if cfg.cond else self.x_write)(1, t))
        BXQ = ACC + 80
        stq = deque((i, b) for i in range(2) for b in range(5))
        for s in range(12):
            def ex(b, s=s):
                if s == 10: read_x(13, b, BXQ + 4 * b)
                if b == 3 and s >= cfg.st0 and stq: self.store_po_cond(*stq.popleft(), cfg.po_flags)
            kstep(s & 1, s == 0, ("WQ", s + 1, False), lambda b, s=s: read_x(s + 1, b, B_tr(b)),
                  barrier=(s == 1), after=(q_after1 if s == 1 else None), pub=(("xw", 1) if s == 7 else None),
                  extra=ex, label=("WQ", s))
        assert not stq
        def set_qr(jj):
            A.salu(f"s_mul_i32 s{sT0}, s{sCOL+jj}, 80")
            V(f"v_add_u32 v{vQR}, s{sT0}, v{vLinG}", vQR, [vLinG])
        def k_off(u):
            if shared: return phys["K", u >> 1] * 2048 + (u & 1) * 4 * RINGSZ
            return phys["K", u] * 2048
        def k_read(u, s):
            A.ds_read("ds_read_b128", A_s(u & 1, s), 4, vKR + s, k_off(u), tag=("rk", u))
        def done_q(b):
            for i in range(2):
                r0 = pair_cvt(i, b, vq)
            for i in range(2):
                r0 = ACC + ((2 * i) * 5 + b) * 4
                for e in range(2):
                    vq.append(lambda r=r0 + e: A.valu(f"v_permlane16_swap_b32 v{r}, v{r+2}", [r, r + 2], [r, r + 2], kind="perm"))
            for i in range(2):
                r0 = ACC + ((2 * i) * 5 + b) * 4
                vq.append(lambda r0=r0, i=i: A.ds_write("ds_write_b128", vQW, r0, 4, (i * 5 + b) * 1024))
        def q_h10():
            set_qr(0)
            if shared:
                for s in range(2): V(f"v_subrev_u32 v{vKR+s}, s{sGR}, v{vKR+s}", vKR + s, [vKR + s])
        self.stamp(nm + "Qj")
        joint(("WQ", 13, False), BXQ, done_q, hooks={10: q_h10})
        flush(side)
        need(("K", 0))
        if shared:
            A.wait_lgkm_all()
            self.bar(nm + "B4")
            for s in range(2): k_read(0, s)
        else:
            for s in range(2): k_read(0, s)
            A.wait_lgkm_all()
            release(("K", 0))
            self.bar(nm + "B4")
        if cfg.early and not cfg.noearly:
            self.cond_block(f"s_cmp_eq_u32 s{sPH}, s{sSIG}", ["s_mov_b64 exec, 1",
                f"buffer_atomic_add v{vT0}, v{vT1}, s[8:11], 0 offen sc1", "s_mov_b64 exec, -1"])
        for s in range(2):
            for b in range(5):
                A.ds_read("ds_read_b128", B_s(s, b), 4, vQR, (s * 5 + b) * 1024)
        def acc_s(kt, b): return ACC + (kt * 5 + b) * 4
        NM1 = lambda b: BORROW[b]
        L1 = lambda b: BORROW[5 + b]
        smq = deque()
        def q_max(kt):
            for b in range(5):
                r = acc_s(kt, b); m = vM + b
                if kt == 0:
                    smq.append(lambda r=r, m=m: V(f"v_max3_f32 v{m}, v{r}, v{r+1}, v{r+2}", m, [r, r+1, r+2]))
                    smq.append(lambda r=r, m=m: V(f"v_max_f32 v{m}, v{m}, v{r+3}", m, [m, r+3]))
                else:
                    smq.append(lambda r=r, m=m: V(f"v_max3_f32 v{m}, v{m}, v{r}, v{r+1}", m, [m, r, r+1]))
                    smq.append(lambda r=r, m=m: V(f"v_max3_f32 v{m}, v{m}, v{r+2}, v{r+3}", m, [m, r+2, r+3]))
        def q_round1():
            for sw in ("v_permlane32_swap_b32", "v_permlane16_swap_b32"):
                for b in range(5): smq.append(lambda b=b: V(f"v_mov_b32 v{L1(b)}, v{vM+b}", L1(b), [vM + b]))
                for b in range(5): smq.append(lambda b=b, sw=sw: A.valu(f"{sw} v{vM+b}, v{L1(b)}", [vM + b, L1(b)], [vM + b, L1(b)], kind="perm"))
                for b in range(5): smq.append(lambda b=b: V(f"v_max_f32 v{vM+b}, v{vM+b}, v{L1(b)}", vM + b, [vM + b, L1(b)]))
            for b in range(5): smq.append(lambda b=b: V(f"v_mul_f32 v{NM1(b)}, s{sNC}, v{vM+b}", NM1(b), [vM + b]))
            for kt in range(4):
                for b in range(5):
                    r = acc_s(kt, b)
                    for e in range(4): smq.append(lambda x=r+e, b=b: V(f"v_fma_f32 v{x}, v{x}, s{sC}, v{NM1(b)}", x, [x, NM1(b)]))
                    for e in range(4): smq.append(lambda x=r+e: A.valu(f"v_exp_f32 v{x}, v{x}", [x], [x], kind="trans"))
                    if kt == 0:
                        smq.append(lambda r=r, b=b: V(f"v_add_f32 v{L1(b)}, v{r}, v{r+1}", L1(b), [r, r + 1]))
                        rest = (2, 3)
                    else: rest = (0, 1, 2, 3)
                    for e in rest: smq.append(lambda x=r+e, b=b: V(f"v_add_f32 v{L1(b)}, v{L1(b)}, v{x}", L1(b), [L1(b), x]))
        for u in range(32):
            jj, kt = units[u]
            par = u & 1
            nxt = u + 1 < 32
            last_in_pass = (kt & 3) == 3
            for p in range(10):
                s, b = divmod(p, 5)
                if p == 0 and cfg.fairs and not shared and u % cfg.fairs == 0: A.salu(f"s_setprio {3 - (u // cfg.fairs) % 4}")
                if nxt and p == 0:
                    if shared:
                        if u & 1:
                            need(("K", (u + 1) // 2))
                            A.wait_lgkm_tag(("rk", u))
                            if "nobar" not in cfg.hack: A.barrier()
                            release(("K", u // 2))
                    else:
                        need(("K", u + 1))
                A.mfma(acc_s(kt, b), A_s(par, s), B_s(s, b), czero=(jj == 0 and s == 0))
                if nxt and p < 2: k_read(u + 1, p)
                if (kt & 3) == 2 and p == 9 and u + 2 < 32: set_qr(units[u + 2][0])
                if last_in_pass and nxt:
                    A.ds_read("ds_read_b128", B_s(s, b), 4, vQR, (s * 5 + b) * 1024)
                if nxt and p == cfg.s_rel_pos and not shared:
                    A.wait_lgkm_tag(("rk", u + 1))
                    release(("K", u + 1))
                if p >= 2: pump(side, cfg.npump)
                if p >= 4 or u > 16: pump(smq, cfg.sm_per)
            if jj == 3: q_max(kt)
            if u == 15: q_round1()
        flush(side); flush(smq)
        if cfg.fairs and not shared: A.salu("s_setprio 0")
        self.stamp(nm + "Sdone")
        ML = lambda b: 176 + 2 * b
        NMC = lambda b: 186 + 2 * b
        LS = lambda b: 196 + 2 * b
        TT = lambda b: 206 + b
        def xl_reduce(src, dst, op):
            for b in range(5): V(f"v_mov_b32 v{TT(b)}, v{src(b)}", TT(b), [src(b)])
            for b in range(5): A.valu(f"v_permlane32_swap_b32 v{src(b)}, v{TT(b)}", [src(b), TT(b)], [src(b), TT(b)], kind="perm")
            for b in range(5): V(f"{op} v{src(b)}, v{src(b)}, v{TT(b)}", src(b), [src(b), TT(b)])
            for b in range(5): V(f"v_mov_b32 v{TT(b)}, v{src(b)}", TT(b), [src(b)])
            for b in range(5): A.valu(f"v_permlane16_swap_b32 v{src(b)}, v{TT(b)}", [src(b), TT(b)], [src(b), TT(b)], kind="perm")
            for b in range(5): V(f"{op} v{dst(b)}, v{src(b)}, v{TT(b)}", dst(b), [src(b), TT(b)])
        xl_reduce(lambda b: vM + b, ML, "v_max_f32")
        for b in range(5): V(f"v_mul_f32 v{NMC(b)}, s{sNC}, v{ML(b)}", NMC(b), [ML(b)])
        for b in range(5): V(f"v_sub_f32 v{NM1(b)}, v{NMC(b)}, v{NM1(b)}", NM1(b), [NMC(b), NM1(b)])
        for b in range(5): A.valu(f"v_exp_f32 v{NM1(b)}, v{NM1(b)}", [NM1(b)], [NM1(b)], kind="trans")
        for kt in (range(4, 5) if "nosm" in cfg.hack else range(4, 8)):
            for b in range(5):
                r = acc_s(kt, b)
                for h in range(2):
                    x = r + 2 * h
                    A.valu(f"v_pk_fma_f32 v[{x}:{x+1}], v[{x}:{x+1}], s[{sC}:{sC+1}], v[{NMC(b)}:{NMC(b)+1}] op_sel_hi:[1,0,0]",
                           [x, x + 1], [x, x + 1, NMC(b)])
            for b in range(5):
                r = acc_s(kt, b)
                for e in range(4):
                    A.valu(f"v_exp_f32 v{r+e}, v{r+e}", [r + e], [r + e], kind="trans")
            for b in range(5):
                r = acc_s(kt, b); l = LS(b)
                if kt == 4:
                    A.valu(f"v_pk_add_f32 v[{l}:{l+1}], v[{r}:{r+1}], v[{r+2}:{r+3}]", [l, l + 1], rng(r, 4))
                else:
                    A.valu(f"v_pk_add_f32 v[{l}:{l+1}], v[{l}:{l+1}], v[{r}:{r+1}]", [l, l + 1], [l, l + 1, r, r + 1])
            if kt > 4:
                for b in range(5):
                    r = acc_s(kt, b); l = LS(b)
                    A.valu(f"v_pk_add_f32 v[{l}:{l+1}], v[{l}:{l+1}], v[{r+2}:{r+3}]", [l, l + 1], [l, l + 1, r + 2, r + 3])
        for b in range(5): V(f"v_add_f32 v{LS(b)}, v{LS(b)}, v{LS(b)+1}", LS(b), [LS(b), LS(b) + 1])
        for b in range(5): V(f"v_fmac_f32 v{LS(b)}, v{L1(b)}, v{NM1(b)}", LS(b), [LS(b), L1(b), NM1(b)])
        xl_reduce(LS, lambda b: ML(b) + 1, "v_add_f32")
        assert ("SCR", 0) in avail
        so = phys["SCR", 0] * 2048
        A.salu("s_mov_b64 exec, 0xffff")
        for b in range(5):
            A.ds_write("ds_write_b64", vSW, ML(b), 2, so + b * 128)
        A.salu("s_mov_b64 exec, -1")
        if shared: need(("V", 0))
        A.wait_lgkm_all()
        self.bar(nm + "B5")
        if shared:
            release(("K", 15)); flush(side)
        RB = lambda b: [160, 168, 176, 196, 204][b]
        for b in range(5):
            for jj in range(4):
                A.ds_read("ds_read_b64", RB(b) + 2 * jj, 2, vSR, jj * RINGSZ + so + b * 128)
        MX = lambda b: vM + b
        for b in range(5):
            r = RB(b)
            V(f"v_max3_f32 v{MX(b)}, v{r}, v{r+2}, v{r+4}", MX(b), [r, r + 2, r + 4])
            V(f"v_max_f32 v{MX(b)}, v{MX(b)}, v{r+6}", MX(b), [MX(b), r + 6])
            V(f"v_mul_f32 v{MX(b)}, s{sNC}, v{MX(b)}", MX(b), [MX(b)])
            for jj in range(4):
                V(f"v_fma_f32 v{r+2*jj}, v{r+2*jj}, s{sC}, v{MX(b)}", r + 2 * jj, [r + 2 * jj, MX(b)])
            V(f"v_sub_f32 v{NMC(b)}, v{MX(b)}, v{NMC(b)}", NMC(b), [MX(b), NMC(b)])
        for b in range(5):
            r = RB(b)
            for jj in range(4):
                A.valu(f"v_exp_f32 v{r+2*jj}, v{r+2*jj}", [r + 2 * jj], [r + 2 * jj], kind="trans")
            A.valu(f"v_exp_f32 v{NMC(b)}, v{NMC(b)}", [NMC(b)], [NMC(b)], kind="trans")
        for b in range(5):
            r = RB(b)
            V(f"v_mul_f32 v{MX(b)}, v{r}, v{r+1}", MX(b), [r, r + 1])
            for jj in range(1, 4):
                V(f"v_fmac_f32 v{MX(b)}, v{r+2*jj}, v{r+2*jj+1}", MX(b), [MX(b), r + 2 * jj, r + 2 * jj + 1])
        for b in range(5):
            A.valu(f"v_rcp_f32 v{MX(b)}, v{MX(b)}", [MX(b)], [MX(b)], kind="trans")
        for b in range(5):
            V(f"v_mul_f32 v{MX(b)}, v{MX(b)}, v{NMC(b)}", MX(b), [MX(b), NMC(b)])
        for b in range(5):
            V(f"v_mul_f32 v{NMC(b)}, v{MX(b)}, v{NM1(b)}", NMC(b), [MX(b), NM1(b)])
        if shared:
            for s in range(2): V(f"v_add_u32 v{vKR+s}, s{sGR}, v{vKR+s}", vKR + s, [vKR + s])
            V(f"v_subrev_u32 v{vTR}, s{sGR}, v{vTR}", vTR, [vTR])
        for a in range(1, 4): V(f"v_xor_b32 v{vTR+a}, {a << 5}, v{vTR}", vTR + a, [vTR])
        prefetch_A("V", sh=shared)
        def writeP(i, b, tag=None):
            A.ds_write("ds_write_b128", vPW, acc_s(2 * i, b), 4, (i & 1) * 20480 + b * 1024, tag=tag)
        for i in range(2):
            for b in range(5):
                r0 = acc_s(2 * i, b); r1 = acc_s(2 * i + 1, b); f = NMC(b)
                for x in (r0, r0 + 2, r1, r1 + 2):
                    A.valu(f"v_pk_mul_f32 v[{x}:{x+1}], v[{x}:{x+1}], v[{f}:{f+1}] op_sel_hi:[1,0]", [x, x + 1], [x, x + 1, f])
                cvt(r0, r0, r0 + 1); cvt(r0 + 1, r0 + 2, r0 + 3); cvt(r0 + 2, r1, r1 + 1); cvt(r0 + 3, r1 + 2, r1 + 3)
                writeP(i, b)
        A.wait_lgkm_all()
        self.bar(nm + "B6")
        release(("SCR", 0))
        for u in range(1, 4): vq.append(lambda u=u: V(f"v_xor_b32 v{vXR+u}, {u << 6}, v{vXR}", vXR + u, [vXR]))
        for u in range(2): vq.append(lambda u=u: V(f"v_add_u32 v{vXRh+u}, 61440, v{vXR+u}", vXRh + u, [vXR + u]))
        vq.append(lambda: V(f"v_add_u32 v{vWQ+1}, {16*8192-1024}, v{vWQ}", vWQ + 1, [vWQ]))
        vq.append(lambda: V(f"v_add_u32 v{vWO+1}, {8*896-1024}, v{vWO}", vWO + 1, [vWO]))
        vq.append(lambda: V(f"v_add_u32 v{vLin1}, {BREG}, v{vLin0}", vLin1, [vLin0]))
        def q_pack(i):
            for b in range(5):
                r0 = acc_s(2 * i, b); r1 = acc_s(2 * i + 1, b)
                for x in rng(r0, 4) + rng(r1, 4):
                    vq.append(lambda x=x, b=b: V(f"v_mul_f32 v{x}, v{x}, v{MX(b)}", x, [x, MX(b)]))
                for (d, x) in ((r0, r0), (r0 + 1, r0 + 2), (r0 + 2, r1), (r0 + 3, r1 + 2)):
                    vq.append(lambda d=d, x=x: cvt(d, x, x + 1))
        q_pack(2)
        def q_write(i):
            for b in range(5): slow.append(lambda b=b: writeP(i, b, tag=("pw", i)))
        def at4():
            flush(vq); q_write(2); q_pack(3)
        def at8():
            q_write(3)
            if cfg.early:
                A.rfl(22, vQR)
                A.nop(2)
        def read_p(ks, b, dst):
            A.ds_read("ds_read_b128", dst, 4, vLinG, ((ks & 7) * 5 + b) * 1024)
        for b in range(5): read_p(0, b, B_tr(b))
        if cfg.early: A.bload(vQR, 1, vT1, 8, "0", flags="sc1", tag="chk")
        if not shared:
            release(("V", 0)); release(("V", 1))
        BXP = ACC + 140
        for s in range(14):
            kstep(s & 1, s == 0, ("V", s + 1, shared), lambda b, s=s: read_p(s + 1, b, B_tr(b)),
                  cur_sh=(("V", s) if shared else None), barrier=(s in (4, 8)),
                  after={4: at4, 8: at8}.get(s), pub={7: ("pw", 2), 11: ("pw", 3)}.get(s),
                  extra=((lambda b: read_p(15, b, BXP + 4 * b)) if s == 12 else None), label=("V", s))
        xq = deque((pair, t) for pair in range(2) for t in range(5))
        xs = [int(v) for v in cfg.xsplit.split(",")]
        xp = [int(v) for v in cfg.xpos.split(",")]
        def xl(n):
            for _ in range(n): side.append(lambda e=xq.popleft(): (xdone.add(e), (self.x_load_c if cfg.cond else self.x_load)(*e)))
        xdone = set()
        def pend_x(): return [(pair, t) for pair in range(2) for t in range(5) if (pair, t) not in xdone]
        def el(gs):
            L = []
            for g in gs:
                r = ACC + 80 + 4 * g
                L += [f"s_add_u32 s{sT0}, s20, {g * 71680}",
                      f"buffer_load_dwordx4 v[{r}:{r+3}], v{vLin0}, s[16:19], s{sT0} offen sc1"]
            self.cond_block("s_cmp_eq_u32 s22, 8", L)
        def done_o(b):
            for i in range(2): pair_cvt(i, b, vq)
            for i in range(2):
                r0 = ACC + ((2 * i) * 5 + b) * 4
                vq.append(lambda r0=r0, i=i: A.ds_write("ds_write_b128", vOW, r0, 4, (i * 5 + b) * 1024))
        hooks = {}
        for n, p in zip(xs, xp): hooks[p + 9] = (lambda n=n: xl(n))
        def o_h5():
            if shared:
                for a in range(4): V(f"v_add_u32 v{vTR+a}, s{sGR}, v{vTR+a}", vTR + a, [vTR + a])
        hooks[5] = o_h5
        hooks[32] = lambda: prefetch_A("WO")
        self.stamp(nm + "Pj")
        joint(("V", 15, shared), BXP, done_o, cur_sh=(("V", 14) if shared else None), hooks=hooks)
        A.wait_lgkm_all()
        release(("WO", 0)); release(("WO", 1))
        self.bar(nm + "B10")
        if cfg.w7:
            assert cfg.cond and not cfg.early
            A.salu(f"s_cmp_lg_u32 s{sW}, 7")
            A.salu(f"s_cbranch_scc1 L_o{blk}")
            save = (list(A.vm), list(A.lgkm), dict(A.vw), self.m0slot)
            for e in pend_x(): self.x_load_c(*e)
            A.raw("s_waitcnt vmcnt(0)")
            A.vm = []
            for n in range(5):
                for pc in range(2): self.slot_dma("WQ", n & 1, ("w7", n), n, pc, blk)
            A.barrier()
            for t in range(5): self.x_write_c(0, t)
            A.raw("s_waitcnt vmcnt(0) lgkmcnt(0)")
            A.barrier()
            for y in range(2):
                for a in range(4): tr_read(0, a, y, y * 2048, None)
            for b in range(5): read_x(0, b, B_tr(b))
            A.wait_lgkm_all()
            for n in range(5, 7):
                for pc in range(2): self.slot_dma("WQ", n & 1, ("w7", n), n % 5, pc, blk)
            A.salu(f"s_branch L_oend{blk}")
            A.label(f"L_o{blk}")
            A.vm, A.lgkm, A.vw, self.m0slot = save
        def read_o(ks, b):
            A.ds_read("ds_read_b128", B_tr(b), 4, vLin0 if ks < 8 else vLin1, ((ks & 7) * 5 + b) * 1024)
        for b in range(5): read_o(0, b)
        def mid_o():
            for t in range(5): slow.append(lambda t=t: (self.x_write_c if cfg.cond else self.x_write)(0, t))
        def tail_po(b):
            for i in range(2):
                r0 = ACC + ((2 * i) * 5 + b) * 4; r1 = ACC + ((2 * i + 1) * 5 + b) * 4
                d = ACC + 120 + (i * 5 + b) * 4
                for e, x in enumerate((r0, r0 + 2, r1, r1 + 2)):
                    vq.append(lambda d=d + e, x=x: cvt(d, x, x + 1))
        st["pr"] = 0
        eblk = deque()
        if cfg.early:
            D = ACC + 80; S_ = ACC + 112; t0_, t1_ = ACC + 140, ACC + 141
            for g in range(8):
                L = []
                for d in range(4):
                    src = D + 4 * g + d; lo = S_ + 2 * d
                    if g == 0:
                        L += [f"v_lshlrev_b32 v{lo}, 16, v{src}", f"v_and_b32 v{lo+1}, 0xffff0000, v{src}"]
                    else:
                        L += [f"v_lshlrev_b32 v{t0_}, 16, v{src}", f"v_and_b32 v{t1_}, 0xffff0000, v{src}",
                              f"v_add_f32 v{lo}, v{lo}, v{t0_}", f"v_add_f32 v{lo+1}, v{lo+1}, v{t1_}"]
                eblk.append(L[:8]);
                if len(L) > 8: eblk.append(L[8:])
            L = [f"v_cvt_pk_bf16_f32 v{D+d}, v{S_+2*d}, v{S_+2*d+1}" for d in range(4)]
            L += [f"v_bfe_u32 v{t0_}, v{vLin0}, 4, 4", f"v_mul_u32_u24 v{t0_}, 1792, v{t0_}",
                  f"v_bfe_u32 v{t1_}, v{vLin0}, 8, 1", f"v_lshl_add_u32 v{t0_}, v{t1_}, 5, v{t0_}",
                  f"v_lshrrev_b32 v{t1_}, 9, v{vLin0}", f"v_lshl_add_u32 v{t0_}, v{t1_}, 4, v{t0_}",
                  f"v_permlane16_swap_b32 v{D}, v{D+2}", f"v_permlane16_swap_b32 v{D+1}, v{D+3}",
                  f"buffer_store_dwordx4 v[{D}:{D+3}], v{t0_}, s[12:15], s21 offen"]
            eblk.append(L)
        def ex_o(b, s):
            ep = [int(v) for v in cfg.epos.split(",")]
            n = 8 // len(ep)
            if cfg.early and b == 0 and s in ep: el(range(ep.index(s) * n, ep.index(s) * n + n))
            assert cfg.ecomp >= ep[-1] + 3
            if s >= cfg.ecomp and eblk: self.cond_block("s_cmp_eq_u32 s22, 8", eblk.popleft())
        for s in range(16):
            last = s == 15
            kstep(s & 1, s == 0, ("NWQ", 0, False) if last else ("WO", s + 1, False),
                  (lambda b: read_x(0, b, B_tr(b))) if last else (lambda b, s=s: read_o(s + 1, b)),
                  barrier=(s == 8), after=(mid_o if s == 8 else None), pub=(("xw", 0) if s == 13 else None),
                  tail=(tail_po if last else None), label=("WO", s), extra=(lambda b, s=s: ex_o(b, s)))
            if s == 14: assert not eblk
        flush(side)
        if cfg.w7: A.label(f"L_oend{blk}")
        A.salu(f"s_mov_b64 s[{sPO}:{sPO+1}], s[{sPOB(blk)}:{sPOB(blk)+1}]")
        A.salu(f"s_mov_b32 s{sPO+2}, 71680")
        assert sorted(q[0][1] for q in slotq) == [2, 3, 4, 5, 6] and all(len(q) == 1 for q in slotq)
        act = [("WQ", t[1]) if t[0] == "NWQ" else t for t, _ in A.vm]
        can = [t for t, _ in self.canon_vm]
        assert act == can[len(can) - len(act):], (act, can)
        actl = [d for _, d in A.lgkm]; canl = [d for _, d in can_l]
        assert actl == canl[len(canl) - len(actl):], (actl, canl)
        self.stamp(nm + "Odone")
        A.salu(f"s_add_u32 s{sPH}, s{sPH}, 1")
        A.salu(f"s_cmp_eq_u32 s{sPH}, 2")
        A.salu("s_cbranch_scc1 L_final")
        if blk == 1: A.salu("s_branch L_body0")

    def final(self):
        A = self.A; cfg = self.cfg
        A.label("L_final")
        A.vm = []; A.lgkm = []
        V = self.V
        if cfg.fuse: A.raw("s_load_dwordx4 s[4:7], s[0:1], 80")
        for i in range(2):
            for b in range(5): self.store_po(i, b, cfg.pof_flags)
        if cfg.early:
            A.raw("v_mov_b32 v1, s22"); A.raw("v_mov_b32 v2, s23")
            A.raw("s_mov_b64 exec, 1")
            A.raw("global_store_dword v2, v1, s[24:25]")
            A.raw("s_mov_b64 exec, -1")
        if cfg.fuse:
            R = A.raw
            BS = 256 * 71680
            V(f"v_lshrrev_b32 v2, 4, v{vLin0}", 2, [vLin0])
            V("v_and_b32 v4, 15, v2", 4, [2])
            V("v_mul_u32_u24 v4, 1792, v4", 4, [4])
            V("v_bfe_u32 v5, v2, 4, 1", 5, [2])
            V("v_lshl_add_u32 v4, v5, 5, v4", 4, [4, 5])
            V("v_lshrrev_b32 v5, 5, v2", 5, [2])
            V("v_lshl_add_u32 v4, v5, 4, v4", 4, [4, 5])
            R(f"s_lshl_b32 s20, s{sB}, 2")
            V("v_mov_b32 v2, s20", 2, [])
            V("v_mov_b32 v1, 1", 1, [])
            V("v_mov_b32 v3, 0", 3, [])
            R(f"s_mul_i32 s20, s{sB}, {8*71680}")
            R("s_add_u32 s16, s24, s20"); R("s_addc_u32 s17, s25, 0"); R("s_and_b32 s17, s17, 0xffff")
            R(f"s_mov_b32 s18, {BS + 8*71680}"); R("s_mov_b32 s19, 0x20000")
            R(f"s_lshl_b32 s21, 1, s{sHG}")
            R("s_waitcnt vmcnt(0) lgkmcnt(0)")
            R("s_mov_b32 s8, s6"); R("s_and_b32 s9, s7, 0xffff"); R("s_mov_b32 s10, 256"); R("s_mov_b32 s11, 0x20000")
            R("s_mov_b32 s12, s4"); R("s_and_b32 s13, s5, 0xffff"); R(f"s_mov_b32 s14, {32*80*896*2}"); R("s_mov_b32 s15, 0x20000")
            R("s_barrier")
            self.stamp("drain")
            R(f"s_cmp_lg_u32 s{sW}, 0")
            R("s_cbranch_scc1 L_wait")
            R("s_mov_b64 exec, 1")
            R("buffer_atomic_add v1, v2, s[8:11], 0 offen sc0 sc1")
            R("s_waitcnt vmcnt(0)")
            R("v_readfirstlane_b32 s20, v1")
            R("s_nop 3")
            R("s_lshr_b32 s23, s20, 8"); R("s_or_b32 s23, s23, s21")
            R("s_and_b32 s20, s20, 0xff"); R("s_cmp_eq_u32 s20, 7")
            R("s_cbranch_scc1 L_pub")
            R("s_mov_b32 s23, s21")
            R(f"s_mov_b32 s22, {cfg.spin}")
            A.label("L_poll")
            if cfg.slp: R(f"s_sleep {cfg.slp}")
            R(f"buffer_load_dword v1, v2, s[8:11], 0 offen {cfg.pollflags}")
            R("s_waitcnt vmcnt(0)")
            R("v_readfirstlane_b32 s20, v1")
            R("s_nop 3")
            R("s_and_b32 s20, s20, 0xff"); R("s_cmp_eq_u32 s20, 8")
            R("s_cbranch_scc1 L_pub")
            R("s_sub_u32 s22, s22, 1"); R("s_cmp_lg_u32 s22, 0")
            R("s_cbranch_scc1 L_poll")
            R("s_lshl_b32 s20, s21, 8")
            R("v_mov_b32 v1, s20")
            R("buffer_atomic_or v1, v2, s[8:11], 0 offen sc0 sc1")
            R("s_waitcnt vmcnt(0)")
            R("v_readfirstlane_b32 s20, v1")
            R("s_nop 3")
            R("s_and_b32 s20, s20, 0xff"); R("s_cmp_eq_u32 s20, 8")
            R("s_cselect_b32 s23, s21, 0")
            A.label("L_pub")
            R("v_mov_b32 v1, s23")
            R("ds_write_b32 v3, v1")
            R("s_waitcnt lgkmcnt(0)")
            R("s_mov_b64 exec, -1")
            A.label("L_wait")
            R("s_barrier")
            R("ds_read_b32 v1, v3")
            R("s_waitcnt lgkmcnt(0)")
            R("v_readfirstlane_b32 s23, v1")
            R("s_nop 3")
            self.stamp("go")
            A.label("L_share")
            R("s_cmp_eq_u32 s23, 0")
            R("s_cbranch_scc1 L_shares_done")
            R("s_ff1_i32_b32 s20, s23")
            R("s_bitset0_b32 s23, s20")
            R(f"s_lshl_b32 s22, s{sW}, 3"); R("s_add_u32 s22, s22, s20")
            A.vm = []; A.lgkm = []; A.vw = {}
            for r in range(3):
                so = 28 + r
                R(f"s_add_u32 s32, s22, {64*r}")
                R("s_cmp_ge_u32 s32, 70"); R("s_cselect_b32 s33, 1, 0")
                R("s_mul_i32 s34, s33, 70"); R("s_sub_u32 s34, s32, s34")
                R("s_mul_i32 s35, s34, 205"); R("s_lshr_b32 s35, s35, 10")
                R("s_mul_i32 s36, s35, 5"); R("s_sub_u32 s36, s34, s36")
                R(f"s_mul_i32 s37, s{sB}, 80"); R("s_lshl_b32 s36, s36, 4"); R("s_add_u32 s37, s37, s36")
                R("s_mul_i32 s37, s37, 1792"); R("s_mul_i32 s36, s33, 896"); R("s_add_u32 s37, s37, s36")
                R("s_lshl_b32 s35, s35, 6"); R(f"s_add_u32 s{so}, s37, s35")
                R(f"s_mul_i32 s33, s33, {BS}"); R("s_lshl_b32 s34, s34, 10"); R("s_add_u32 s33, s33, s34")
                if r == 2:
                    R("s_cmp_lt_u32 s32, 140")
                    R("s_cselect_b32 s33, s33, 0x40000000"); R(f"s_cselect_b32 s{so}, s{so}, 0x40000000")
                for g in range(8):
                    A.bload(32 + (r * 8 + g) * 4, 4, vLin0, 16, 33, flags=cfg.shflags)
                    if g < 7: R("s_add_u32 s33, s33, 71680")
            for r in range(3):
                for g in range(8):
                    src = 32 + (r * 8 + g) * 4
                    for d in range(4):
                        lo = 16 + 2 * d; hi = lo + 1
                        if g == 0:
                            V(f"v_lshlrev_b32 v{lo}, 16, v{src+d}", lo, [src + d])
                            V(f"v_and_b32 v{hi}, 0xffff0000, v{src+d}", hi, [src + d])
                        else:
                            V(f"v_lshlrev_b32 v6, 16, v{src+d}", 6, [src + d])
                            V(f"v_and_b32 v7, 0xffff0000, v{src+d}", 7, [src + d])
                            A.valu(f"v_pk_add_f32 v[{lo}:{lo+1}], v[{lo}:{lo+1}], v[6:7]", [lo, lo + 1], [lo, lo + 1, 6, 7])
                o = 8 + 4 * (r & 1)
                for d in range(4): V(f"v_cvt_pk_bf16_f32 v{o+d}, v{16+2*d}, v{17+2*d}", o + d, [16 + 2 * d, 17 + 2 * d])
                A.valu(f"v_permlane16_swap_b32 v{o}, v{o+2}", [o, o + 2], [o, o + 2], kind="perm")
                A.valu(f"v_permlane16_swap_b32 v{o+1}, v{o+3}", [o + 1, o + 3], [o + 1, o + 3], kind="perm")
                A.bstore(o, 4, 4, 12, 28 + r)
            A.nop(2)
            R("s_branch L_share")
            A.label("L_shares_done")
        if cfg.stamp:
            A.raw("s_waitcnt vmcnt(0)")
            self.stamp("end")
            A.salu("s_add_u32 s28, s24, 0x8000000")
            A.salu("s_addc_u32 s29, s25, 0")
            A.salu("s_and_b32 s29, s29, 0xffff")
            A.salu("s_mov_b32 s30, 0x100000")
            A.salu("s_mov_b32 s31, 0x20000")
            A.salu(f"s_lshl_b32 s{sT0}, s2, 3")
            A.salu(f"s_add_u32 s{sT0}, s{sT0}, s{sW}")
            A.salu(f"s_lshl_b32 s{sT0}, s{sT0}, 8")
            A.valu(f"v_lshrrev_b32 v0, 2, v{vLin0}", [0], [vLin0])
            A.bstore(vSTAMP, 1, 0, 28, sT0)
            open(cfg.path + ".stamps", "w").write(" ".join(self.stamps))
        A.label("L_attn_done")
        A.raw("s_endpgm")


def gen_main(cfg):
    g = Gen(cfg)
    if "nomfma" in cfg.hack:
        om = g.A.mfma
        def fake(d, a, b, czero=False):
            g.A._mem_ready(rng(a, 4) + rng(b, 4))
        g.A.mfma = fake
    kn = NAME + "_kernel"
    g.A.label(kn)
    g.setup(); g.body(0); g.body(1); g.final()
    return kn, g.A


def gen_reduce(cfg):
    A = Asm()
    kn = "reduce_kernel"
    R = A.salu
    def V(text, w, r): A.valu(text, w if isinstance(w, list) else [w], r)
    A.label(kn)
    if cfg.span: A.raw("s_memrealtime s[28:29]")
    rw = cfg.rw
    R(f"s_cmp_ge_u32 s2, {4480 // rw}")
    R("s_cbranch_scc1 L_red_done")
    R("s_load_dwordx2 s[4:5], s[0:1], 80")
    R("s_load_dwordx2 s[6:7], s[0:1], 96")
    V("v_lshrrev_b32 v1, 6, v0", 1, [0])
    V("v_and_b32 v2, 63, v0", 2, [0])
    A.rfl(8, 1)
    V("v_lshlrev_b32 v3, 4, v2", 3, [2])
    A.nop(2)
    R(f"s_mul_i32 s9, s2, {rw}"); R("s_add_u32 s9, s9, s8")
    R(f"s_mul_hi_u32 s10, s9, {(1 << 32) // 70 + 1}")
    R("s_mul_i32 s11, s10, 70"); R("s_sub_u32 s11, s9, s11")
    R("s_and_b32 s12, s10, 31")
    R("s_lshr_b32 s13, s10, 5")
    R("s_xor_b32 s14, s12, s13"); R("s_not_b32 s14, s14"); R("s_and_b32 s14, s14, 1")
    R("s_lshl_b32 s15, s12, 6"); R("s_add_u32 s15, s15, s11"); R("s_lshl_b32 s15, s15, 2"); R("s_add_u32 s15, s15, 0x4000000")
    A.raw("s_waitcnt lgkmcnt(0)")
    if cfg.early:
        R("s_cmp_eq_u32 s13, 0"); R("s_cbranch_scc1 L_red_go")
        R("s_cmp_ge_u32 s11, 64"); R("s_cbranch_scc1 L_red_go")
        R("s_load_dword s26, s[6:7], s15")
        A.raw("s_waitcnt lgkmcnt(0)")
        R("s_cmp_eq_u32 s26, 8"); R("s_cbranch_scc1 L_red_end")
        A.label("L_red_go")
    R("s_lshl_b32 s24, s14, 5"); R("s_add_u32 s24, s24, s12"); R(f"s_mul_i32 s24, s24, {8*71680}")
    R("s_add_u32 s16, s6, s24"); R("s_addc_u32 s17, s7, 0"); R("s_and_b32 s17, s17, 0xffff")
    R(f"s_mov_b32 s18, {8*71680}"); R("s_mov_b32 s19, 0x20000")
    R("s_lshl_b32 s15, s11, 10")
    for g in range(8):
        A.bload(16 + g * 4, 4, 3, 16, 15, flags=cfg.rd_flags)
        if g < 7: R("s_add_u32 s15, s15, 71680")
    R("s_mov_b32 s20, s4"); R("s_and_b32 s21, s5, 0xffff"); R(f"s_mov_b32 s22, {32*80*896*2}"); R("s_mov_b32 s23, 0x20000")
    R("s_mul_i32 s25, s11, 205"); R("s_lshr_b32 s25, s25, 10")
    R("s_mul_i32 s26, s25, 5"); R("s_sub_u32 s26, s11, s26")
    R("s_mul_i32 s24, s12, 80"); R("s_lshl_b32 s26, s26, 4"); R("s_add_u32 s24, s24, s26"); R("s_mul_i32 s24, s24, 1792")
    R("s_mul_i32 s26, s14, 896"); R("s_add_u32 s24, s24, s26"); R("s_lshl_b32 s25, s25, 6"); R("s_add_u32 s24, s24, s25")
    V("v_and_b32 v4, 15, v2", 4, [2])
    V("v_mul_u32_u24 v4, 1792, v4", 4, [4])
    V("v_bfe_u32 v5, v2, 4, 1", 5, [2])
    V("v_lshl_add_u32 v4, v5, 5, v4", 4, [4, 5])
    V("v_lshrrev_b32 v5, 5, v2", 5, [2])
    V("v_lshl_add_u32 v4, v5, 4, v4", 4, [4, 5])
    for g in range(8):
        src = 16 + g * 4
        for d in range(4):
            lo = 48 + 2 * d; hi = lo + 1
            if g == 0:
                V(f"v_lshlrev_b32 v{lo}, 16, v{src+d}", lo, [src + d])
                V(f"v_and_b32 v{hi}, 0xffff0000, v{src+d}", hi, [src + d])
            else:
                V(f"v_lshlrev_b32 v6, 16, v{src+d}", 6, [src + d])
                V(f"v_and_b32 v7, 0xffff0000, v{src+d}", 7, [src + d])
                A.valu(f"v_pk_add_f32 v[{lo}:{lo+1}], v[{lo}:{lo+1}], v[6:7]", [lo, lo + 1], [lo, lo + 1, 6, 7])
    for d in range(4): V(f"v_cvt_pk_bf16_f32 v{8+d}, v{48+2*d}, v{49+2*d}", 8 + d, [48 + 2 * d, 49 + 2 * d])
    A.valu("v_permlane16_swap_b32 v8, v10", [8, 10], [8, 10], kind="perm")
    A.valu("v_permlane16_swap_b32 v9, v11", [9, 11], [9, 11], kind="perm")
    A.bstore(8, 4, 4, 20, 24)
    A.label("L_red_end")
    if cfg.span:
        A.raw("s_waitcnt vmcnt(0)")
        A.raw("s_memrealtime s[30:31]")
        A.raw("s_waitcnt lgkmcnt(0)")
        A.raw("v_mov_b32 v8, s28"); A.raw("v_mov_b32 v9, s30"); A.raw("v_mov_b32 v10, 0")
        R("s_add_u32 s16, s6, 0x8100000"); R("s_addc_u32 s17, s7, 0"); R("s_and_b32 s17, s17, 0xffff")
        R("s_mov_b32 s18, 0x100000"); R("s_mov_b32 s19, 0x20000"); R("s_lshl_b32 s15, s9, 3")
        A.raw("buffer_store_dwordx2 v[8:9], v10, s[16:19], s15 offen")
    A.label("L_red_done")
    A.raw("s_endpgm")
    return kn, A


def build(cfg, path):
    cfg.path = path
    hdr = open("cdna_kernels/" + NAME + ".s.ref").read().split("\n")
    head = [l for l in hdr if l.startswith(";") and "@launch" not in l and "Override launch" not in l and "grid=ceil" not in l]
    k1, A1 = gen_main(cfg)
    ks = [(k1, A1)]
    out = "\n".join(head) + "\n"
    if cfg.listfmt: out += f"; @launch kernel={k1} grid=(256,1,1) block=(512,1,1) lds=163840\n"
    else: out += f"; @launch grid=(256,1,1) block=(512,1,1) lds=163840\n"
    if not cfg.fuse:
        k2, A2 = gen_reduce(cfg)
        ks.append((k2, A2))
        out += f"; @launch kernel={k2} grid=({4480 // cfg.rw},1,1) block=({64 * cfg.rw},1,1) lds=0\n"
    out += '.amdgcn_target "amdgcn-amd-amdhsa--gfx950"\n.text\n'
    for k, A in ks:
        out += f".globl {k}\n.p2align 8\n.type {k},@function\n" + A.text()
    out += '.section .rodata,"a"\n.p2align 6\n'
    out += kernel_desc(k1, 256, 102, 256)
    if not cfg.fuse: out += ".p2align 6\n" + kernel_desc(k2, 56, 32, 56)
    open(path, "w").write(out)
    print(path, "mfma", A1.nmfma, "lines", len(A1.lines))

if __name__ == "__main__":
    cfg = Cfg()
    for a in sys.argv[2:]:
        k, v = a.split("=")
        setattr(cfg, k, type(getattr(cfg, k))(v))
    if cfg.span: cfg.stamp = 1; cfg.rt = 1
    build(cfg, sys.argv[1] if len(sys.argv) > 1 else "cdna_kernels/" + NAME + ".s")
```

```python
import sys, struct
from collections import deque
from asmlib import *

NAME = "concat_heads__gqa_block_cached__mha_block_cached__near_ridge"

class Cfg:
    R = 5
    kv_flags = "nt"
    w_flags = ""
    x_flags = ""
    po_flags = "sc1"
    pof_flags = "sc1"
    rd_flags = ""
    rel_pos = 8
    s_rel_pos = 5
    stamp = 0
    order = 2
    pre = 0
    krot = 1
    kpA = 0
    kpB = 0
    kp_per = 2
    kp_start = 0
    relx = 5
    ypos = 10
    npump = 2
    prio = 0
    stpos = 'b1'
    tlb = 0
    only = 0
    rt = 0
    fuse = 0
    rw = 2
    spin = 3000
    slp = 0
    shflags = 'sc1'
    pollflags = 'sc0 sc1'
    listfmt = 1
    span = 0
    fair = 1
    fairs = 0
    kst = ''
    xpos = '0,12,24'
    st0 = 1
    pro = 1
    cond = 1
    early = 0
    w7 = 1
    dbgspan = 0
    noearly = 0
    epos = '4,8'
    ecomp = 11
    kpat = '2,5,8,11'
    kpn = 4
    kpbar = 1
    hack = ''
    dbgstart = 0
    tlbk = 0
    xsplit = '4,4,2'
    late = 1
    sm_per = 2

def f32bits(x):
    return struct.unpack("<I", struct.pack("<f", x))[0]

BREG = 40960
RING0 = 81920
RINGSZ = 10240

ACC = 0
FR = 160
def A_tr(par, a): return FR + par * 16 + a * 4
def B_tr(b): return FR + 32 + 4 * b
def B_s(s, b): return FR + (s * 5 + b) * 4
def A_s(par, s): return FR + 40 + par * 8 + s * 4
_v = 216
def _alloc(n=1):
    global _v
    r = _v; _v += n
    assert _v <= 256
    return r
vKR = _alloc(2); vK = _alloc(2); vV = _alloc(2); vX = _alloc(2)
vLinG = _alloc(); vQR = _alloc(); vSW = _alloc(); vSR = _alloc(); vPW = _alloc(); vRW = _alloc(); vLin0 = _alloc()
vQW = _alloc(); vOW = _alloc()
vTR = _alloc(4); vXR = _alloc(4); vXRh = _alloc(2); vWQ = _alloc(2); vWO = _alloc(2); vLin1 = _alloc()
vM = _alloc(5); vT0 = _alloc(); vT1 = _alloc()
BORROW = [vTR + 1, vTR + 2, vTR + 3, vXR + 1, vXR + 2, vXR + 3, vXRh, vXRh + 1, vWQ + 1, vWO + 1, vLin1]
assert _v <= 255
vSTAMP = 255

sX = 28; sWQ = 32; sNX = 36; sNWQ = 40; sPO = 44
def sKV(blk, k): return 48 + blk * 12 + k * 4
def sPOB(blk): return 72 + blk * 2
sRING = 76; sOFF = 77; sC = 78
sNC = 80; sXM0 = 81; sPOW = 82; sW = 83; sJ = 84; sG = 85; sB = 86; sHG = 87
sT0 = 88; sT1 = 89; sT2 = 90; sT3 = 91; sPH = 92; sGR = 93
sCOL = 94
sWQK = 98; sWOK = 99; sSTI = 100; sSIG = 101


class Gen:
    def __init__(self, cfg):
        self.cfg = cfg
        self.A = Asm()
        self.stamps = []

    def V(self, text, w, r):
        self.A.valu(text, w if isinstance(w, list) else [w], r)

    def stamp(self, name):
        if not self.cfg.stamp: return
        if self.cfg.span and name != "end": return
        A = self.A
        A.raw("s_memrealtime s[26:27]" if self.cfg.rt else "s_memtime s[26:27]")
        A.raw("s_waitcnt lgkmcnt(0)")
        A.lgkm = []
        A.raw(f"s_mov_b32 m0, s{sSTI}")
        A.raw(f"s_add_u32 s{sSTI}, s{sSTI}, 1")
        A.raw(f"s_min_u32 s{sSTI}, s{sSTI}, 62")
        A.raw(f"v_writelane_b32 v{vSTAMP}, s26, m0")
        self.m0slot = None
        self.stamps.append(name)

    def bar(self, name=None):
        self.A.barrier()
        if name: self.stamp(name)

    def setup(self):
        A = self.A; V = self.V; cfg = self.cfg
        if cfg.rt: A.raw("s_memrealtime s[70:71]")
        if cfg.dbgspan: A.raw("s_memrealtime s[26:27]")
        A.salu("s_cmp_ge_u32 s2, 256")
        A.salu("s_cbranch_scc1 L_attn_done")
        if cfg.only:
            A.salu(f"s_and_b32 s3, s2, {cfg.only}")
            A.salu("s_cbranch_scc1 L_attn_done")
        A.salu("s_load_dwordx16 s[4:19], s[0:1], 0")
        A.salu("s_load_dwordx4 s[20:23], s[0:1], 64")
        A.salu("s_load_dwordx2 s[24:25], s[0:1], 96")
        vL = 4; vG = 5; vQ = 6; vTmp = 7
        t1 = 1; t2 = 2; t3 = 3
        V(f"v_lshrrev_b32 v{vTmp}, 6, v0", vTmp, [0])
        V(f"v_and_b32 v{vL}, 63, v0", vL, [0])
        A.rfl(sW, vTmp)
        V(f"v_lshrrev_b32 v{vG}, 4, v{vL}", vG, [vL])
        V(f"v_and_b32 v{vQ}, 15, v{vL}", vQ, [vL])
        A.nop(2)
        A.salu(f"s_and_b32 s{sJ}, s{sW}, 3")
        A.salu(f"s_lshr_b32 s{sG}, s{sW}, 2")
        A.salu(f"s_lshr_b32 s{sB}, s2, 3")
        A.salu(f"s_and_b32 s{sHG}, s2, 7")
        A.salu(f"s_mul_i32 s{sRING}, s{sW}, {RINGSZ}")
        A.salu(f"s_add_u32 s{sRING}, s{sRING}, {RING0}")
        A.salu(f"s_mul_i32 s{sXM0}, s{sG}, 20480")
        A.salu(f"s_lshl_b32 s{sT0}, s{sJ}, 10")
        A.salu(f"s_add_u32 s{sXM0}, s{sXM0}, s{sT0}")
        V(f"v_and_b32 v{t1}, 7, v{vL}", t1, [vL])
        V(f"v_lshlrev_b32 v{t3}, 1, v{vG}", t3, [vG])
        V(f"v_xor_b32 v{t3}, v{t3}, v{t1}", t3, [t3, t1])
        V(f"v_lshlrev_b32 v{t3}, 4, v{t3}", t3, [t3])
        V(f"v_lshrrev_b32 v{t2}, 3, v{vL}", t2, [vL])
        A.salu(f"s_lshl_b32 s{sT0}, s{sJ}, 7")
        V(f"v_lshrrev_b32 v{vTmp}, 5, v{vL}", vTmp, [vL])
        V(f"v_lshlrev_b32 v{vTmp}, 3, v{vTmp}", vTmp, [vTmp])
        V(f"v_and_b32 v{vWQ}, 3, v{t2}", vWQ, [t2])
        V(f"v_add_u32 v{vTmp}, v{vTmp}, v{vWQ}", vTmp, [vTmp, vWQ])
        V(f"v_lshl_add_u32 v{vWQ}, v{vTmp}, 13, v{t3}", vWQ, [vTmp, t3])
        V(f"v_add_u32 v{vWQ}, s{sT0}, v{vWQ}", vWQ, [vWQ])
        V(f"v_add_u32 v{vWQ+1}, {16*8192-1024}, v{vWQ}", vWQ + 1, [vWQ])
        if cfg.krot:
            A.salu(f"s_lshr_b32 s{sT3}, s{sB}, 1")
            A.salu(f"s_min_u32 s{sT3}, s{sT3}, 13")
        else:
            A.salu(f"s_mov_b32 s{sT3}, 0")
        A.salu(f"s_lshl_b32 s{sWQK}, s{sT3}, 18")
        A.salu(f"s_sub_u32 s{sWQK}, s{sWQK}, 262144")
        A.salu(f"s_cselect_b32 s{sWQK}, {13*262144}, s{sWQK}")
        A.salu(f"s_lshl_b32 s{sT1}, s{sJ}, 2")
        A.salu(f"s_lshl_b32 s{sT2}, s{sG}, 8")
        A.salu(f"s_lshl_b32 s{sT3}, s{sT3}, 6")
        A.salu(f"s_add_u32 s{sT2}, s{sT2}, s{sT3}")
        V(f"v_add_u32 v8, s{sT1}, v{vG}", 8, [vG])
        V(f"v_xor_b32 v9, v8, v{vQ}", 9, [8, vQ])
        V(f"v_lshl_add_u32 v9, v9, 4, s{sT2}", 9, [9])
        V(f"v_mul_u32_u24 v8, 896, v8", 8, [8])
        for pair in range(2):
            if pair: V(f"v_add_u32 v9, 512, v9", 9, [9])
            V(f"v_subrev_u32 v10, 896, v9", 10, [9])
            V(f"v_min_u32 v10, v10, v9", 10, [10, 9])
            V(f"v_add_u32 v{vX+pair}, v8, v10", vX + pair, [8, 10])
        V(f"v_subrev_u32 v9, s{sT3}, v9", 9, [9])
        V(f"v_mov_b32 v10, 0x4000000", 10, [])
        V(f"v_cmp_gt_u32 vcc, 896, v9", [], [9])
        A.nop(2)
        V(f"v_cndmask_b32 v{vX+1}, v10, v{vX+1}, vcc", vX + 1, [10, vX + 1])
        A.raw("s_waitcnt lgkmcnt(0)")
        def fin(srd, off_s, nrec):
            A.salu(f"s_add_u32 s{srd}, s{srd}, s{off_s}")
            A.salu(f"s_addc_u32 s{srd+1}, s{srd+1}, 0")
            A.salu(f"s_and_b32 s{srd+1}, s{srd+1}, 0xffff")
            A.salu(f"s_mov_b32 s{srd+2}, {nrec}")
            A.salu(f"s_mov_b32 s{srd+3}, 0x20000")
        if cfg.order == 2: A.salu(f"s_and_b32 s3, s{sB}, 1")
        elif cfg.order == 3: A.salu(f"s_and_b32 s3, s{sHG}, 1")
        elif cfg.order == 4:
            A.salu(f"s_and_b32 s3, s{sB}, 7"); A.salu("s_cmp_lt_u32 s3, 3"); A.salu("s_cselect_b32 s3, 1, 0")
        elif cfg.order == 5:
            A.salu(f"s_and_b32 s3, s{sB}, 7"); A.salu("s_cmp_lt_u32 s3, 5"); A.salu("s_cselect_b32 s3, 1, 0")
        else: A.salu(f"s_mov_b32 s3, {cfg.order}")
        A.salu("s_cmp_eq_u32 s3, 1")
        A.salu(f"s_cselect_b64 s[{sX}:{sX+1}], s[14:15], s[4:5]")
        A.salu(f"s_cselect_b64 s[{sWQ}:{sWQ+1}], s[20:21], s[10:11]")
        A.salu(f"s_cselect_b64 s[{sNX}:{sNX+1}], s[4:5], s[14:15]")
        A.salu(f"s_cselect_b64 s[{sNWQ}:{sNWQ+1}], s[10:11], s[20:21]")
        A.salu(f"s_mul_i32 s{sT2}, s{sB}, 71680")
        fin(sX, sT2, 71680)
        A.salu(f"s_lshl_b32 s{sT1}, s{sHG}, 1")
        A.salu(f"s_add_u32 s{sT1}, s{sT1}, s{sG}")
        A.salu(f"s_lshl_b32 s{sT1}, s{sT1}, 9")
        A.salu(f"s_sub_u32 s{sT3}, {448*8192}, s{sT1}")
        fin(sWQ, sT1, f"s{sT3}")
        if cfg.stamp:
            V(f"v_mov_b32 v{vSTAMP}, 0", vSTAMP, [])
            A.salu(f"s_mov_b32 s{sSTI}, 0")
        if cfg.rt: A.raw(f"v_writelane_b32 v{vSTAMP}, s70, 63")
        self.stamp("start")
        self.m0slot = None
        for n in range(2):
            for pc in range(2): self.slot_dma("WQ", n & 1, ("WQ", n), n, pc, 0)
        if cfg.pro & 1: A.barrier()
        for t in range(5): self.x_dma(0, t)
        if cfg.pro & 2: A.barrier()
        for t in range(5):
            if cfg.cond: self.x_dma(1, t)
            else: self.x_load(1, t)
        fin(sNX, sT2, 71680)
        fin(sNWQ, sT1, f"s{sT3}")
        A.salu(f"s_mul_i32 s{sPOW}, s{sW}, 10240")
        c = 1.4426950408889634 / 16.0
        A.salu(f"s_mov_b32 s{sC}, {f32bits(c):#x}")
        A.salu(f"s_mov_b32 s{sC+1}, {f32bits(c):#x}")
        A.salu(f"s_mov_b32 s{sNC}, {f32bits(-c):#x}")
        A.salu(f"s_mov_b32 s{sPH}, 0")
        A.salu(f"s_mul_i32 s{sGR}, s{sG}, {4*RINGSZ}")
        for jj in range(4):
            A.salu(f"s_xor_b32 s{sCOL+jj}, s{sJ}, {jj}")
            A.salu(f"s_lshl_b32 s{sCOL+jj}, s{sCOL+jj}, 7")
        V(f"v_lshl_add_u32 v{vV}, v{t2}, 9, v{t3}", vV, [t2, t3])
        V(f"v_add_u32 v{vV}, s{sT0}, v{vV}", vV, [vV])
        V(f"v_add_u32 v{vV+1}, {4096-1024}, v{vV}", vV + 1, [vV])
        A.salu(f"s_lshl_b32 s{sT1}, s{sW}, 7")
        A.salu(f"s_cmp_eq_u32 s{sW}, 7")
        A.salu(f"s_cselect_b32 s{sT1}, 0x4000000, s{sT1}")
        V(f"v_mul_u32_u24 v{vWO}, 896, v{t2}", vWO, [t2])
        V(f"v_add3_u32 v{vWO}, v{vWO}, v{t3}, s{sT1}", vWO, [vWO, t3])
        V(f"v_add_u32 v{vWO+1}, {8*896-1024}, v{vWO}", vWO + 1, [vWO])
        V(f"v_xor_b32 v{t1}, v{t1}, v{vG}", t1, [t1, vG])
        V(f"v_lshlrev_b32 v{t1}, 4, v{t1}", t1, [t1])
        V(f"v_lshl_add_u32 v{vK}, v{t2}, 9, v{t1}", vK, [t2, t1])
        A.salu(f"s_lshl_b32 s{sT1}, s{sJ}, 16")
        V(f"v_add_u32 v{vK}, s{sT1}, v{vK}", vK, [vK])
        V(f"v_xor_b32 v{vK+1}, 64, v{vK}", vK + 1, [vK])
        V(f"v_add_u32 v{vK+1}, {4096-1024}, v{vK+1}", vK + 1, [vK + 1])
        V(f"v_lshrrev_b32 v{t1}, 2, v{vL}", t1, [vL])
        V(f"v_lshlrev_b32 v{t1}, 7, v{t1}", t1, [t1])
        V(f"v_bfe_u32 v{t2}, v{vL}, 3, 2", t2, [vL])
        V(f"v_lshl_add_u32 v{t1}, v{t2}, 5, v{t1}", t1, [t1, t2])
        V(f"v_and_b32 v{t2}, 3, v{vL}", t2, [vL])
        V(f"v_lshl_add_u32 v{t1}, v{t2}, 3, v{t1}", t1, [t1, t2])
        V(f"v_add_u32 v{vTR}, s{sRING}, v{t1}", vTR, [t1])
        for a in range(1, 4):
            V(f"v_xor_b32 v{vTR+a}, {a << 5}, v{vTR}", vTR + a, [vTR])
        V(f"v_lshrrev_b32 v{t1}, 1, v{vQ}", t1, [vQ])
        V(f"v_xor_b32 v{t1}, v{t1}, v{vG}", t1, [t1, vG])
        V(f"v_lshlrev_b32 v{t1}, 4, v{t1}", t1, [t1])
        V(f"v_lshl_add_u32 v{t1}, v{vQ}, 7, v{t1}", t1, [t1, vQ])
        V(f"v_add_u32 v{vKR}, s{sRING}, v{t1}", vKR, [t1])
        V(f"v_xor_b32 v{vKR+1}, 64, v{vKR}", vKR + 1, [vKR])
        V(f"v_xor_b32 v{t1}, v{vG}, v{vQ}", t1, [vG, vQ])
        V(f"v_lshlrev_b32 v{t1}, 4, v{t1}", t1, [t1])
        V(f"v_lshl_add_u32 v{vXR}, v{vQ}, 8, v{t1}", vXR, [vQ, t1])
        for u in range(1, 4):
            V(f"v_xor_b32 v{vXR+u}, {u << 6}, v{vXR}", vXR + u, [vXR])
        for u in range(2):
            V(f"v_add_u32 v{vXRh+u}, 61440, v{vXR+u}", vXRh + u, [vXR + u])
        V(f"v_lshlrev_b32 v{vLin0}, 4, v{vL}", vLin0, [vL])
        V(f"v_add_u32 v{vLin1}, {BREG}, v{vLin0}", vLin1, [vLin0])
        A.salu(f"s_mul_i32 s{sT1}, s{sG}, {BREG}")
        A.salu(f"s_mul_i32 s{sT2}, s{sJ}, 10240")
        A.salu(f"s_add_u32 s{sT2}, s{sT2}, s{sT1}")
        V(f"v_add_u32 v{vLinG}, s{sT1}, v{vLin0}", vLinG, [vLin0])
        A.salu(f"s_mul_i32 s{sT3}, s{sJ}, 5120")
        V(f"v_add_u32 v{vPW}, s{sT3}, v{vLinG}", vPW, [vLinG])
        V(f"v_lshrrev_b32 v{t1}, 1, v{vG}", t1, [vG])
        V(f"v_lshlrev_b32 v{t1}, 8, v{t1}", t1, [t1])
        V(f"v_and_b32 v{t2}, 1, v{vG}", t2, [vG])
        V(f"v_lshl_add_u32 v{t1}, v{t2}, 9, v{t1}", t1, [t1, t2])
        V(f"v_lshl_add_u32 v{t1}, v{vQ}, 4, v{t1}", t1, [t1, vQ])
        V(f"v_add_u32 v{vQW}, s{sT2}, v{t1}", vQW, [t1])
        V(f"v_lshlrev_b32 v{t1}, 3, v{vQ}", t1, [vQ])
        V(f"v_add_u32 v{vSW}, s{sRING}, v{t1}", vSW, [t1])
        A.salu(f"s_add_u32 s{sT1}, s{sGR}, {RING0}")
        V(f"v_add_u32 v{vSR}, s{sT1}, v{t1}", vSR, [t1])
        V(f"v_add_u32 v{vRW}, s{sXM0}, v{vLin0}", vRW, [vLin0])
        if cfg.krot:
            A.salu(f"s_lshr_b32 s{sT3}, s{sB}, 1")
            A.salu(f"s_and_b32 s{sT3}, s{sT3}, 14")
        else:
            A.salu(f"s_mov_b32 s{sT3}, 0")
        A.salu(f"s_lshl_b32 s{sT1}, s{sW}, 1")
        A.salu(f"s_sub_u32 s{sT1}, s{sT1}, s{sT3}")
        A.salu(f"s_and_b32 s{sT1}, s{sT1}, 15")
        A.salu(f"s_mul_i32 s{sT1}, s{sT1}, 5120")
        V(f"v_add_u32 v{vOW}, s{sT1}, v{vLin0}", vOW, [vLin0])
        A.salu(f"s_add_u32 s{sT3}, s{sT3}, 15")
        A.salu(f"s_and_b32 s{sT3}, s{sT3}, 15")
        A.salu(f"s_mul_i32 s{sWOK}, s{sT3}, {32*896}")
        A.salu(f"s_lshl_b32 s{sT1}, s{sB}, 3")
        A.salu(f"s_add_u32 s{sT1}, s{sT1}, s{sHG}")
        A.salu(f"s_lshl_b32 s{sT2}, s{sT1}, 18")
        A.salu(f"s_lshl_b32 s{sT3}, s{sG}, 13")
        A.salu(f"s_add_u32 s{sT2}, s{sT2}, s{sT3}")
        A.salu(f"s_sub_u32 s{sT3}, 262144, s{sT3}")
        A.salu(f"s_mov_b64 s[{sKV(0,0)}:{sKV(0,0)+1}], s[6:7]")
        A.salu(f"s_mov_b64 s[{sKV(0,1)}:{sKV(0,1)+1}], s[8:9]")
        fin(sKV(0, 0), sT2, f"s{sT3}"); fin(sKV(0, 1), sT2, f"s{sT3}")
        A.salu(f"s_lshl_b32 s{sT2}, s{sT1}, 1")
        A.salu(f"s_add_u32 s{sT2}, s{sT2}, s{sG}")
        A.salu(f"s_lshl_b32 s{sT2}, s{sT2}, 18")
        A.salu(f"s_mov_b64 s[{sKV(1,0)}:{sKV(1,0)+1}], s[16:17]")
        A.salu(f"s_mov_b64 s[{sKV(1,1)}:{sKV(1,1)+1}], s[18:19]")
        fin(sKV(1, 0), sT2, 262144); fin(sKV(1, 1), sT2, 262144)
        A.salu(f"s_mul_i32 s{sT2}, s{sHG}, {512*896}")
        A.salu(f"s_mov_b64 s[{sKV(0,2)}:{sKV(0,2)+1}], s[12:13]")
        A.salu(f"s_mov_b64 s[{sKV(1,2)}:{sKV(1,2)+1}], s[22:23]")
        fin(sKV(0, 2), sT2, 512 * 896); fin(sKV(1, 2), sT2, 512 * 896)
        for blk in range(2):
            A.salu(f"s_add_u32 s{sT2}, s{sT1}, {blk*256}")
            A.salu(f"s_mul_i32 s{sT2}, s{sT2}, 71680")
            A.salu(f"s_add_u32 s{sPOB(blk)}, s24, s{sT2}")
            A.salu(f"s_addc_u32 s{sPOB(blk)+1}, s25, 0")
            A.salu(f"s_and_b32 s{sPOB(blk)+1}, s{sPOB(blk)+1}, 0xffff")
        A.salu(f"s_mov_b64 s[{sPO}:{sPO+1}], s[{sPOB(0)}:{sPOB(0)+1}]")
        A.salu(f"s_mov_b32 s{sPO+2}, 0")
        A.salu(f"s_mov_b32 s{sPO+3}, 0x20000")
        if "now" in cfg.hack:
            for r in (sWQ, sNWQ, sKV(0, 2), sKV(1, 2)): A.salu(f"s_mov_b32 s{r+2}, 0")
        if "nokv" in cfg.hack:
            for r in (sKV(0, 0), sKV(0, 1), sKV(1, 0), sKV(1, 1)): A.salu(f"s_mov_b32 s{r+2}, 0")
        if "nox" in cfg.hack:
            A.salu(f"s_mov_b32 s{sNX+2}, 0")
        if cfg.prio:
            A.salu(f"s_cmp_eq_u32 s{sG}, 0")
            A.salu("s_cbranch_scc1 L_noprio")
            A.salu(f"s_setprio {cfg.prio}")
            A.label("L_noprio")
        if cfg.early:
            assert cfg.order == 2
            R_ = A.salu
            R_("s_load_dwordx4 s[4:7], s[0:1], 80")
            R_(f"s_lshl_b32 s{sT0}, s3, 5"); R_(f"s_add_u32 s{sT0}, s{sT0}, s{sB}")
            R_(f"s_mul_i32 s{sT0}, s{sT0}, {8*71680}")
            R_(f"s_add_u32 s16, s24, s{sT0}"); R_("s_addc_u32 s17, s25, 0"); R_("s_and_b32 s17, s17, 0xffff")
            R_(f"s_mov_b32 s18, {8*71680}"); R_("s_mov_b32 s19, 0x20000")
            R_(f"s_lshl_b32 s{sT0}, s{sHG}, 3"); R_(f"s_add_u32 s{sT0}, s{sT0}, s{sW}")
            R_(f"s_lshl_b32 s20, s{sT0}, 10")
            R_(f"s_lshl_b32 s23, s{sB}, 6"); R_(f"s_add_u32 s23, s23, s{sT0}"); R_("s_lshl_b32 s23, s23, 2")
            R_("s_add_u32 s23, s23, 0x4000000")
            R_(f"s_mul_i32 s{sT1}, s{sT0}, 205"); R_(f"s_lshr_b32 s{sT1}, s{sT1}, 10")
            R_(f"s_mul_i32 s{sT2}, s{sT1}, 5"); R_(f"s_sub_u32 s{sT2}, s{sT0}, s{sT2}")
            R_(f"s_mul_i32 s21, s{sB}, 80"); R_(f"s_lshl_b32 s{sT2}, s{sT2}, 4"); R_(f"s_add_u32 s21, s21, s{sT2}")
            R_("s_mul_i32 s21, s21, 1792"); R_(f"s_mul_i32 s{sT2}, s3, 896"); R_(f"s_add_u32 s21, s21, s{sT2}")
            R_(f"s_lshl_b32 s{sT1}, s{sT1}, 6"); R_(f"s_add_u32 s21, s21, s{sT1}")
            R_("s_mov_b32 s22, 0")
            R_(f"s_cmp_eq_u32 s{sW}, 0"); R_(f"s_cselect_b32 s{sSIG}, 1, 2")
            R_(f"s_lshl_b32 s{sT0}, s{sB}, 2")
            V(f"v_mov_b32 v{vT1}, s{sT0}", vT1, [])
            V(f"v_mov_b32 v{vT0}, 1", vT0, [])
        for n in range(2, 5):
            for pc in range(2): self.slot_dma("WQ", n & 1, ("WQ", n), n, pc, 0)
        if cfg.early:
            A.raw("s_waitcnt lgkmcnt(0)")
            R_("s_mov_b32 s8, s6"); R_("s_and_b32 s9, s7, 0xffff"); R_("s_mov_b32 s10, 256"); R_("s_mov_b32 s11, 0x20000")
            R_("s_mov_b32 s12, s4"); R_("s_and_b32 s13, s5, 0xffff"); R_(f"s_mov_b32 s14, {32*80*896*2}"); R_("s_mov_b32 s15, 0x20000")
        A.wait_vm_tag(("WQ", 1))
        for y in range(2):
            for a in range(4):
                A.ds_read("ds_read_b64_tr_b16", A_tr(0, a) + 2 * y, 2, vTR + a, y * 2048)
        A.wait_vm_tag(("x", 0))
        A.wait_lgkm_all()
        self.bar("AB1")
        for b in range(5): A.ds_read("ds_read_b128", B_tr(b), 4, vXR, b * 4096)
        for n in range(5, 7):
            for pc in range(2): self.slot_dma("WQ", n & 1, ("WQ", n), n % 5, pc, 0)
        A.wait_lgkm_all()
        self.canon_vm = [e for e in A.vm if e[0][0] == "WQ"]
        assert [e[0][1] for e in self.canon_vm] == [2, 2, 3, 3, 4, 4, 5, 5, 6, 6]
        self.canon_lgkm = None
        A.salu("s_cmp_eq_u32 s3, 1")
        A.salu("s_cbranch_scc1 L_body1")

    def wq_off(self, n):
        return n & 1

    def x_dma(self, pair, t):
        A = self.A
        A.salu(f"s_mov_b32 s{sOFF}, {t * 14336}")
        A.salu(f"s_add_u32 m0, s{sXM0}, {pair * 40960 + t * 4096}", m0=True)
        self.m0slot = None
        A.dma(vX + pair, sX, sOFF, flags=self.cfg.x_flags, tag=("x", pair))

    def skip_begin(self, ph):
        self.nlab = getattr(self, "nlab", 0) + 1
        self.A.salu(f"s_cmp_eq_u32 s{sPH}, {ph}")
        self.A.salu(f"s_cbranch_scc1 L_sk{self.nlab}")

    def skip_end(self):
        self.A.label(f"L_sk{self.nlab}")

    def cond_block(self, cmp, lines):
        self.nlab = getattr(self, "nlab", 0) + 1
        A = self.A
        A.salu(cmp)
        A.salu(f"s_cbranch_scc0 L_sk{self.nlab}")
        for l in lines: A.raw(l, 0)
        A.label(f"L_sk{self.nlab}")

    def x_load_c(self, pair, t):
        A = self.A
        r = ACC + 80 + (pair * 5 + t) * 4
        A._mem_ready(rng(r, 4)); A._haz("mem", [vX + pair], rng(r, 4))
        self.skip_begin(1)
        A.raw(f"s_mov_b32 s{sT0}, {t * 14336}", 0)
        A.raw(f"buffer_load_dwordx4 v[{r}:{r+3}], v{vX+pair}, s[{sX}:{sX+3}], s{sT0} offen {self.cfg.x_flags}", 0)
        self.skip_end()

    def x_write_c(self, pair, t):
        A = self.A
        r = ACC + 80 + (pair * 5 + t) * 4
        if len(A.lgkm) >= 13: A._wait_lgkm_idx(len(A.lgkm) - 13)
        self.skip_begin(1 - pair)
        A.raw(f"ds_write_b128 v{vRW}, v[{r}:{r+3}] offset:{pair * 40960 + t * 4096}", 0)
        self.skip_end()
        self.xw_mark = True

    def x_load(self, pair, t):
        A = self.A
        A.salu(f"s_mov_b32 s{sOFF}, {t * 14336}")
        self.m0slot = None
        A.bload(ACC + 80 + (pair * 5 + t) * 4, 4, vX + pair, sX, sOFF, flags=self.cfg.x_flags, tag=("xr", pair))

    def x_write(self, pair, t):
        self.A.ds_write("ds_write_b128", vRW, ACC + 80 + (pair * 5 + t) * 4, 4, pair * 40960 + t * 4096, tag=("xw", pair))

    def store_po_cond(self, i, b, flags):
        A = self.A
        self.nlab = getattr(self, "nlab", 0) + 1
        r = ACC + 120 + (i * 5 + b) * 4
        A.salu(f"s_cmp_eq_u32 s{sPH}, 0")
        A.salu(f"s_cbranch_scc1 L_sk{self.nlab}")
        A.raw(f"s_add_u32 s{sT0}, s{sPOW}, {(i * 5 + b) * 1024}", 0)
        A.raw(f"buffer_store_dwordx4 v[{r}:{r+3}], v{vLin0}, s[{sPO}:{sPO+3}], s{sT0} offen {flags}", 0)
        A.label(f"L_sk{self.nlab}")

    def store_po(self, i, b, flags):
        A = self.A
        A.salu(f"s_add_u32 s{sT0}, s{sPOW}, {(i * 5 + b) * 1024}")
        A.bstore(ACC + 120 + (i * 5 + b) * 4, 4, vLin0, sPO, sT0, flags=flags, tag="po")

    def set_off(self, typ, off, adv):
        A = self.A
        if typ in ("WQ", "WO"):
            reg, step, cnt, ystep = (sWQK, 262144, 14, 32768) if typ == "WQ" else (sWOK, 32 * 896, 16, 16 * 896)
            if adv and off == 0:
                A.salu(f"s_add_u32 s{reg}, s{reg}, {step}")
                A.salu(f"s_sub_u32 s{sOFF}, s{reg}, {step * cnt}")
                A.salu(f"s_cselect_b32 s{reg}, s{reg}, s{sOFF}")
            A.salu(f"s_add_u32 s{sOFF}, s{reg}, {off * ystep}")
        elif typ == "K": A.salu(f"s_add_u32 s{sOFF}, s{sCOL+off[1]}, {off[0]}")
        else: A.salu(f"s_mov_b32 s{sOFF}, {off}")

    def slot_dma(self, typ, off, key, phys, pc, blk):
        A = self.A; cfg = self.cfg
        vo, srd, fl = {"WQ": (vWQ, sWQ, cfg.w_flags), "K": (vK, sKV(blk, 0), cfg.kv_flags),
                       "V": (vV, sKV(blk, 1), cfg.kv_flags), "WO": (vWO, sKV(blk, 2), cfg.w_flags)}[typ]
        if pc == 0 or self.m0slot != key:
            self.set_off(typ, off, pc == 0)
            A.salu(f"s_add_u32 m0, s{sRING}, {phys * 2048}", m0=True)
            self.m0slot = key
        A.dma(vo + pc, srd, sOFF, off=1024 * pc, flags=fl, tag=key)

    def cvt(self, dst, a, b):
        self.A.valu(f"v_cvt_pk_bf16_f32 v{dst}, v{a}, v{b}", [dst], [a, b])

    def body(self, blk):
        A = self.A; V = self.V; cfg = self.cfg; R = cfg.R; cvt = self.cvt
        assert R == 5
        shared = (blk == 0)
        A.label(f"L_body{blk}")
        A.vm = list(self.canon_vm)
        can_l = []
        for a in range(4): can_l.append((None, set(rng(A_tr(0, a), 2))))
        for a in range(4): can_l.append((None, set(rng(A_tr(0, a) + 2, 2))))
        for b in range(5): can_l.append((None, set(rng(B_tr(b), 4))))
        A.lgkm = list(can_l)
        A.vw = {}; A.mfma_c_read = {}
        self.m0slot = None
        nm = "AB"[blk]
        units = [(jj, 4 * r + k) for r in range(2) for jj in range(4) for k in range(4)]
        use = {}; phys = {}; order = []
        def add(key, typ, off):
            use[key] = (typ, off); order.append(key)
        for n in range(2, 28):
            add(("WQ", n), "WQ", n & 1); phys["WQ", n] = n % 5
        nK = 16 if shared else 32
        for i in range(nK):
            jj, kt = units[2 * i] if shared else units[i]
            add(("K", i), "K", (kt * 8192, jj))
        kpreg = {}
        add(("SCR", 0), "SCR", 0)
        for ks in range(16):
            t, w = divmod(ks, 4)
            key0 = 128 * w + 32 * t
            if shared: add(("V", ks), "V", key0 * 512)
            else:
                for y in range(2): add(("V", 2 * ks + y), "V", (key0 + 16 * y) * 512)
        for n in range(32): add(("WO", n), "WO", n & 1)
        for n in range(7): add(("NWQ", n), "WQ", n & 1)
        T = order[order.index(("K", 0)):]
        for i, key in enumerate(T): phys[key] = (i - (len(T) - 7)) % 5
        slotq = [deque(k for k in order if phys[k] == p) for p in range(5)]
        issued = set(("WQ", n) for n in range(7)); avail = set()
        side = deque(); vq = deque(); slow = deque()
        st = {"wq_left": 21, "pr": 0}

        def issue(key, pc):
            typ, off = use[key]
            self.slot_dma(typ, off, key, phys[key], pc, blk)
            if pc == 1:
                issued.add(key)
                if key[0] == "WQ":
                    st["wq_left"] -= 1
                    if st["wq_left"] == 0: switch_srd()

        def switch_srd():
            A.salu(f"s_mov_b64 s[{sX}:{sX+1}], s[{sNX}:{sNX+1}]")
            A.salu(f"s_mov_b32 s{sX+2}, s{sNX+2}")
            A.salu(f"s_mov_b64 s[{sWQ}:{sWQ+1}], s[{sNWQ}:{sNWQ+1}]")
            A.salu(f"s_mov_b32 s{sWQ+2}, s{sNWQ+2}")
            A.salu(f"s_mov_b32 s{sNX+2}, 0")
            A.salu(f"s_mov_b32 s{sNWQ+2}, 0")

        def release(key):
            q = slotq[phys[key]]
            assert q[0] == key, (key, q[0])
            q.popleft()
            if not q: return
            nx = q[0]
            if nx[0] == "SCR": avail.add(nx)
            else:
                side.append(lambda: issue(nx, 0)); side.append(lambda: issue(nx, 1))

        def pump(q, k=1):
            for _ in range(k):
                if q: q.popleft()()

        def flush(q):
            while q: q.popleft()()

        def need(key):
            while key not in issued:
                assert side, key
                side.popleft()()
            A.wait_vm_tag(key)

        def tr_read(par, a, y, off, tag):
            A.ds_read("ds_read_b64_tr_b16", A_tr(par, a) + 2 * y, 2, vTR + a, off, tag=tag)

        def offs(typ, s, y, sh):
            return (phys[typ, s] * 2048 + y * 4 * RINGSZ) if sh else phys[typ, 2 * s + y] * 2048

        def prio():
            if cfg.fair:
                A.salu(f"s_setprio {3 - st['pr'] % 4}"); st["pr"] += 1

        def kstep(par, czero, nx, bread, cur_sh=None, barrier=False, pub=None, after=None, extra=None, tail=None, label=None):
            typ, s, sh = nx
            for p in range(20):
                b, a = divmod(p, 4)
                if p == 0:
                    if label and label[0] in cfg.kst.split(","): self.stamp(nm + label[0] + str(label[1]))
                    if not sh: prio()
                    need((typ, s) if sh else (typ, 2 * s))
                    if pub:
                        if pub[0] == "xw": assert not slow
                        flush(vq); flush(slow); A.wait_lgkm_tag(pub)
                    if sh or barrier or pub:
                        if cur_sh: A.wait_lgkm_tag(("rd",) + cur_sh)
                        A.barrier()
                        if cur_sh: release(cur_sh)
                    if after: after()
                if p == cfg.ypos and not sh: need((typ, 2 * s + 1))
                A.mfma(ACC + (a * 5 + b) * 4, A_tr(par, a), B_tr(b), czero=czero)
                if sh: yy = (p >> 1, p & 1) if p < 4 else None
                else: yy = (0, p) if p < 2 else ((1, p - cfg.ypos) if 0 <= p - cfg.ypos < 2 else None)
                if yy:
                    y, hh = yy
                    for a2 in (hh * 2, hh * 2 + 1):
                        tr_read(par ^ 1, a2, y, offs(typ, s, y, sh), ("rd", typ, s) if sh else ("rd", typ, 2 * s + y))
                if a == 3 and bread: bread(b)
                if a == 1 and extra: extra(b)
                if not sh:
                    for y, rp in ((0, cfg.relx), (1, cfg.ypos + cfg.relx)):
                        if p == rp:
                            A.wait_lgkm_tag(("rd", typ, 2 * s + y))
                            release((typ, 2 * s + y))
                if p >= 2: pump(side, cfg.npump)
                if p in (8, 18): pump(slow)
                if tail and a == 3 and b >= 1: tail(b - 1)
                pump(vq, 3 if tail else 1)
            if tail:
                tail(4); flush(vq)

        def joint(nx, BX, done, cur_sh=None, hooks={}):
            typ, s, sh = nx
            groups = [(0, 0), (0, 1), (1, 0), (0, 2), (1, 1), (0, 3), (1, 2), (0, 4), (1, 3), (1, 4)]
            pend = None
            for gi, (o, b) in enumerate(groups):
                for a in range(4):
                    p = gi * 4 + a
                    if p == 0:
                        if not sh: prio()
                        need((typ, s) if sh else (typ, 2 * s))
                        if sh:
                            A.wait_lgkm_tag(("rd",) + cur_sh)
                            A.barrier()
                            release(cur_sh)
                    if p == 2 and not sh: need((typ, 2 * s + 1))
                    if p == 20 and not sh: prio()
                    if p == 8:
                        A.wait_lgkm_all()
                        if not sh:
                            release((typ, 2 * s)); release((typ, 2 * s + 1))
                        A.barrier()
                        if sh: release((typ, s))
                    A.mfma(ACC + (a * 5 + b) * 4, A_tr(o, a), (BX + 4 * b) if o else B_tr(b))
                    if p < 4:
                        y, hh = p >> 1, p & 1
                        for a2 in (hh * 2, hh * 2 + 1):
                            tr_read(1, a2, y, offs(typ, s, y, sh), None)
                    if p in hooks: hooks[p]()
                    if p >= 4: pump(side, cfg.npump)
                    if a == 2 and pend is not None:
                        done(pend); pend = None
                    pump(vq, 3)
                if o: pend = b
            done(pend); flush(vq)
            if cfg.fair: A.salu("s_setprio 0")

        def prefetch_A(typ, sh=False):
            if not sh:
                need((typ, 0)); need((typ, 1))
            for y in range(2):
                for a in range(4): tr_read(0, a, y, offs(typ, 0, y, sh), ("rd", typ, 0))

        def pair_cvt(i, b, q):
            r0 = ACC + ((2 * i) * 5 + b) * 4; r1 = ACC + ((2 * i + 1) * 5 + b) * 4
            for (d, x) in ((r0, r0), (r0 + 1, r0 + 2), (r0 + 2, r1), (r0 + 3, r1 + 2)):
                q.append(lambda d=d, x=x: cvt(d, x, x + 1))
            return r0

        def read_x(ks, b, dst):
            cidx, u = divmod(ks, 4)
            if cidx < 3: A.ds_read("ds_read_b128", dst, 4, vXR + u, cidx * 20480 + b * 4096)
            else: A.ds_read("ds_read_b128", dst, 4, vXRh + u, b * 4096)
        def q_after1():
            for t in range(5): slow.append(lambda t=t: (self.x_write_c if cfg.cond else self.x_write)(1, t))
        BXQ = ACC + 80
        stq = deque((i, b) for i in range(2) for b in range(5))
        for s in range(12):
            def ex(b, s=s):
                if s == 10: read_x(13, b, BXQ + 4 * b)
                if b == 3 and s >= cfg.st0 and stq: self.store_po_cond(*stq.popleft(), cfg.po_flags)
            kstep(s & 1, s == 0, ("WQ", s + 1, False), lambda b, s=s: read_x(s + 1, b, B_tr(b)),
                  barrier=(s == 1), after=(q_after1 if s == 1 else None), pub=(("xw", 1) if s == 7 else None),
                  extra=ex, label=("WQ", s))
        assert not stq
        def set_qr(jj):
            A.salu(f"s_mul_i32 s{sT0}, s{sCOL+jj}, 80")
            V(f"v_add_u32 v{vQR}, s{sT0}, v{vLinG}", vQR, [vLinG])
        def k_off(u):
            if shared: return phys["K", u >> 1] * 2048 + (u & 1) * 4 * RINGSZ
            return phys["K", u] * 2048
        def k_read(u, s):
            A.ds_read("ds_read_b128", A_s(u & 1, s), 4, vKR + s, k_off(u), tag=("rk", u))
        def done_q(b):
            for i in range(2):
                r0 = pair_cvt(i, b, vq)
            for i in range(2):
                r0 = ACC + ((2 * i) * 5 + b) * 4
                for e in range(2):
                    vq.append(lambda r=r0 + e: A.valu(f"v_permlane16_swap_b32 v{r}, v{r+2}", [r, r + 2], [r, r + 2], kind="perm"))
            for i in range(2):
                r0 = ACC + ((2 * i) * 5 + b) * 4
                vq.append(lambda r0=r0, i=i: A.ds_write("ds_write_b128", vQW, r0, 4, (i * 5 + b) * 1024))
        def q_h10():
            set_qr(0)
            if shared:
                for s in range(2): V(f"v_subrev_u32 v{vKR+s}, s{sGR}, v{vKR+s}", vKR + s, [vKR + s])
        self.stamp(nm + "Qj")
        joint(("WQ", 13, False), BXQ, done_q, hooks={10: q_h10})
        flush(side)
        need(("K", 0))
        if shared:
            A.wait_lgkm_all()
            self.bar(nm + "B4")
            for s in range(2): k_read(0, s)
        else:
            for s in range(2): k_read(0, s)
            A.wait_lgkm_all()
            release(("K", 0))
            self.bar(nm + "B4")
        if cfg.early and not cfg.noearly:
            self.cond_block(f"s_cmp_eq_u32 s{sPH}, s{sSIG}", ["s_mov_b64 exec, 1",
                f"buffer_atomic_add v{vT0}, v{vT1}, s[8:11], 0 offen sc1", "s_mov_b64 exec, -1"])
        for s in range(2):
            for b in range(5):
                A.ds_read("ds_read_b128", B_s(s, b), 4, vQR, (s * 5 + b) * 1024)
        def acc_s(kt, b): return ACC + (kt * 5 + b) * 4
        NM1 = lambda b: BORROW[b]
        L1 = lambda b: BORROW[5 + b]
        smq = deque()
        def q_max(kt):
            for b in range(5):
                r = acc_s(kt, b); m = vM + b
                if kt == 0:
                    smq.append(lambda r=r, m=m: V(f"v_max3_f32 v{m}, v{r}, v{r+1}, v{r+2}", m, [r, r+1, r+2]))
                    smq.append(lambda r=r, m=m: V(f"v_max_f32 v{m}, v{m}, v{r+3}", m, [m, r+3]))
                else:
                    smq.append(lambda r=r, m=m: V(f"v_max3_f32 v{m}, v{m}, v{r}, v{r+1}", m, [m, r, r+1]))
                    smq.append(lambda r=r, m=m: V(f"v_max3_f32 v{m}, v{m}, v{r+2}, v{r+3}", m, [m, r+2, r+3]))
        def q_round1():
            for sw in ("v_permlane32_swap_b32", "v_permlane16_swap_b32"):
                for b in range(5): smq.append(lambda b=b: V(f"v_mov_b32 v{L1(b)}, v{vM+b}", L1(b), [vM + b]))
                for b in range(5): smq.append(lambda b=b, sw=sw: A.valu(f"{sw} v{vM+b}, v{L1(b)}", [vM + b, L1(b)], [vM + b, L1(b)], kind="perm"))
                for b in range(5): smq.append(lambda b=b: V(f"v_max_f32 v{vM+b}, v{vM+b}, v{L1(b)}", vM + b, [vM + b, L1(b)]))
            for b in range(5): smq.append(lambda b=b: V(f"v_mul_f32 v{NM1(b)}, s{sNC}, v{vM+b}", NM1(b), [vM + b]))
            for kt in range(4):
                for b in range(5):
                    r = acc_s(kt, b)
                    for e in range(4): smq.append(lambda x=r+e, b=b: V(f"v_fma_f32 v{x}, v{x}, s{sC}, v{NM1(b)}", x, [x, NM1(b)]))
                    for e in range(4): smq.append(lambda x=r+e: A.valu(f"v_exp_f32 v{x}, v{x}", [x], [x], kind="trans"))
                    if kt == 0:
                        smq.append(lambda r=r, b=b: V(f"v_add_f32 v{L1(b)}, v{r}, v{r+1}", L1(b), [r, r + 1]))
                        rest = (2, 3)
                    else: rest = (0, 1, 2, 3)
                    for e in rest: smq.append(lambda x=r+e, b=b: V(f"v_add_f32 v{L1(b)}, v{L1(b)}, v{x}", L1(b), [L1(b), x]))
        for u in range(32):
            jj, kt = units[u]
            par = u & 1
            nxt = u + 1 < 32
            last_in_pass = (kt & 3) == 3
            for p in range(10):
                s, b = divmod(p, 5)
                if p == 0 and cfg.fairs and not shared and u % cfg.fairs == 0: A.salu(f"s_setprio {3 - (u // cfg.fairs) % 4}")
                if nxt and p == 0:
                    if shared:
                        if u & 1:
                            need(("K", (u + 1) // 2))
                            A.wait_lgkm_tag(("rk", u))
                            if "nobar" not in cfg.hack: A.barrier()
                            release(("K", u // 2))
                    else:
                        need(("K", u + 1))
                A.mfma(acc_s(kt, b), A_s(par, s), B_s(s, b), czero=(jj == 0 and s == 0))
                if nxt and p < 2: k_read(u + 1, p)
                if (kt & 3) == 2 and p == 9 and u + 2 < 32: set_qr(units[u + 2][0])
                if last_in_pass and nxt:
                    A.ds_read("ds_read_b128", B_s(s, b), 4, vQR, (s * 5 + b) * 1024)
                if nxt and p == cfg.s_rel_pos and not shared:
                    A.wait_lgkm_tag(("rk", u + 1))
                    release(("K", u + 1))
                if p >= 2: pump(side, cfg.npump)
                if p >= 4 or u > 16: pump(smq, cfg.sm_per)
            if jj == 3: q_max(kt)
            if u == 15: q_round1()
        flush(side); flush(smq)
        if cfg.fairs and not shared: A.salu("s_setprio 0")
        self.stamp(nm + "Sdone")
        ML = lambda b: 176 + 2 * b
        NMC = lambda b: 186 + 2 * b
        LS = lambda b: 196 + 2 * b
        TT = lambda b: 206 + b
        def xl_reduce(src, dst, op):
            for b in range(5): V(f"v_mov_b32 v{TT(b)}, v{src(b)}", TT(b), [src(b)])
            for b in range(5): A.valu(f"v_permlane32_swap_b32 v{src(b)}, v{TT(b)}", [src(b), TT(b)], [src(b), TT(b)], kind="perm")
            for b in range(5): V(f"{op} v{src(b)}, v{src(b)}, v{TT(b)}", src(b), [src(b), TT(b)])
            for b in range(5): V(f"v_mov_b32 v{TT(b)}, v{src(b)}", TT(b), [src(b)])
            for b in range(5): A.valu(f"v_permlane16_swap_b32 v{src(b)}, v{TT(b)}", [src(b), TT(b)], [src(b), TT(b)], kind="perm")
            for b in range(5): V(f"{op} v{dst(b)}, v{src(b)}, v{TT(b)}", dst(b), [src(b), TT(b)])
        xl_reduce(lambda b: vM + b, ML, "v_max_f32")
        for b in range(5): V(f"v_mul_f32 v{NMC(b)}, s{sNC}, v{ML(b)}", NMC(b), [ML(b)])
        for b in range(5): V(f"v_sub_f32 v{NM1(b)}, v{NMC(b)}, v{NM1(b)}", NM1(b), [NMC(b), NM1(b)])
        for b in range(5): A.valu(f"v_exp_f32 v{NM1(b)}, v{NM1(b)}", [NM1(b)], [NM1(b)], kind="trans")
        for kt in (range(4, 5) if "nosm" in cfg.hack else range(4, 8)):
            for b in range(5):
                r = acc_s(kt, b)
                for h in range(2):
                    x = r + 2 * h
                    A.valu(f"v_pk_fma_f32 v[{x}:{x+1}], v[{x}:{x+1}], s[{sC}:{sC+1}], v[{NMC(b)}:{NMC(b)+1}] op_sel_hi:[1,0,0]",
                           [x, x + 1], [x, x + 1, NMC(b)])
            for b in range(5):
                r = acc_s(kt, b)
                for e in range(4):
                    A.valu(f"v_exp_f32 v{r+e}, v{r+e}", [r + e], [r + e], kind="trans")
            for b in range(5):
                r = acc_s(kt, b); l = LS(b)
                if kt == 4:
                    A.valu(f"v_pk_add_f32 v[{l}:{l+1}], v[{r}:{r+1}], v[{r+2}:{r+3}]", [l, l + 1], rng(r, 4))
                else:
                    A.valu(f"v_pk_add_f32 v[{l}:{l+1}], v[{l}:{l+1}], v[{r}:{r+1}]", [l, l + 1], [l, l + 1, r, r + 1])
            if kt > 4:
                for b in range(5):
                    r = acc_s(kt, b); l = LS(b)
                    A.valu(f"v_pk_add_f32 v[{l}:{l+1}], v[{l}:{l+1}], v[{r+2}:{r+3}]", [l, l + 1], [l, l + 1, r + 2, r + 3])
        for b in range(5): V(f"v_add_f32 v{LS(b)}, v{LS(b)}, v{LS(b)+1}", LS(b), [LS(b), LS(b) + 1])
        for b in range(5): V(f"v_fmac_f32 v{LS(b)}, v{L1(b)}, v{NM1(b)}", LS(b), [LS(b), L1(b), NM1(b)])
        xl_reduce(LS, lambda b: ML(b) + 1, "v_add_f32")
        assert ("SCR", 0) in avail
        so = phys["SCR", 0] * 2048
        A.salu("s_mov_b64 exec, 0xffff")
        for b in range(5):
            A.ds_write("ds_write_b64", vSW, ML(b), 2, so + b * 128)
        A.salu("s_mov_b64 exec, -1")
        if shared: need(("V", 0))
        A.wait_lgkm_all()
        self.bar(nm + "B5")
        if shared:
            release(("K", 15)); flush(side)
        RB = lambda b: [160, 168, 176, 196, 204][b]
        for b in range(5):
            for jj in range(4):
                A.ds_read("ds_read_b64", RB(b) + 2 * jj, 2, vSR, jj * RINGSZ + so + b * 128)
        MX = lambda b: vM + b
        for b in range(5):
            r = RB(b)
            V(f"v_max3_f32 v{MX(b)}, v{r}, v{r+2}, v{r+4}", MX(b), [r, r + 2, r + 4])
            V(f"v_max_f32 v{MX(b)}, v{MX(b)}, v{r+6}", MX(b), [MX(b), r + 6])
            V(f"v_mul_f32 v{MX(b)}, s{sNC}, v{MX(b)}", MX(b), [MX(b)])
            for jj in range(4):
                V(f"v_fma_f32 v{r+2*jj}, v{r+2*jj}, s{sC}, v{MX(b)}", r + 2 * jj, [r + 2 * jj, MX(b)])
            V(f"v_sub_f32 v{NMC(b)}, v{MX(b)}, v{NMC(b)}", NMC(b), [MX(b), NMC(b)])
        for b in range(5):
            r = RB(b)
            for jj in range(4):
                A.valu(f"v_exp_f32 v{r+2*jj}, v{r+2*jj}", [r + 2 * jj], [r + 2 * jj], kind="trans")
            A.valu(f"v_exp_f32 v{NMC(b)}, v{NMC(b)}", [NMC(b)], [NMC(b)], kind="trans")
        for b in range(5):
            r = RB(b)
            V(f"v_mul_f32 v{MX(b)}, v{r}, v{r+1}", MX(b), [r, r + 1])
            for jj in range(1, 4):
                V(f"v_fmac_f32 v{MX(b)}, v{r+2*jj}, v{r+2*jj+1}", MX(b), [MX(b), r + 2 * jj, r + 2 * jj + 1])
        for b in range(5):
            A.valu(f"v_rcp_f32 v{MX(b)}, v{MX(b)}", [MX(b)], [MX(b)], kind="trans")
        for b in range(5):
            V(f"v_mul_f32 v{MX(b)}, v{MX(b)}, v{NMC(b)}", MX(b), [MX(b), NMC(b)])
        for b in range(5):
            V(f"v_mul_f32 v{NMC(b)}, v{MX(b)}, v{NM1(b)}", NMC(b), [MX(b), NM1(b)])
        if shared:
            for s in range(2): V(f"v_add_u32 v{vKR+s}, s{sGR}, v{vKR+s}", vKR + s, [vKR + s])
            V(f"v_subrev_u32 v{vTR}, s{sGR}, v{vTR}", vTR, [vTR])
        for a in range(1, 4): V(f"v_xor_b32 v{vTR+a}, {a << 5}, v{vTR}", vTR + a, [vTR])
        prefetch_A("V", sh=shared)
        def writeP(i, b, tag=None):
            A.ds_write("ds_write_b128", vPW, acc_s(2 * i, b), 4, (i & 1) * 20480 + b * 1024, tag=tag)
        for i in range(2):
            for b in range(5):
                r0 = acc_s(2 * i, b); r1 = acc_s(2 * i + 1, b); f = NMC(b)
                for x in (r0, r0 + 2, r1, r1 + 2):
                    A.valu(f"v_pk_mul_f32 v[{x}:{x+1}], v[{x}:{x+1}], v[{f}:{f+1}] op_sel_hi:[1,0]", [x, x + 1], [x, x + 1, f])
                cvt(r0, r0, r0 + 1); cvt(r0 + 1, r0 + 2, r0 + 3); cvt(r0 + 2, r1, r1 + 1); cvt(r0 + 3, r1 + 2, r1 + 3)
                writeP(i, b)
        A.wait_lgkm_all()
        self.bar(nm + "B6")
        release(("SCR", 0))
        for u in range(1, 4): vq.append(lambda u=u: V(f"v_xor_b32 v{vXR+u}, {u << 6}, v{vXR}", vXR + u, [vXR]))
        for u in range(2): vq.append(lambda u=u: V(f"v_add_u32 v{vXRh+u}, 61440, v{vXR+u}", vXRh + u, [vXR + u]))
        vq.append(lambda: V(f"v_add_u32 v{vWQ+1}, {16*8192-1024}, v{vWQ}", vWQ + 1, [vWQ]))
        vq.append(lambda: V(f"v_add_u32 v{vWO+1}, {8*896-1024}, v{vWO}", vWO + 1, [vWO]))
        vq.append(lambda: V(f"v_add_u32 v{vLin1}, {BREG}, v{vLin0}", vLin1, [vLin0]))
        def q_pack(i):
            for b in range(5):
                r0 = acc_s(2 * i, b); r1 = acc_s(2 * i + 1, b)
                for x in rng(r0, 4) + rng(r1, 4):
                    vq.append(lambda x=x, b=b: V(f"v_mul_f32 v{x}, v{x}, v{MX(b)}", x, [x, MX(b)]))
                for (d, x) in ((r0, r0), (r0 + 1, r0 + 2), (r0 + 2, r1), (r0 + 3, r1 + 2)):
                    vq.append(lambda d=d, x=x: cvt(d, x, x + 1))
        q_pack(2)
        def q_write(i):
            for b in range(5): slow.append(lambda b=b: writeP(i, b, tag=("pw", i)))
        def at4():
            flush(vq); q_write(2); q_pack(3)
        def at8():
            q_write(3)
            if cfg.early:
                A.rfl(22, vQR)
                A.nop(2)
        def read_p(ks, b, dst):
            A.ds_read("ds_read_b128", dst, 4, vLinG, ((ks & 7) * 5 + b) * 1024)
        for b in range(5): read_p(0, b, B_tr(b))
        if cfg.early: A.bload(vQR, 1, vT1, 8, "0", flags="sc1", tag="chk")
        if not shared:
            release(("V", 0)); release(("V", 1))
        BXP = ACC + 140
        for s in range(14):
            kstep(s & 1, s == 0, ("V", s + 1, shared), lambda b, s=s: read_p(s + 1, b, B_tr(b)),
                  cur_sh=(("V", s) if shared else None), barrier=(s in (4, 8)),
                  after={4: at4, 8: at8}.get(s), pub={7: ("pw", 2), 11: ("pw", 3)}.get(s),
                  extra=((lambda b: read_p(15, b, BXP + 4 * b)) if s == 12 else None), label=("V", s))
        xq = deque((pair, t) for pair in range(2) for t in range(5))
        xs = [int(v) for v in cfg.xsplit.split(",")]
        xp = [int(v) for v in cfg.xpos.split(",")]
        def xl(n):
            for _ in range(n): side.append(lambda e=xq.popleft(): (xdone.add(e), (self.x_load_c if cfg.cond else self.x_load)(*e)))
        xdone = set()
        def pend_x(): return [(pair, t) for pair in range(2) for t in range(5) if (pair, t) not in xdone]
        def el(gs):
            L = []
            for g in gs:
                r = ACC + 80 + 4 * g
                L += [f"s_add_u32 s{sT0}, s20, {g * 71680}",
                      f"buffer_load_dwordx4 v[{r}:{r+3}], v{vLin0}, s[16:19], s{sT0} offen sc1"]
            self.cond_block("s_cmp_eq_u32 s22, 8", L)
        def done_o(b):
            for i in range(2): pair_cvt(i, b, vq)
            for i in range(2):
                r0 = ACC + ((2 * i) * 5 + b) * 4
                vq.append(lambda r0=r0, i=i: A.ds_write("ds_write_b128", vOW, r0, 4, (i * 5 + b) * 1024))
        hooks = {}
        for n, p in zip(xs, xp): hooks[p + 9] = (lambda n=n: xl(n))
        def o_h5():
            if shared:
                for a in range(4): V(f"v_add_u32 v{vTR+a}, s{sGR}, v{vTR+a}", vTR + a, [vTR + a])
        hooks[5] = o_h5
        hooks[32] = lambda: prefetch_A("WO")
        self.stamp(nm + "Pj")
        joint(("V", 15, shared), BXP, done_o, cur_sh=(("V", 14) if shared else None), hooks=hooks)
        A.wait_lgkm_all()
        release(("WO", 0)); release(("WO", 1))
        self.bar(nm + "B10")
        if cfg.w7:
            assert cfg.cond and not cfg.early
            A.salu(f"s_cmp_lg_u32 s{sW}, 7")
            A.salu(f"s_cbranch_scc1 L_o{blk}")
            save = (list(A.vm), list(A.lgkm), dict(A.vw), self.m0slot)
            for e in pend_x(): self.x_load_c(*e)
            A.raw("s_waitcnt vmcnt(0)")
            A.vm = []
            for n in range(5):
                for pc in range(2): self.slot_dma("WQ", n & 1, ("w7", n), n, pc, blk)
            A.barrier()
            for t in range(5): self.x_write_c(0, t)
            A.raw("s_waitcnt vmcnt(0) lgkmcnt(0)")
            A.barrier()
            for y in range(2):
                for a in range(4): tr_read(0, a, y, y * 2048, None)
            for b in range(5): read_x(0, b, B_tr(b))
            A.wait_lgkm_all()
            for n in range(5, 7):
                for pc in range(2): self.slot_dma("WQ", n & 1, ("w7", n), n % 5, pc, blk)
            A.salu(f"s_branch L_oend{blk}")
            A.label(f"L_o{blk}")
            A.vm, A.lgkm, A.vw, self.m0slot = save
        def read_o(ks, b):
            A.ds_read("ds_read_b128", B_tr(b), 4, vLin0 if ks < 8 else vLin1, ((ks & 7) * 5 + b) * 1024)
        for b in range(5): read_o(0, b)
        def mid_o():
            for t in range(5): slow.append(lambda t=t: (self.x_write_c if cfg.cond else self.x_write)(0, t))
        def tail_po(b):
            for i in range(2):
                r0 = ACC + ((2 * i) * 5 + b) * 4; r1 = ACC + ((2 * i + 1) * 5 + b) * 4
                d = ACC + 120 + (i * 5 + b) * 4
                for e, x in enumerate((r0, r0 + 2, r1, r1 + 2)):
                    vq.append(lambda d=d + e, x=x: cvt(d, x, x + 1))
        st["pr"] = 0
        eblk = deque()
        if cfg.early:
            D = ACC + 80; S_ = ACC + 112; t0_, t1_ = ACC + 140, ACC + 141
            for g in range(8):
                L = []
                for d in range(4):
                    src = D + 4 * g + d; lo = S_ + 2 * d
                    if g == 0:
                        L += [f"v_lshlrev_b32 v{lo}, 16, v{src}", f"v_and_b32 v{lo+1}, 0xffff0000, v{src}"]
                    else:
                        L += [f"v_lshlrev_b32 v{t0_}, 16, v{src}", f"v_and_b32 v{t1_}, 0xffff0000, v{src}",
                              f"v_add_f32 v{lo}, v{lo}, v{t0_}", f"v_add_f32 v{lo+1}, v{lo+1}, v{t1_}"]
                eblk.append(L[:8]);
                if len(L) > 8: eblk.append(L[8:])
            L = [f"v_cvt_pk_bf16_f32 v{D+d}, v{S_+2*d}, v{S_+2*d+1}" for d in range(4)]
            L += [f"v_bfe_u32 v{t0_}, v{vLin0}, 4, 4", f"v_mul_u32_u24 v{t0_}, 1792, v{t0_}",
                  f"v_bfe_u32 v{t1_}, v{vLin0}, 8, 1", f"v_lshl_add_u32 v{t0_}, v{t1_}, 5, v{t0_}",
                  f"v_lshrrev_b32 v{t1_}, 9, v{vLin0}", f"v_lshl_add_u32 v{t0_}, v{t1_}, 4, v{t0_}",
                  f"v_permlane16_swap_b32 v{D}, v{D+2}", f"v_permlane16_swap_b32 v{D+1}, v{D+3}",
                  f"buffer_store_dwordx4 v[{D}:{D+3}], v{t0_}, s[12:15], s21 offen"]
            eblk.append(L)
        def ex_o(b, s):
            ep = [int(v) for v in cfg.epos.split(",")]
            n = 8 // len(ep)
            if cfg.early and b == 0 and s in ep: el(range(ep.index(s) * n, ep.index(s) * n + n))
            assert cfg.ecomp >= ep[-1] + 3
            if s >= cfg.ecomp and eblk: self.cond_block("s_cmp_eq_u32 s22, 8", eblk.popleft())
        for s in range(16):
            last = s == 15
            kstep(s & 1, s == 0, ("NWQ", 0, False) if last else ("WO", s + 1, False),
                  (lambda b: read_x(0, b, B_tr(b))) if last else (lambda b, s=s: read_o(s + 1, b)),
                  barrier=(s == 8), after=(mid_o if s == 8 else None), pub=(("xw", 0) if s == 13 else None),
                  tail=(tail_po if last else None), label=("WO", s), extra=(lambda b, s=s: ex_o(b, s)))
            if s == 14: assert not eblk
        flush(side)
        if cfg.w7: A.label(f"L_oend{blk}")
        A.salu(f"s_mov_b64 s[{sPO}:{sPO+1}], s[{sPOB(blk)}:{sPOB(blk)+1}]")
        A.salu(f"s_mov_b32 s{sPO+2}, 71680")
        assert sorted(q[0][1] for q in slotq) == [2, 3, 4, 5, 6] and all(len(q) == 1 for q in slotq)
        act = [("WQ", t[1]) if t[0] == "NWQ" else t for t, _ in A.vm]
        can = [t for t, _ in self.canon_vm]
        assert act == can[len(can) - len(act):], (act, can)
        actl = [d for _, d in A.lgkm]; canl = [d for _, d in can_l]
        assert actl == canl[len(canl) - len(actl):], (actl, canl)
        self.stamp(nm + "Odone")
        A.salu(f"s_add_u32 s{sPH}, s{sPH}, 1")
        A.salu(f"s_cmp_eq_u32 s{sPH}, 2")
        A.salu("s_cbranch_scc1 L_final")
        if blk == 1: A.salu("s_branch L_body0")

    def final(self):
        A = self.A; cfg = self.cfg
        A.label("L_final")
        A.vm = []; A.lgkm = []
        V = self.V
        if cfg.fuse: A.raw("s_load_dwordx4 s[4:7], s[0:1], 80")
        for i in range(2):
            for b in range(5): self.store_po(i, b, cfg.pof_flags)
        if cfg.early:
            A.raw("v_mov_b32 v1, s22"); A.raw("v_mov_b32 v2, s23")
            A.raw("s_mov_b64 exec, 1")
            A.raw("global_store_dword v2, v1, s[24:25]")
            A.raw("s_mov_b64 exec, -1")
        if cfg.fuse:
            R = A.raw
            BS = 256 * 71680
            V(f"v_lshrrev_b32 v2, 4, v{vLin0}", 2, [vLin0])
            V("v_and_b32 v4, 15, v2", 4, [2])
            V("v_mul_u32_u24 v4, 1792, v4", 4, [4])
            V("v_bfe_u32 v5, v2, 4, 1", 5, [2])
            V("v_lshl_add_u32 v4, v5, 5, v4", 4, [4, 5])
            V("v_lshrrev_b32 v5, 5, v2", 5, [2])
            V("v_lshl_add_u32 v4, v5, 4, v4", 4, [4, 5])
            R(f"s_lshl_b32 s20, s{sB}, 2")
            V("v_mov_b32 v2, s20", 2, [])
            V("v_mov_b32 v1, 1", 1, [])
            V("v_mov_b32 v3, 0", 3, [])
            R(f"s_mul_i32 s20, s{sB}, {8*71680}")
            R("s_add_u32 s16, s24, s20"); R("s_addc_u32 s17, s25, 0"); R("s_and_b32 s17, s17, 0xffff")
            R(f"s_mov_b32 s18, {BS + 8*71680}"); R("s_mov_b32 s19, 0x20000")
            R(f"s_lshl_b32 s21, 1, s{sHG}")
            R("s_waitcnt vmcnt(0) lgkmcnt(0)")
            R("s_mov_b32 s8, s6"); R("s_and_b32 s9, s7, 0xffff"); R("s_mov_b32 s10, 256"); R("s_mov_b32 s11, 0x20000")
            R("s_mov_b32 s12, s4"); R("s_and_b32 s13, s5, 0xffff"); R(f"s_mov_b32 s14, {32*80*896*2}"); R("s_mov_b32 s15, 0x20000")
            R("s_barrier")
            self.stamp("drain")
            R(f"s_cmp_lg_u32 s{sW}, 0")
            R("s_cbranch_scc1 L_wait")
            R("s_mov_b64 exec, 1")
            R("buffer_atomic_add v1, v2, s[8:11], 0 offen sc0 sc1")
            R("s_waitcnt vmcnt(0)")
            R("v_readfirstlane_b32 s20, v1")
            R("s_nop 3")
            R("s_lshr_b32 s23, s20, 8"); R("s_or_b32 s23, s23, s21")
            R("s_and_b32 s20, s20, 0xff"); R("s_cmp_eq_u32 s20, 7")
            R("s_cbranch_scc1 L_pub")
            R("s_mov_b32 s23, s21")
            R(f"s_mov_b32 s22, {cfg.spin}")
            A.label("L_poll")
            if cfg.slp: R(f"s_sleep {cfg.slp}")
            R(f"buffer_load_dword v1, v2, s[8:11], 0 offen {cfg.pollflags}")
            R("s_waitcnt vmcnt(0)")
            R("v_readfirstlane_b32 s20, v1")
            R("s_nop 3")
            R("s_and_b32 s20, s20, 0xff"); R("s_cmp_eq_u32 s20, 8")
            R("s_cbranch_scc1 L_pub")
            R("s_sub_u32 s22, s22, 1"); R("s_cmp_lg_u32 s22, 0")
            R("s_cbranch_scc1 L_poll")
            R("s_lshl_b32 s20, s21, 8")
            R("v_mov_b32 v1, s20")
            R("buffer_atomic_or v1, v2, s[8:11], 0 offen sc0 sc1")
            R("s_waitcnt vmcnt(0)")
            R("v_readfirstlane_b32 s20, v1")
            R("s_nop 3")
            R("s_and_b32 s20, s20, 0xff"); R("s_cmp_eq_u32 s20, 8")
            R("s_cselect_b32 s23, s21, 0")
            A.label("L_pub")
            R("v_mov_b32 v1, s23")
            R("ds_write_b32 v3, v1")
            R("s_waitcnt lgkmcnt(0)")
            R("s_mov_b64 exec, -1")
            A.label("L_wait")
            R("s_barrier")
            R("ds_read_b32 v1, v3")
            R("s_waitcnt lgkmcnt(0)")
            R("v_readfirstlane_b32 s23, v1")
            R("s_nop 3")
            self.stamp("go")
            A.label("L_share")
            R("s_cmp_eq_u32 s23, 0")
            R("s_cbranch_scc1 L_shares_done")
            R("s_ff1_i32_b32 s20, s23")
            R("s_bitset0_b32 s23, s20")
            R(f"s_lshl_b32 s22, s{sW}, 3"); R("s_add_u32 s22, s22, s20")
            A.vm = []; A.lgkm = []; A.vw = {}
            for r in range(3):
                so = 28 + r
                R(f"s_add_u32 s32, s22, {64*r}")
                R("s_cmp_ge_u32 s32, 70"); R("s_cselect_b32 s33, 1, 0")
                R("s_mul_i32 s34, s33, 70"); R("s_sub_u32 s34, s32, s34")
                R("s_mul_i32 s35, s34, 205"); R("s_lshr_b32 s35, s35, 10")
                R("s_mul_i32 s36, s35, 5"); R("s_sub_u32 s36, s34, s36")
                R(f"s_mul_i32 s37, s{sB}, 80"); R("s_lshl_b32 s36, s36, 4"); R("s_add_u32 s37, s37, s36")
                R("s_mul_i32 s37, s37, 1792"); R("s_mul_i32 s36, s33, 896"); R("s_add_u32 s37, s37, s36")
                R("s_lshl_b32 s35, s35, 6"); R(f"s_add_u32 s{so}, s37, s35")
                R(f"s_mul_i32 s33, s33, {BS}"); R("s_lshl_b32 s34, s34, 10"); R("s_add_u32 s33, s33, s34")
                if r == 2:
                    R("s_cmp_lt_u32 s32, 140")
                    R("s_cselect_b32 s33, s33, 0x40000000"); R(f"s_cselect_b32 s{so}, s{so}, 0x40000000")
                for g in range(8):
                    A.bload(32 + (r * 8 + g) * 4, 4, vLin0, 16, 33, flags=cfg.shflags)
                    if g < 7: R("s_add_u32 s33, s33, 71680")
            for r in range(3):
                for g in range(8):
                    src = 32 + (r * 8 + g) * 4
                    for d in range(4):
                        lo = 16 + 2 * d; hi = lo + 1
                        if g == 0:
                            V(f"v_lshlrev_b32 v{lo}, 16, v{src+d}", lo, [src + d])
                            V(f"v_and_b32 v{hi}, 0xffff0000, v{src+d}", hi, [src + d])
                        else:
                            V(f"v_lshlrev_b32 v6, 16, v{src+d}", 6, [src + d])
                            V(f"v_and_b32 v7, 0xffff0000, v{src+d}", 7, [src + d])
                            A.valu(f"v_pk_add_f32 v[{lo}:{lo+1}], v[{lo}:{lo+1}], v[6:7]", [lo, lo + 1], [lo, lo + 1, 6, 7])
                o = 8 + 4 * (r & 1)
                for d in range(4): V(f"v_cvt_pk_bf16_f32 v{o+d}, v{16+2*d}, v{17+2*d}", o + d, [16 + 2 * d, 17 + 2 * d])
                A.valu(f"v_permlane16_swap_b32 v{o}, v{o+2}", [o, o + 2], [o, o + 2], kind="perm")
                A.valu(f"v_permlane16_swap_b32 v{o+1}, v{o+3}", [o + 1, o + 3], [o + 1, o + 3], kind="perm")
                A.bstore(o, 4, 4, 12, 28 + r)
            A.nop(2)
            R("s_branch L_share")
            A.label("L_shares_done")
        if cfg.stamp:
            A.raw("s_waitcnt vmcnt(0)")
            self.stamp("end")
            A.salu("s_add_u32 s28, s24, 0x8000000")
            A.salu("s_addc_u32 s29, s25, 0")
            A.salu("s_and_b32 s29, s29, 0xffff")
            A.salu("s_mov_b32 s30, 0x100000")
            A.salu("s_mov_b32 s31, 0x20000")
            A.salu(f"s_lshl_b32 s{sT0}, s2, 3")
            A.salu(f"s_add_u32 s{sT0}, s{sT0}, s{sW}")
            A.salu(f"s_lshl_b32 s{sT0}, s{sT0}, 8")
            A.valu(f"v_lshrrev_b32 v0, 2, v{vLin0}", [0], [vLin0])
            A.bstore(vSTAMP, 1, 0, 28, sT0)
            open(cfg.path + ".stamps", "w").write(" ".join(self.stamps))
        if cfg.dbgspan:
            R = A.raw
            R("s_load_dwordx2 s[6:7], s[0:1], 88")
            R("s_waitcnt vmcnt(0)")
            R("s_memrealtime s[4:5]")
            R("s_waitcnt lgkmcnt(0)")
            R("s_mov_b32 s8, s6"); R("s_and_b32 s9, s7, 0xffff"); R("s_mov_b32 s10, 256"); R("s_mov_b32 s11, 0x20000")
            R("s_not_b32 s26, s26")
            R("v_mov_b32 v1, s26"); R("v_mov_b32 v2, s4"); R("v_mov_b32 v3, 0")
            R("s_mov_b64 exec, 1")
            R("buffer_atomic_umax v1, v3, s[8:11], 0 offen sc1")
            R("buffer_atomic_umax v2, v3, s[8:11], 0 offen offset:4 sc1")
        A.label("L_attn_done")
        A.raw("s_endpgm")


def gen_main(cfg):
    g = Gen(cfg)
    if "nomfma" in cfg.hack:
        om = g.A.mfma
        def fake(d, a, b, czero=False):
            g.A._mem_ready(rng(a, 4) + rng(b, 4))
        g.A.mfma = fake
    kn = NAME + "_kernel"
    g.A.label(kn)
    g.setup(); g.body(0); g.body(1); g.final()
    return kn, g.A


def gen_reduce(cfg):
    A = Asm()
    kn = "reduce_kernel"
    R = A.salu
    def V(text, w, r): A.valu(text, w if isinstance(w, list) else [w], r)
    A.label(kn)
    if cfg.span: A.raw("s_memrealtime s[28:29]")
    rw = cfg.rw
    R(f"s_cmp_ge_u32 s2, {4480 // rw}")
    R("s_cbranch_scc1 L_red_done")
    R("s_load_dwordx2 s[4:5], s[0:1], 80")
    R("s_load_dwordx2 s[6:7], s[0:1], 96")
    V("v_lshrrev_b32 v1, 6, v0", 1, [0])
    V("v_and_b32 v2, 63, v0", 2, [0])
    A.rfl(8, 1)
    V("v_lshlrev_b32 v3, 4, v2", 3, [2])
    A.nop(2)
    R(f"s_mul_i32 s9, s2, {rw}"); R("s_add_u32 s9, s9, s8")
    R(f"s_mul_hi_u32 s10, s9, {(1 << 32) // 70 + 1}")
    R("s_mul_i32 s11, s10, 70"); R("s_sub_u32 s11, s9, s11")
    R("s_and_b32 s12, s10, 31")
    R("s_lshr_b32 s13, s10, 5")
    R("s_xor_b32 s14, s12, s13"); R("s_not_b32 s14, s14"); R("s_and_b32 s14, s14, 1")
    R("s_lshl_b32 s15, s12, 6"); R("s_add_u32 s15, s15, s11"); R("s_lshl_b32 s15, s15, 2"); R("s_add_u32 s15, s15, 0x4000000")
    A.raw("s_waitcnt lgkmcnt(0)")
    if cfg.early:
        R("s_cmp_eq_u32 s13, 0"); R("s_cbranch_scc1 L_red_go")
        R("s_cmp_ge_u32 s11, 64"); R("s_cbranch_scc1 L_red_go")
        R("s_load_dword s26, s[6:7], s15")
        A.raw("s_waitcnt lgkmcnt(0)")
        R("s_cmp_eq_u32 s26, 8"); R("s_cbranch_scc1 L_red_end")
        A.label("L_red_go")
    R("s_lshl_b32 s24, s14, 5"); R("s_add_u32 s24, s24, s12"); R(f"s_mul_i32 s24, s24, {8*71680}")
    R("s_add_u32 s16, s6, s24"); R("s_addc_u32 s17, s7, 0"); R("s_and_b32 s17, s17, 0xffff")
    R(f"s_mov_b32 s18, {8*71680}"); R("s_mov_b32 s19, 0x20000")
    R("s_lshl_b32 s15, s11, 10")
    for g in range(8):
        A.bload(16 + g * 4, 4, 3, 16, 15, flags=cfg.rd_flags)
        if g < 7: R("s_add_u32 s15, s15, 71680")
    R("s_mov_b32 s20, s4"); R("s_and_b32 s21, s5, 0xffff"); R(f"s_mov_b32 s22, {32*80*896*2}"); R("s_mov_b32 s23, 0x20000")
    R("s_mul_i32 s25, s11, 205"); R("s_lshr_b32 s25, s25, 10")
    R("s_mul_i32 s26, s25, 5"); R("s_sub_u32 s26, s11, s26")
    R("s_mul_i32 s24, s12, 80"); R("s_lshl_b32 s26, s26, 4"); R("s_add_u32 s24, s24, s26"); R("s_mul_i32 s24, s24, 1792")
    R("s_mul_i32 s26, s14, 896"); R("s_add_u32 s24, s24, s26"); R("s_lshl_b32 s25, s25, 6"); R("s_add_u32 s24, s24, s25")
    V("v_and_b32 v4, 15, v2", 4, [2])
    V("v_mul_u32_u24 v4, 1792, v4", 4, [4])
    V("v_bfe_u32 v5, v2, 4, 1", 5, [2])
    V("v_lshl_add_u32 v4, v5, 5, v4", 4, [4, 5])
    V("v_lshrrev_b32 v5, 5, v2", 5, [2])
    V("v_lshl_add_u32 v4, v5, 4, v4", 4, [4, 5])
    for g in range(8):
        src = 16 + g * 4
        for d in range(4):
            lo = 48 + 2 * d; hi = lo + 1
            if g == 0:
                V(f"v_lshlrev_b32 v{lo}, 16, v{src+d}", lo, [src + d])
                V(f"v_and_b32 v{hi}, 0xffff0000, v{src+d}", hi, [src + d])
            else:
                V(f"v_lshlrev_b32 v6, 16, v{src+d}", 6, [src + d])
                V(f"v_and_b32 v7, 0xffff0000, v{src+d}", 7, [src + d])
                A.valu(f"v_pk_add_f32 v[{lo}:{lo+1}], v[{lo}:{lo+1}], v[6:7]", [lo, lo + 1], [lo, lo + 1, 6, 7])
    for d in range(4): V(f"v_cvt_pk_bf16_f32 v{8+d}, v{48+2*d}, v{49+2*d}", 8 + d, [48 + 2 * d, 49 + 2 * d])
    A.valu("v_permlane16_swap_b32 v8, v10", [8, 10], [8, 10], kind="perm")
    A.valu("v_permlane16_swap_b32 v9, v11", [9, 11], [9, 11], kind="perm")
    A.bstore(8, 4, 4, 20, 24)
    A.label("L_red_end")
    if cfg.span:
        A.raw("s_waitcnt vmcnt(0)")
        A.raw("s_memrealtime s[30:31]")
        A.raw("s_waitcnt lgkmcnt(0)")
        A.raw("v_mov_b32 v8, s28"); A.raw("v_mov_b32 v9, s30"); A.raw("v_mov_b32 v10, 0")
        R("s_add_u32 s16, s6, 0x8100000"); R("s_addc_u32 s17, s7, 0"); R("s_and_b32 s17, s17, 0xffff")
        R("s_mov_b32 s18, 0x100000"); R("s_mov_b32 s19, 0x20000"); R("s_lshl_b32 s15, s9, 3")
        A.raw("buffer_store_dwordx2 v[8:9], v10, s[16:19], s15 offen")
    A.label("L_red_done")
    A.raw("s_endpgm")
    return kn, A


def build(cfg, path):
    cfg.path = path
    hdr = open("cdna_kernels/" + NAME + ".s.ref").read().split("\n")
    head = [l for l in hdr if l.startswith(";") and "@launch" not in l and "Override launch" not in l and "grid=ceil" not in l]
    k1, A1 = gen_main(cfg)
    ks = [(k1, A1)]
    out = "\n".join(head) + "\n"
    if cfg.listfmt: out += f"; @launch kernel={k1} grid=(256,1,1) block=(512,1,1) lds=163840\n"
    else: out += f"; @launch grid=(256,1,1) block=(512,1,1) lds=163840\n"
    if not cfg.fuse:
        k2, A2 = gen_reduce(cfg)
        ks.append((k2, A2))
        out += f"; @launch kernel={k2} grid=({4480 // cfg.rw},1,1) block=({64 * cfg.rw},1,1) lds=0\n"
    out += '.amdgcn_target "amdgcn-amd-amdhsa--gfx950"\n.text\n'
    for k, A in ks:
        out += f".globl {k}\n.p2align 8\n.type {k},@function\n" + A.text()
    out += '.section .rodata,"a"\n.p2align 6\n'
    out += kernel_desc(k1, 256, 102, 256)
    if not cfg.fuse: out += ".p2align 6\n" + kernel_desc(k2, 56, 32, 56)
    open(path, "w").write(out)
    print(path, "mfma", A1.nmfma, "lines", len(A1.lines))

if __name__ == "__main__":
    cfg = Cfg()
    for a in sys.argv[2:]:
        k, v = a.split("=")
        setattr(cfg, k, type(getattr(cfg, k))(v))
    if cfg.span: cfg.stamp = 1; cfg.rt = 1
    build(cfg, sys.argv[1] if len(sys.argv) > 1 else "cdna_kernels/" + NAME + ".s")
```

```python
import sys, struct
from collections import deque
from asmlib import *

NAME = "concat_heads__gqa_block_cached__mha_block_cached__near_ridge"

class Cfg:
    R = 5
    kv_flags = "nt"
    w_flags = ""
    x_flags = ""
    po_flags = "sc1"
    pof_flags = "sc1"
    rd_flags = ""
    rel_pos = 8
    s_rel_pos = 5
    stamp = 0
    order = 2
    pre = 0
    krot = 1
    kpA = 0
    kpB = 0
    kp_per = 2
    kp_start = 0
    relx = 5
    ypos = 10
    npump = 2
    prio = 0
    stpos = 'b1'
    tlb = 0
    only = 0
    rt = 0
    fuse = 0
    rw = 2
    spin = 3000
    slp = 0
    shflags = 'sc1'
    pollflags = 'sc0 sc1'
    listfmt = 1
    span = 0
    fair = 1
    fairs = 0
    kst = ''
    xpos = '0,12,24'
    st0 = 1
    pro = 1
    cond = 1
    early = 0
    w7 = 1
    dbgspan = 0
    kpf = 7
    stA = '0,5'
    stB = '0,5'
    xk = ''
    x2f = ''
    noearly = 0
    epos = '4,8'
    ecomp = 11
    kpat = '2,5,8,11'
    kpn = 4
    kpbar = 1
    hack = ''
    dbgstart = 0
    tlbk = 0
    xsplit = '4,4,2'
    late = 1
    sm_per = 2

def f32bits(x):
    return struct.unpack("<I", struct.pack("<f", x))[0]

BREG = 40960
RING0 = 81920
RINGSZ = 10240

ACC = 0
FR = 160
def A_tr(par, a): return FR + par * 16 + a * 4
def B_tr(b): return FR + 32 + 4 * b
def B_s(s, b): return FR + (s * 5 + b) * 4
def A_s(par, s): return FR + 40 + par * 8 + s * 4
_v = 216
def _alloc(n=1):
    global _v
    r = _v; _v += n
    assert _v <= 256
    return r
vKR = _alloc(2); vK = _alloc(2); vV = _alloc(2); vX = _alloc(2)
vLinG = _alloc(); vQR = _alloc(); vSW = _alloc(); vSR = _alloc(); vPW = _alloc(); vRW = _alloc(); vLin0 = _alloc()
vQW = _alloc(); vOW = _alloc()
vTR = _alloc(4); vXR = _alloc(4); vXRh = _alloc(2); vWQ = _alloc(2); vWO = _alloc(2); vLin1 = _alloc()
vM = _alloc(5); vT0 = _alloc(); vT1 = _alloc()
BORROW = [vTR + 1, vTR + 2, vTR + 3, vXR + 1, vXR + 2, vXR + 3, vXRh, vXRh + 1, vWQ + 1, vWO + 1, vLin1]
assert _v <= 255
vSTAMP = 255

sX = 28; sWQ = 32; sNX = 36; sNWQ = 40; sPO = 44
def sKV(blk, k): return 48 + blk * 12 + k * 4
def sPOB(blk): return 72 + blk * 2
sRING = 76; sOFF = 77; sC = 78
sNC = 80; sXM0 = 81; sPOW = 82; sW = 83; sJ = 84; sG = 85; sB = 86; sHG = 87
sT0 = 88; sT1 = 89; sT2 = 90; sT3 = 91; sPH = 92; sGR = 93
sCOL = 94
sWQK = 98; sWOK = 99; sSTI = 100; sSIG = 101


class Gen:
    def __init__(self, cfg):
        self.cfg = cfg
        self.A = Asm()
        self.stamps = []

    def V(self, text, w, r):
        self.A.valu(text, w if isinstance(w, list) else [w], r)

    def stamp(self, name):
        if not self.cfg.stamp: return
        if self.cfg.span and name != "end": return
        A = self.A
        A.raw("s_memrealtime s[26:27]" if self.cfg.rt else "s_memtime s[26:27]")
        A.raw("s_waitcnt lgkmcnt(0)")
        A.lgkm = []
        A.raw(f"s_mov_b32 m0, s{sSTI}")
        A.raw(f"s_add_u32 s{sSTI}, s{sSTI}, 1")
        A.raw(f"s_min_u32 s{sSTI}, s{sSTI}, 62")
        A.raw(f"v_writelane_b32 v{vSTAMP}, s26, m0")
        self.m0slot = None
        self.stamps.append(name)

    def bar(self, name=None):
        self.A.barrier()
        if name: self.stamp(name)

    def setup(self):
        A = self.A; V = self.V; cfg = self.cfg
        if cfg.rt: A.raw("s_memrealtime s[70:71]")
        if cfg.dbgspan: A.raw("s_memrealtime s[26:27]")
        A.salu("s_cmp_ge_u32 s2, 256")
        A.salu("s_cbranch_scc1 L_attn_done")
        if cfg.only:
            A.salu(f"s_and_b32 s3, s2, {cfg.only}")
            A.salu("s_cbranch_scc1 L_attn_done")
        A.salu("s_load_dwordx16 s[4:19], s[0:1], 0")
        A.salu("s_load_dwordx4 s[20:23], s[0:1], 64")
        A.salu("s_load_dwordx2 s[24:25], s[0:1], 96")
        vL = 4; vG = 5; vQ = 6; vTmp = 7
        t1 = 1; t2 = 2; t3 = 3
        V(f"v_lshrrev_b32 v{vTmp}, 6, v0", vTmp, [0])
        V(f"v_and_b32 v{vL}, 63, v0", vL, [0])
        A.rfl(sW, vTmp)
        V(f"v_lshrrev_b32 v{vG}, 4, v{vL}", vG, [vL])
        V(f"v_and_b32 v{vQ}, 15, v{vL}", vQ, [vL])
        A.nop(2)
        A.salu(f"s_and_b32 s{sJ}, s{sW}, 3")
        A.salu(f"s_lshr_b32 s{sG}, s{sW}, 2")
        A.salu(f"s_lshr_b32 s{sB}, s2, 3")
        A.salu(f"s_and_b32 s{sHG}, s2, 7")
        A.salu(f"s_mul_i32 s{sRING}, s{sW}, {RINGSZ}")
        A.salu(f"s_add_u32 s{sRING}, s{sRING}, {RING0}")
        A.salu(f"s_mul_i32 s{sXM0}, s{sG}, 20480")
        A.salu(f"s_lshl_b32 s{sT0}, s{sJ}, 10")
        A.salu(f"s_add_u32 s{sXM0}, s{sXM0}, s{sT0}")
        V(f"v_and_b32 v{t1}, 7, v{vL}", t1, [vL])
        V(f"v_lshlrev_b32 v{t3}, 1, v{vG}", t3, [vG])
        V(f"v_xor_b32 v{t3}, v{t3}, v{t1}", t3, [t3, t1])
        V(f"v_lshlrev_b32 v{t3}, 4, v{t3}", t3, [t3])
        V(f"v_lshrrev_b32 v{t2}, 3, v{vL}", t2, [vL])
        A.salu(f"s_lshl_b32 s{sT0}, s{sJ}, 7")
        V(f"v_lshrrev_b32 v{vTmp}, 5, v{vL}", vTmp, [vL])
        V(f"v_lshlrev_b32 v{vTmp}, 3, v{vTmp}", vTmp, [vTmp])
        V(f"v_and_b32 v{vWQ}, 3, v{t2}", vWQ, [t2])
        V(f"v_add_u32 v{vTmp}, v{vTmp}, v{vWQ}", vTmp, [vTmp, vWQ])
        V(f"v_lshl_add_u32 v{vWQ}, v{vTmp}, 13, v{t3}", vWQ, [vTmp, t3])
        V(f"v_add_u32 v{vWQ}, s{sT0}, v{vWQ}", vWQ, [vWQ])
        V(f"v_add_u32 v{vWQ+1}, {16*8192-1024}, v{vWQ}", vWQ + 1, [vWQ])
        if cfg.krot:
            A.salu(f"s_lshr_b32 s{sT3}, s{sB}, 1")
            A.salu(f"s_min_u32 s{sT3}, s{sT3}, 13")
        else:
            A.salu(f"s_mov_b32 s{sT3}, 0")
        A.salu(f"s_lshl_b32 s{sWQK}, s{sT3}, 18")
        A.salu(f"s_sub_u32 s{sWQK}, s{sWQK}, 262144")
        A.salu(f"s_cselect_b32 s{sWQK}, {13*262144}, s{sWQK}")
        A.salu(f"s_lshl_b32 s{sT1}, s{sJ}, 2")
        A.salu(f"s_lshl_b32 s{sT2}, s{sG}, 8")
        A.salu(f"s_lshl_b32 s{sT3}, s{sT3}, 6")
        A.salu(f"s_add_u32 s{sT2}, s{sT2}, s{sT3}")
        V(f"v_add_u32 v8, s{sT1}, v{vG}", 8, [vG])
        V(f"v_xor_b32 v9, v8, v{vQ}", 9, [8, vQ])
        V(f"v_lshl_add_u32 v9, v9, 4, s{sT2}", 9, [9])
        V(f"v_mul_u32_u24 v8, 896, v8", 8, [8])
        for pair in range(2):
            if pair: V(f"v_add_u32 v9, 512, v9", 9, [9])
            V(f"v_subrev_u32 v10, 896, v9", 10, [9])
            V(f"v_min_u32 v10, v10, v9", 10, [10, 9])
            V(f"v_add_u32 v{vX+pair}, v8, v10", vX + pair, [8, 10])
        V(f"v_subrev_u32 v9, s{sT3}, v9", 9, [9])
        V(f"v_mov_b32 v10, 0x4000000", 10, [])
        V(f"v_cmp_gt_u32 vcc, 896, v9", [], [9])
        A.nop(2)
        V(f"v_cndmask_b32 v{vX+1}, v10, v{vX+1}, vcc", vX + 1, [10, vX + 1])
        A.raw("s_waitcnt lgkmcnt(0)")
        def fin(srd, off_s, nrec):
            A.salu(f"s_add_u32 s{srd}, s{srd}, s{off_s}")
            A.salu(f"s_addc_u32 s{srd+1}, s{srd+1}, 0")
            A.salu(f"s_and_b32 s{srd+1}, s{srd+1}, 0xffff")
            A.salu(f"s_mov_b32 s{srd+2}, {nrec}")
            A.salu(f"s_mov_b32 s{srd+3}, 0x20000")
        if cfg.order == 2: A.salu(f"s_and_b32 s3, s{sB}, 1")
        elif cfg.order == 3: A.salu(f"s_and_b32 s3, s{sHG}, 1")
        elif cfg.order == 4:
            A.salu(f"s_and_b32 s3, s{sB}, 7"); A.salu("s_cmp_lt_u32 s3, 3"); A.salu("s_cselect_b32 s3, 1, 0")
        elif cfg.order == 5:
            A.salu(f"s_and_b32 s3, s{sB}, 7"); A.salu("s_cmp_lt_u32 s3, 5"); A.salu("s_cselect_b32 s3, 1, 0")
        else: A.salu(f"s_mov_b32 s3, {cfg.order}")
        A.salu("s_cmp_eq_u32 s3, 1")
        A.salu(f"s_cselect_b64 s[{sX}:{sX+1}], s[14:15], s[4:5]")
        A.salu(f"s_cselect_b64 s[{sWQ}:{sWQ+1}], s[20:21], s[10:11]")
        A.salu(f"s_cselect_b64 s[{sNX}:{sNX+1}], s[4:5], s[14:15]")
        A.salu(f"s_cselect_b64 s[{sNWQ}:{sNWQ+1}], s[10:11], s[20:21]")
        A.salu(f"s_mul_i32 s{sT2}, s{sB}, 71680")
        fin(sX, sT2, 71680)
        A.salu(f"s_lshl_b32 s{sT1}, s{sHG}, 1")
        A.salu(f"s_add_u32 s{sT1}, s{sT1}, s{sG}")
        A.salu(f"s_lshl_b32 s{sT1}, s{sT1}, 9")
        A.salu(f"s_sub_u32 s{sT3}, {448*8192}, s{sT1}")
        fin(sWQ, sT1, f"s{sT3}")
        if cfg.stamp:
            V(f"v_mov_b32 v{vSTAMP}, 0", vSTAMP, [])
            A.salu(f"s_mov_b32 s{sSTI}, 0")
        if cfg.rt: A.raw(f"v_writelane_b32 v{vSTAMP}, s70, 63")
        self.stamp("start")
        self.m0slot = None
        for n in range(2):
            for pc in range(2): self.slot_dma("WQ", n & 1, ("WQ", n), n, pc, 0)
        if cfg.pro & 1: A.barrier()
        for t in range(5): self.x_dma(0, t)
        if cfg.pro & 2: A.barrier()
        for t in range(5):
            if cfg.cond: self.x_dma(1, t)
            else: self.x_load(1, t)
        fin(sNX, sT2, 71680)
        fin(sNWQ, sT1, f"s{sT3}")
        A.salu(f"s_mul_i32 s{sPOW}, s{sW}, 10240")
        c = 1.4426950408889634 / 16.0
        A.salu(f"s_mov_b32 s{sC}, {f32bits(c):#x}")
        A.salu(f"s_mov_b32 s{sC+1}, {f32bits(c):#x}")
        A.salu(f"s_mov_b32 s{sNC}, {f32bits(-c):#x}")
        A.salu(f"s_mov_b32 s{sPH}, 0")
        A.salu(f"s_mul_i32 s{sGR}, s{sG}, {4*RINGSZ}")
        for jj in range(4):
            A.salu(f"s_xor_b32 s{sCOL+jj}, s{sJ}, {jj}")
            A.salu(f"s_lshl_b32 s{sCOL+jj}, s{sCOL+jj}, 7")
        V(f"v_lshl_add_u32 v{vV}, v{t2}, 9, v{t3}", vV, [t2, t3])
        V(f"v_add_u32 v{vV}, s{sT0}, v{vV}", vV, [vV])
        V(f"v_add_u32 v{vV+1}, {4096-1024}, v{vV}", vV + 1, [vV])
        A.salu(f"s_lshl_b32 s{sT1}, s{sW}, 7")
        A.salu(f"s_cmp_eq_u32 s{sW}, 7")
        A.salu(f"s_cselect_b32 s{sT1}, 0x4000000, s{sT1}")
        V(f"v_mul_u32_u24 v{vWO}, 896, v{t2}", vWO, [t2])
        V(f"v_add3_u32 v{vWO}, v{vWO}, v{t3}, s{sT1}", vWO, [vWO, t3])
        V(f"v_add_u32 v{vWO+1}, {8*896-1024}, v{vWO}", vWO + 1, [vWO])
        V(f"v_xor_b32 v{t1}, v{t1}, v{vG}", t1, [t1, vG])
        V(f"v_lshlrev_b32 v{t1}, 4, v{t1}", t1, [t1])
        V(f"v_lshl_add_u32 v{vK}, v{t2}, 9, v{t1}", vK, [t2, t1])
        A.salu(f"s_lshl_b32 s{sT1}, s{sJ}, 16")
        V(f"v_add_u32 v{vK}, s{sT1}, v{vK}", vK, [vK])
        V(f"v_xor_b32 v{vK+1}, 64, v{vK}", vK + 1, [vK])
        V(f"v_add_u32 v{vK+1}, {4096-1024}, v{vK+1}", vK + 1, [vK + 1])
        V(f"v_lshrrev_b32 v{t1}, 2, v{vL}", t1, [vL])
        V(f"v_lshlrev_b32 v{t1}, 7, v{t1}", t1, [t1])
        V(f"v_bfe_u32 v{t2}, v{vL}, 3, 2", t2, [vL])
        V(f"v_lshl_add_u32 v{t1}, v{t2}, 5, v{t1}", t1, [t1, t2])
        V(f"v_and_b32 v{t2}, 3, v{vL}", t2, [vL])
        V(f"v_lshl_add_u32 v{t1}, v{t2}, 3, v{t1}", t1, [t1, t2])
        V(f"v_add_u32 v{vTR}, s{sRING}, v{t1}", vTR, [t1])
        for a in range(1, 4):
            V(f"v_xor_b32 v{vTR+a}, {a << 5}, v{vTR}", vTR + a, [vTR])
        V(f"v_lshrrev_b32 v{t1}, 1, v{vQ}", t1, [vQ])
        V(f"v_xor_b32 v{t1}, v{t1}, v{vG}", t1, [t1, vG])
        V(f"v_lshlrev_b32 v{t1}, 4, v{t1}", t1, [t1])
        V(f"v_lshl_add_u32 v{t1}, v{vQ}, 7, v{t1}", t1, [t1, vQ])
        V(f"v_add_u32 v{vKR}, s{sRING}, v{t1}", vKR, [t1])
        V(f"v_xor_b32 v{vKR+1}, 64, v{vKR}", vKR + 1, [vKR])
        V(f"v_xor_b32 v{t1}, v{vG}, v{vQ}", t1, [vG, vQ])
        V(f"v_lshlrev_b32 v{t1}, 4, v{t1}", t1, [t1])
        V(f"v_lshl_add_u32 v{vXR}, v{vQ}, 8, v{t1}", vXR, [vQ, t1])
        for u in range(1, 4):
            V(f"v_xor_b32 v{vXR+u}, {u << 6}, v{vXR}", vXR + u, [vXR])
        for u in range(2):
            V(f"v_add_u32 v{vXRh+u}, 61440, v{vXR+u}", vXRh + u, [vXR + u])
        V(f"v_lshlrev_b32 v{vLin0}, 4, v{vL}", vLin0, [vL])
        V(f"v_add_u32 v{vLin1}, {BREG}, v{vLin0}", vLin1, [vLin0])
        A.salu(f"s_mul_i32 s{sT1}, s{sG}, {BREG}")
        A.salu(f"s_mul_i32 s{sT2}, s{sJ}, 10240")
        A.salu(f"s_add_u32 s{sT2}, s{sT2}, s{sT1}")
        V(f"v_add_u32 v{vLinG}, s{sT1}, v{vLin0}", vLinG, [vLin0])
        A.salu(f"s_mul_i32 s{sT3}, s{sJ}, 5120")
        V(f"v_add_u32 v{vPW}, s{sT3}, v{vLinG}", vPW, [vLinG])
        V(f"v_lshrrev_b32 v{t1}, 1, v{vG}", t1, [vG])
        V(f"v_lshlrev_b32 v{t1}, 8, v{t1}", t1, [t1])
        V(f"v_and_b32 v{t2}, 1, v{vG}", t2, [vG])
        V(f"v_lshl_add_u32 v{t1}, v{t2}, 9, v{t1}", t1, [t1, t2])
        V(f"v_lshl_add_u32 v{t1}, v{vQ}, 4, v{t1}", t1, [t1, vQ])
        V(f"v_add_u32 v{vQW}, s{sT2}, v{t1}", vQW, [t1])
        V(f"v_lshlrev_b32 v{t1}, 3, v{vQ}", t1, [vQ])
        V(f"v_add_u32 v{vSW}, s{sRING}, v{t1}", vSW, [t1])
        A.salu(f"s_add_u32 s{sT1}, s{sGR}, {RING0}")
        V(f"v_add_u32 v{vSR}, s{sT1}, v{t1}", vSR, [t1])
        V(f"v_add_u32 v{vRW}, s{sXM0}, v{vLin0}", vRW, [vLin0])
        if cfg.krot:
            A.salu(f"s_lshr_b32 s{sT3}, s{sB}, 1")
            A.salu(f"s_and_b32 s{sT3}, s{sT3}, 14")
        else:
            A.salu(f"s_mov_b32 s{sT3}, 0")
        A.salu(f"s_lshl_b32 s{sT1}, s{sW}, 1")
        A.salu(f"s_sub_u32 s{sT1}, s{sT1}, s{sT3}")
        A.salu(f"s_and_b32 s{sT1}, s{sT1}, 15")
        A.salu(f"s_mul_i32 s{sT1}, s{sT1}, 5120")
        V(f"v_add_u32 v{vOW}, s{sT1}, v{vLin0}", vOW, [vLin0])
        A.salu(f"s_add_u32 s{sT3}, s{sT3}, 15")
        A.salu(f"s_and_b32 s{sT3}, s{sT3}, 15")
        A.salu(f"s_mul_i32 s{sWOK}, s{sT3}, {32*896}")
        A.salu(f"s_lshl_b32 s{sT1}, s{sB}, 3")
        A.salu(f"s_add_u32 s{sT1}, s{sT1}, s{sHG}")
        A.salu(f"s_lshl_b32 s{sT2}, s{sT1}, 18")
        A.salu(f"s_lshl_b32 s{sT3}, s{sG}, 13")
        A.salu(f"s_add_u32 s{sT2}, s{sT2}, s{sT3}")
        A.salu(f"s_sub_u32 s{sT3}, 262144, s{sT3}")
        A.salu(f"s_mov_b64 s[{sKV(0,0)}:{sKV(0,0)+1}], s[6:7]")
        A.salu(f"s_mov_b64 s[{sKV(0,1)}:{sKV(0,1)+1}], s[8:9]")
        fin(sKV(0, 0), sT2, f"s{sT3}"); fin(sKV(0, 1), sT2, f"s{sT3}")
        A.salu(f"s_lshl_b32 s{sT2}, s{sT1}, 1")
        A.salu(f"s_add_u32 s{sT2}, s{sT2}, s{sG}")
        A.salu(f"s_lshl_b32 s{sT2}, s{sT2}, 18")
        A.salu(f"s_mov_b64 s[{sKV(1,0)}:{sKV(1,0)+1}], s[16:17]")
        A.salu(f"s_mov_b64 s[{sKV(1,1)}:{sKV(1,1)+1}], s[18:19]")
        fin(sKV(1, 0), sT2, 262144); fin(sKV(1, 1), sT2, 262144)
        A.salu(f"s_mul_i32 s{sT2}, s{sHG}, {512*896}")
        A.salu(f"s_mov_b64 s[{sKV(0,2)}:{sKV(0,2)+1}], s[12:13]")
        A.salu(f"s_mov_b64 s[{sKV(1,2)}:{sKV(1,2)+1}], s[22:23]")
        fin(sKV(0, 2), sT2, 512 * 896); fin(sKV(1, 2), sT2, 512 * 896)
        for blk in range(2):
            A.salu(f"s_add_u32 s{sT2}, s{sT1}, {blk*256}")
            A.salu(f"s_mul_i32 s{sT2}, s{sT2}, 71680")
            A.salu(f"s_add_u32 s{sPOB(blk)}, s24, s{sT2}")
            A.salu(f"s_addc_u32 s{sPOB(blk)+1}, s25, 0")
            A.salu(f"s_and_b32 s{sPOB(blk)+1}, s{sPOB(blk)+1}, 0xffff")
        A.salu(f"s_mov_b64 s[{sPO}:{sPO+1}], s[{sPOB(0)}:{sPOB(0)+1}]")
        A.salu(f"s_mov_b32 s{sPO+2}, 0")
        A.salu(f"s_mov_b32 s{sPO+3}, 0x20000")
        if "now" in cfg.hack:
            for r in (sWQ, sNWQ, sKV(0, 2), sKV(1, 2)): A.salu(f"s_mov_b32 s{r+2}, 0")
        if "nokv" in cfg.hack:
            for r in (sKV(0, 0), sKV(0, 1), sKV(1, 0), sKV(1, 1)): A.salu(f"s_mov_b32 s{r+2}, 0")
        if "nox" in cfg.hack:
            A.salu(f"s_mov_b32 s{sNX+2}, 0")
        if cfg.prio:
            A.salu(f"s_cmp_eq_u32 s{sG}, 0")
            A.salu("s_cbranch_scc1 L_noprio")
            A.salu(f"s_setprio {cfg.prio}")
            A.label("L_noprio")
        if cfg.early:
            assert cfg.order == 2
            R_ = A.salu
            R_("s_load_dwordx4 s[4:7], s[0:1], 80")
            R_(f"s_lshl_b32 s{sT0}, s3, 5"); R_(f"s_add_u32 s{sT0}, s{sT0}, s{sB}")
            R_(f"s_mul_i32 s{sT0}, s{sT0}, {8*71680}")
            R_(f"s_add_u32 s16, s24, s{sT0}"); R_("s_addc_u32 s17, s25, 0"); R_("s_and_b32 s17, s17, 0xffff")
            R_(f"s_mov_b32 s18, {8*71680}"); R_("s_mov_b32 s19, 0x20000")
            R_(f"s_lshl_b32 s{sT0}, s{sHG}, 3"); R_(f"s_add_u32 s{sT0}, s{sT0}, s{sW}")
            R_(f"s_lshl_b32 s20, s{sT0}, 10")
            R_(f"s_lshl_b32 s23, s{sB}, 6"); R_(f"s_add_u32 s23, s23, s{sT0}"); R_("s_lshl_b32 s23, s23, 2")
            R_("s_add_u32 s23, s23, 0x4000000")
            R_(f"s_mul_i32 s{sT1}, s{sT0}, 205"); R_(f"s_lshr_b32 s{sT1}, s{sT1}, 10")
            R_(f"s_mul_i32 s{sT2}, s{sT1}, 5"); R_(f"s_sub_u32 s{sT2}, s{sT0}, s{sT2}")
            R_(f"s_mul_i32 s21, s{sB}, 80"); R_(f"s_lshl_b32 s{sT2}, s{sT2}, 4"); R_(f"s_add_u32 s21, s21, s{sT2}")
            R_("s_mul_i32 s21, s21, 1792"); R_(f"s_mul_i32 s{sT2}, s3, 896"); R_(f"s_add_u32 s21, s21, s{sT2}")
            R_(f"s_lshl_b32 s{sT1}, s{sT1}, 6"); R_(f"s_add_u32 s21, s21, s{sT1}")
            R_("s_mov_b32 s22, 0")
            R_(f"s_cmp_eq_u32 s{sW}, 0"); R_(f"s_cselect_b32 s{sSIG}, 1, 2")
            R_(f"s_lshl_b32 s{sT0}, s{sB}, 2")
            V(f"v_mov_b32 v{vT1}, s{sT0}", vT1, [])
            V(f"v_mov_b32 v{vT0}, 1", vT0, [])
        if cfg.kpf:
            assert not cfg.early and cfg.cond
            V(f"v_add_u32 v{vT0}, s{sRING}, v{vLin0}", vT0, [vLin0])
            L = []
            for i in range(cfg.kpf):
                u = 6 + i; jj, kt = u // 4, u % 4
                L.append(f"s_add_u32 s{sT0}, s{sCOL+jj}, {kt * 8192}")
                for pc in range(2):
                    r = ACC + 100 + 8 * i + 4 * pc
                    L.append(f"buffer_load_dwordx4 v[{r}:{r+3}], v{vK+pc}, s[{sKV(1,0)}:{sKV(1,0)+3}], s{sT0} offen" + (" offset:1024" if pc else "") + f" {cfg.kv_flags}")
            self.cond_block("s_cmp_eq_u32 s3, 1", L)
        for n in range(2, 5):
            for pc in range(2): self.slot_dma("WQ", n & 1, ("WQ", n), n, pc, 0)
        if cfg.early:
            A.raw("s_waitcnt lgkmcnt(0)")
            R_("s_mov_b32 s8, s6"); R_("s_and_b32 s9, s7, 0xffff"); R_("s_mov_b32 s10, 256"); R_("s_mov_b32 s11, 0x20000")
            R_("s_mov_b32 s12, s4"); R_("s_and_b32 s13, s5, 0xffff"); R_(f"s_mov_b32 s14, {32*80*896*2}"); R_("s_mov_b32 s15, 0x20000")
        A.wait_vm_tag(("WQ", 1))
        for y in range(2):
            for a in range(4):
                A.ds_read("ds_read_b64_tr_b16", A_tr(0, a) + 2 * y, 2, vTR + a, y * 2048)
        A.wait_vm_tag(("x", 0))
        A.wait_lgkm_all()
        self.bar("AB1")
        for b in range(5): A.ds_read("ds_read_b128", B_tr(b), 4, vXR, b * 4096)
        for n in range(5, 7):
            for pc in range(2): self.slot_dma("WQ", n & 1, ("WQ", n), n % 5, pc, 0)
        A.wait_lgkm_all()
        self.canon_vm = [e for e in A.vm if e[0][0] == "WQ"]
        assert [e[0][1] for e in self.canon_vm] == [2, 2, 3, 3, 4, 4, 5, 5, 6, 6]
        self.canon_lgkm = None
        A.salu("s_cmp_eq_u32 s3, 1")
        A.salu("s_cbranch_scc1 L_body1")

    def wq_off(self, n):
        return n & 1

    def x_dma(self, pair, t):
        A = self.A
        A.salu(f"s_mov_b32 s{sOFF}, {t * 14336}")
        A.salu(f"s_add_u32 m0, s{sXM0}, {pair * 40960 + t * 4096}", m0=True)
        self.m0slot = None
        A.dma(vX + pair, sX, sOFF, flags=self.cfg.x_flags, tag=("x", pair))

    def skip_begin(self, ph):
        self.nlab = getattr(self, "nlab", 0) + 1
        self.A.salu(f"s_cmp_eq_u32 s{sPH}, {ph}")
        self.A.salu(f"s_cbranch_scc1 L_sk{self.nlab}")

    def skip_end(self):
        self.A.label(f"L_sk{self.nlab}")

    def cond_block(self, cmp, lines):
        self.nlab = getattr(self, "nlab", 0) + 1
        A = self.A
        A.salu(cmp)
        A.salu(f"s_cbranch_scc0 L_sk{self.nlab}")
        for l in lines: A.raw(l, 0)
        A.label(f"L_sk{self.nlab}")

    def x_load_c(self, pair, t):
        A = self.A
        r = ACC + 80 + (pair * 5 + t) * 4
        A._mem_ready(rng(r, 4)); A._haz("mem", [vX + pair], rng(r, 4))
        self.skip_begin(1)
        A.raw(f"s_mov_b32 s{sT0}, {t * 14336}", 0)
        A.raw(f"buffer_load_dwordx4 v[{r}:{r+3}], v{vX+pair}, s[{sX}:{sX+3}], s{sT0} offen {self.cfg.x2f}", 0)
        self.skip_end()

    def x_write_c(self, pair, t):
        A = self.A
        r = ACC + 80 + (pair * 5 + t) * 4
        if len(A.lgkm) >= 13: A._wait_lgkm_idx(len(A.lgkm) - 13)
        self.skip_begin(1 - pair)
        A.raw(f"ds_write_b128 v{vRW}, v[{r}:{r+3}] offset:{pair * 40960 + t * 4096}", 0)
        self.skip_end()
        self.xw_mark = True

    def x_load(self, pair, t):
        A = self.A
        A.salu(f"s_mov_b32 s{sOFF}, {t * 14336}")
        self.m0slot = None
        A.bload(ACC + 80 + (pair * 5 + t) * 4, 4, vX + pair, sX, sOFF, flags=self.cfg.x_flags, tag=("xr", pair))

    def x_write(self, pair, t):
        self.A.ds_write("ds_write_b128", vRW, ACC + 80 + (pair * 5 + t) * 4, 4, pair * 40960 + t * 4096, tag=("xw", pair))

    def store_po_cond(self, i, b, flags):
        A = self.A
        self.nlab = getattr(self, "nlab", 0) + 1
        r = ACC + 120 + (i * 5 + b) * 4
        A.salu(f"s_cmp_eq_u32 s{sPH}, 0")
        A.salu(f"s_cbranch_scc1 L_sk{self.nlab}")
        A.raw(f"s_add_u32 s{sT0}, s{sPOW}, {(i * 5 + b) * 1024}", 0)
        A.raw(f"buffer_store_dwordx4 v[{r}:{r+3}], v{vLin0}, s[{sPO}:{sPO+3}], s{sT0} offen {flags}", 0)
        A.label(f"L_sk{self.nlab}")

    def store_po(self, i, b, flags):
        A = self.A
        A.salu(f"s_add_u32 s{sT0}, s{sPOW}, {(i * 5 + b) * 1024}")
        A.bstore(ACC + 120 + (i * 5 + b) * 4, 4, vLin0, sPO, sT0, flags=flags, tag="po")

    def set_off(self, typ, off, adv):
        A = self.A
        if typ in ("WQ", "WO"):
            reg, step, cnt, ystep = (sWQK, 262144, 14, 32768) if typ == "WQ" else (sWOK, 32 * 896, 16, 16 * 896)
            if adv and off == 0:
                A.salu(f"s_add_u32 s{reg}, s{reg}, {step}")
                A.salu(f"s_sub_u32 s{sOFF}, s{reg}, {step * cnt}")
                A.salu(f"s_cselect_b32 s{reg}, s{reg}, s{sOFF}")
            A.salu(f"s_add_u32 s{sOFF}, s{reg}, {off * ystep}")
        elif typ == "K": A.salu(f"s_add_u32 s{sOFF}, s{sCOL+off[1]}, {off[0]}")
        else: A.salu(f"s_mov_b32 s{sOFF}, {off}")

    def slot_dma(self, typ, off, key, phys, pc, blk):
        A = self.A; cfg = self.cfg
        vo, srd, fl = {"WQ": (vWQ, sWQ, cfg.w_flags), "K": (vK, sKV(blk, 0), cfg.kv_flags),
                       "V": (vV, sKV(blk, 1), cfg.kv_flags), "WO": (vWO, sKV(blk, 2), cfg.w_flags)}[typ]
        if pc == 0 or self.m0slot != key:
            self.set_off(typ, off, pc == 0)
            A.salu(f"s_add_u32 m0, s{sRING}, {phys * 2048}", m0=True)
            self.m0slot = key
        A.dma(vo + pc, srd, sOFF, off=1024 * pc, flags=fl, tag=key)

    def cvt(self, dst, a, b):
        self.A.valu(f"v_cvt_pk_bf16_f32 v{dst}, v{a}, v{b}", [dst], [a, b])

    def body(self, blk):
        A = self.A; V = self.V; cfg = self.cfg; R = cfg.R; cvt = self.cvt
        assert R == 5
        shared = (blk == 0)
        A.label(f"L_body{blk}")
        A.vm = list(self.canon_vm)
        can_l = []
        for a in range(4): can_l.append((None, set(rng(A_tr(0, a), 2))))
        for a in range(4): can_l.append((None, set(rng(A_tr(0, a) + 2, 2))))
        for b in range(5): can_l.append((None, set(rng(B_tr(b), 4))))
        A.lgkm = list(can_l)
        A.vw = {}; A.mfma_c_read = {}
        self.m0slot = None
        nm = "AB"[blk]
        units = [(jj, 4 * r + k) for r in range(2) for jj in range(4) for k in range(4)]
        use = {}; phys = {}; order = []
        def add(key, typ, off):
            use[key] = (typ, off); order.append(key)
        for n in range(2, 28):
            add(("WQ", n), "WQ", n & 1); phys["WQ", n] = n % 5
        nK = 16 if shared else 32
        for i in range(nK):
            jj, kt = units[2 * i] if shared else units[i]
            add(("K", i), "K", (kt * 8192, jj))
        kpreg = {}
        add(("SCR", 0), "SCR", 0)
        for ks in range(16):
            t, w = divmod(ks, 4)
            key0 = 128 * w + 32 * t
            if shared: add(("V", ks), "V", key0 * 512)
            else:
                for y in range(2): add(("V", 2 * ks + y), "V", (key0 + 16 * y) * 512)
        for n in range(32): add(("WO", n), "WO", n & 1)
        for n in range(7): add(("NWQ", n), "WQ", n & 1)
        T = order[order.index(("K", 0)):]
        for i, key in enumerate(T): phys[key] = (i - (len(T) - 7)) % 5
        slotq = [deque(k for k in order if phys[k] == p) for p in range(5)]
        issued = set(("WQ", n) for n in range(7)); avail = set()
        side = deque(); vq = deque(); slow = deque()
        st = {"wq_left": 21, "pr": 0}

        def issue(key, pc):
            typ, off = use[key]
            if key[0] == "K" and key[1] in kpreg:
                A.ds_write("ds_write_b128", vT0, kpreg[key[1]] + 4 * pc, 4, phys[key] * 2048 + pc * 1024)
            else:
                self.slot_dma(typ, off, key, phys[key], pc, blk)
            if pc == 1:
                issued.add(key)
                if key[0] == "WQ":
                    st["wq_left"] -= 1
                    if st["wq_left"] == 0: switch_srd()

        def switch_srd():
            A.salu(f"s_mov_b64 s[{sX}:{sX+1}], s[{sNX}:{sNX+1}]")
            A.salu(f"s_mov_b32 s{sX+2}, s{sNX+2}")
            A.salu(f"s_mov_b64 s[{sWQ}:{sWQ+1}], s[{sNWQ}:{sNWQ+1}]")
            A.salu(f"s_mov_b32 s{sWQ+2}, s{sNWQ+2}")
            A.salu(f"s_mov_b32 s{sNX+2}, 0")
            A.salu(f"s_mov_b32 s{sNWQ+2}, 0")

        def release(key):
            q = slotq[phys[key]]
            assert q[0] == key, (key, q[0])
            q.popleft()
            if not q: return
            nx = q[0]
            if nx[0] == "SCR": avail.add(nx)
            else:
                side.append(lambda: issue(nx, 0)); side.append(lambda: issue(nx, 1))

        def pump(q, k=1):
            for _ in range(k):
                if q: q.popleft()()

        def flush(q):
            while q: q.popleft()()

        def need(key):
            while key not in issued:
                assert side, key
                side.popleft()()
            A.wait_vm_tag(key)

        def tr_read(par, a, y, off, tag):
            A.ds_read("ds_read_b64_tr_b16", A_tr(par, a) + 2 * y, 2, vTR + a, off, tag=tag)

        def offs(typ, s, y, sh):
            return (phys[typ, s] * 2048 + y * 4 * RINGSZ) if sh else phys[typ, 2 * s + y] * 2048

        def prio():
            if cfg.fair:
                A.salu(f"s_setprio {3 - st['pr'] % 4}"); st["pr"] += 1

        def kstep(par, czero, nx, bread, cur_sh=None, barrier=False, pub=None, after=None, extra=None, tail=None, label=None):
            typ, s, sh = nx
            for p in range(20):
                b, a = divmod(p, 4)
                if p == 0:
                    if label and label[0] in cfg.kst.split(","): self.stamp(nm + label[0] + str(label[1]))
                    if not sh: prio()
                    need((typ, s) if sh else (typ, 2 * s))
                    if pub:
                        if pub[0] == "xw": assert not slow
                        flush(vq); flush(slow); A.wait_lgkm_tag(pub)
                    if sh or barrier or pub:
                        if cur_sh: A.wait_lgkm_tag(("rd",) + cur_sh)
                        A.barrier()
                        if cur_sh: release(cur_sh)
                    if after: after()
                if p == cfg.ypos and not sh: need((typ, 2 * s + 1))
                A.mfma(ACC + (a * 5 + b) * 4, A_tr(par, a), B_tr(b), czero=czero)
                if sh: yy = (p >> 1, p & 1) if p < 4 else None
                else: yy = (0, p) if p < 2 else ((1, p - cfg.ypos) if 0 <= p - cfg.ypos < 2 else None)
                if yy:
                    y, hh = yy
                    for a2 in (hh * 2, hh * 2 + 1):
                        tr_read(par ^ 1, a2, y, offs(typ, s, y, sh), ("rd", typ, s) if sh else ("rd", typ, 2 * s + y))
                if a == 3 and bread: bread(b)
                if a == 1 and extra: extra(b)
                if not sh:
                    for y, rp in ((0, cfg.relx), (1, cfg.ypos + cfg.relx)):
                        if p == rp:
                            A.wait_lgkm_tag(("rd", typ, 2 * s + y))
                            release((typ, 2 * s + y))
                if p >= 2: pump(side, cfg.npump)
                if p in (8, 18): pump(slow)
                if tail and a == 3 and b >= 1: tail(b - 1)
                pump(vq, 3 if tail else 1)
            if tail:
                tail(4); flush(vq)

        def joint(nx, BX, done, cur_sh=None, hooks={}):
            typ, s, sh = nx
            groups = [(0, 0), (0, 1), (1, 0), (0, 2), (1, 1), (0, 3), (1, 2), (0, 4), (1, 3), (1, 4)]
            pend = None
            for gi, (o, b) in enumerate(groups):
                for a in range(4):
                    p = gi * 4 + a
                    if p == 0:
                        if not sh: prio()
                        need((typ, s) if sh else (typ, 2 * s))
                        if sh:
                            A.wait_lgkm_tag(("rd",) + cur_sh)
                            A.barrier()
                            release(cur_sh)
                    if p == 2 and not sh: need((typ, 2 * s + 1))
                    if p == 20 and not sh: prio()
                    if p == 8:
                        A.wait_lgkm_all()
                        if not sh:
                            release((typ, 2 * s)); release((typ, 2 * s + 1))
                        A.barrier()
                        if sh: release((typ, s))
                    A.mfma(ACC + (a * 5 + b) * 4, A_tr(o, a), (BX + 4 * b) if o else B_tr(b))
                    if p < 4:
                        y, hh = p >> 1, p & 1
                        for a2 in (hh * 2, hh * 2 + 1):
                            tr_read(1, a2, y, offs(typ, s, y, sh), None)
                    if p in hooks: hooks[p]()
                    if p >= 4: pump(side, cfg.npump)
                    if a == 2 and pend is not None:
                        done(pend); pend = None
                    pump(vq, 3)
                if o: pend = b
            done(pend); flush(vq)
            if cfg.fair: A.salu("s_setprio 0")

        def prefetch_A(typ, sh=False):
            if not sh:
                need((typ, 0)); need((typ, 1))
            for y in range(2):
                for a in range(4): tr_read(0, a, y, offs(typ, 0, y, sh), ("rd", typ, 0))

        def pair_cvt(i, b, q):
            r0 = ACC + ((2 * i) * 5 + b) * 4; r1 = ACC + ((2 * i + 1) * 5 + b) * 4
            for (d, x) in ((r0, r0), (r0 + 1, r0 + 2), (r0 + 2, r1), (r0 + 3, r1 + 2)):
                q.append(lambda d=d, x=x: cvt(d, x, x + 1))
            return r0

        def read_x(ks, b, dst):
            cidx, u = divmod(ks, 4)
            if cidx < 3: A.ds_read("ds_read_b128", dst, 4, vXR + u, cidx * 20480 + b * 4096)
            else: A.ds_read("ds_read_b128", dst, 4, vXRh + u, b * 4096)
        def q_after1():
            for t in range(5): slow.append(lambda t=t: (self.x_write_c if cfg.cond else self.x_write)(1, t))
        BXQ = ACC + 80
        stq = deque((i, b) for i in range(2) for b in range(5))
        for s in range(12):
            def ex(b, s=s):
                if s == 10: read_x(13, b, BXQ + 4 * b)
                s0, per = [int(v) for v in (cfg.stA, cfg.stB)[blk].split(",")]
                if s >= s0 and stq and b in (3, 1, 0, 2, 4)[:per]:
                    e_ = stq.popleft()
                    if "nost" not in cfg.hack: self.store_po_cond(*e_, cfg.po_flags)
            kstep(s & 1, s == 0, ("WQ", s + 1, False), lambda b, s=s: read_x(s + 1, b, B_tr(b)),
                  barrier=(s == 1), after=(q_after1 if s == 1 else None), pub=(("xw", 1) if s == 7 else None),
                  extra=ex, label=("WQ", s))
        assert not stq
        def set_qr(jj):
            A.salu(f"s_mul_i32 s{sT0}, s{sCOL+jj}, 80")
            V(f"v_add_u32 v{vQR}, s{sT0}, v{vLinG}", vQR, [vLinG])
        def k_off(u):
            if shared: return phys["K", u >> 1] * 2048 + (u & 1) * 4 * RINGSZ
            return phys["K", u] * 2048
        def k_read(u, s):
            A.ds_read("ds_read_b128", A_s(u & 1, s), 4, vKR + s, k_off(u), tag=("rk", u))
        def done_q(b):
            for i in range(2):
                r0 = pair_cvt(i, b, vq)
            for i in range(2):
                r0 = ACC + ((2 * i) * 5 + b) * 4
                for e in range(2):
                    vq.append(lambda r=r0 + e: A.valu(f"v_permlane16_swap_b32 v{r}, v{r+2}", [r, r + 2], [r, r + 2], kind="perm"))
            for i in range(2):
                r0 = ACC + ((2 * i) * 5 + b) * 4
                vq.append(lambda r0=r0, i=i: A.ds_write("ds_write_b128", vQW, r0, 4, (i * 5 + b) * 1024))
        def q_h10():
            set_qr(0)
            if shared:
                for s in range(2): V(f"v_subrev_u32 v{vKR+s}, s{sGR}, v{vKR+s}", vKR + s, [vKR + s])
        self.stamp(nm + "Qj")
        joint(("WQ", 13, False), BXQ, done_q, hooks={10: q_h10})
        flush(side)
        need(("K", 0))
        if shared:
            A.wait_lgkm_all()
            self.bar(nm + "B4")
            for s in range(2): k_read(0, s)
        else:
            for s in range(2): k_read(0, s)
            A.wait_lgkm_all()
            release(("K", 0))
            self.bar(nm + "B4")
        if cfg.early and not cfg.noearly:
            self.cond_block(f"s_cmp_eq_u32 s{sPH}, s{sSIG}", ["s_mov_b64 exec, 1",
                f"buffer_atomic_add v{vT0}, v{vT1}, s[8:11], 0 offen sc1", "s_mov_b64 exec, -1"])
        for s in range(2):
            for b in range(5):
                A.ds_read("ds_read_b128", B_s(s, b), 4, vQR, (s * 5 + b) * 1024)
        def acc_s(kt, b): return ACC + (kt * 5 + b) * 4
        NM1 = lambda b: BORROW[b]
        L1 = lambda b: BORROW[5 + b]
        smq = deque()
        def q_max(kt):
            for b in range(5):
                r = acc_s(kt, b); m = vM + b
                if kt == 0:
                    smq.append(lambda r=r, m=m: V(f"v_max3_f32 v{m}, v{r}, v{r+1}, v{r+2}", m, [r, r+1, r+2]))
                    smq.append(lambda r=r, m=m: V(f"v_max_f32 v{m}, v{m}, v{r+3}", m, [m, r+3]))
                else:
                    smq.append(lambda r=r, m=m: V(f"v_max3_f32 v{m}, v{m}, v{r}, v{r+1}", m, [m, r, r+1]))
                    smq.append(lambda r=r, m=m: V(f"v_max3_f32 v{m}, v{m}, v{r+2}, v{r+3}", m, [m, r+2, r+3]))
        def q_round1():
            for sw in ("v_permlane32_swap_b32", "v_permlane16_swap_b32"):
                for b in range(5): smq.append(lambda b=b: V(f"v_mov_b32 v{L1(b)}, v{vM+b}", L1(b), [vM + b]))
                for b in range(5): smq.append(lambda b=b, sw=sw: A.valu(f"{sw} v{vM+b}, v{L1(b)}", [vM + b, L1(b)], [vM + b, L1(b)], kind="perm"))
                for b in range(5): smq.append(lambda b=b: V(f"v_max_f32 v{vM+b}, v{vM+b}, v{L1(b)}", vM + b, [vM + b, L1(b)]))
            for b in range(5): smq.append(lambda b=b: V(f"v_mul_f32 v{NM1(b)}, s{sNC}, v{vM+b}", NM1(b), [vM + b]))
            for kt in range(4):
                for b in range(5):
                    r = acc_s(kt, b)
                    for e in range(4): smq.append(lambda x=r+e, b=b: V(f"v_fma_f32 v{x}, v{x}, s{sC}, v{NM1(b)}", x, [x, NM1(b)]))
                    for e in range(4): smq.append(lambda x=r+e: A.valu(f"v_exp_f32 v{x}, v{x}", [x], [x], kind="trans"))
                    if kt == 0:
                        smq.append(lambda r=r, b=b: V(f"v_add_f32 v{L1(b)}, v{r}, v{r+1}", L1(b), [r, r + 1]))
                        rest = (2, 3)
                    else: rest = (0, 1, 2, 3)
                    for e in rest: smq.append(lambda x=r+e, b=b: V(f"v_add_f32 v{L1(b)}, v{L1(b)}, v{x}", L1(b), [L1(b), x]))
        def unit(u):
            jj, kt = units[u]
            par = u & 1
            nxt = u + 1 < 32
            last_in_pass = (kt & 3) == 3
            for p in range(10):
                s, b = divmod(p, 5)
                if p == 0 and cfg.fairs and not shared and u % cfg.fairs == 0: A.salu(f"s_setprio {3 - (u // cfg.fairs) % 4}")
                if nxt and p == 0:
                    if shared:
                        if u & 1:
                            need(("K", (u + 1) // 2))
                            A.wait_lgkm_tag(("rk", u))
                            if "nobar" not in cfg.hack: A.barrier()
                            release(("K", u // 2))
                    else:
                        need(("K", u + 1))
                A.mfma(acc_s(kt, b), A_s(par, s), B_s(s, b), czero=(jj == 0 and s == 0))
                if nxt and p < 2: k_read(u + 1, p)
                if (kt & 3) == 2 and p == 9 and u + 2 < 32: set_qr(units[u + 2][0])
                if last_in_pass and nxt:
                    A.ds_read("ds_read_b128", B_s(s, b), 4, vQR, (s * 5 + b) * 1024)
                if nxt and p == cfg.s_rel_pos and not shared:
                    A.wait_lgkm_tag(("rk", u + 1))
                    release(("K", u + 1))
                if p >= 2: pump(side, cfg.npump)
                if p >= 4 or u > 16: pump(smq, cfg.sm_per)
            if jj == 3: q_max(kt)
            if u == 15: q_round1()
        u0 = 0
        if cfg.kpf and not shared:
            import copy
            u0 = 12
            assert 6 + cfg.kpf - 1 <= u0
            flush(side)
            def snap(): return (list(A.vm), list(A.lgkm), dict(A.vw), dict(A.mfma_c_read), dict(A.store_data), [list(q) for q in slotq], set(issued), self.m0slot)
            sv = snap()
            A.salu(f"s_cmp_lg_u32 s{sPH}, 0")
            A.salu("s_cbranch_scc1 L_snorm")
            for i in range(cfg.kpf): kpreg[6 + i] = ACC + 100 + 8 * i
            for u in range(u0): unit(u)
            flush(side); assert not smq
            end1 = ([t for t, _ in A.vm], [d for _, d in A.lgkm], [list(q) for q in slotq])
            A.salu("s_branch L_sjoin")
            A.label("L_snorm")
            kpreg.clear()
            A.vm, A.lgkm, A.vw, A.mfma_c_read, A.store_data = sv[0], sv[1], {}, {}, {}
            for q, l in zip(slotq, sv[5]): q.clear(); q.extend(l)
            issued.clear(); issued.update(sv[6]); self.m0slot = None
            for u in range(u0): unit(u)
            flush(side); assert not smq
            end2 = ([t for t, _ in A.vm], [d for _, d in A.lgkm], [list(q) for q in slotq])
            assert end1 == end2, (end1, end2)
            A.label("L_sjoin")
            self.m0slot = None
        for u in range(u0, 32): unit(u)
        flush(side); flush(smq)
        if cfg.fairs and not shared: A.salu("s_setprio 0")
        self.stamp(nm + "Sdone")
        ML = lambda b: 176 + 2 * b
        NMC = lambda b: 186 + 2 * b
        LS = lambda b: 196 + 2 * b
        TT = lambda b: 206 + b
        def xl_reduce(src, dst, op):
            for b in range(5): V(f"v_mov_b32 v{TT(b)}, v{src(b)}", TT(b), [src(b)])
            for b in range(5): A.valu(f"v_permlane32_swap_b32 v{src(b)}, v{TT(b)}", [src(b), TT(b)], [src(b), TT(b)], kind="perm")
            for b in range(5): V(f"{op} v{src(b)}, v{src(b)}, v{TT(b)}", src(b), [src(b), TT(b)])
            for b in range(5): V(f"v_mov_b32 v{TT(b)}, v{src(b)}", TT(b), [src(b)])
            for b in range(5): A.valu(f"v_permlane16_swap_b32 v{src(b)}, v{TT(b)}", [src(b), TT(b)], [src(b), TT(b)], kind="perm")
            for b in range(5): V(f"{op} v{dst(b)}, v{src(b)}, v{TT(b)}", dst(b), [src(b), TT(b)])
        xl_reduce(lambda b: vM + b, ML, "v_max_f32")
        for b in range(5): V(f"v_mul_f32 v{NMC(b)}, s{sNC}, v{ML(b)}", NMC(b), [ML(b)])
        for b in range(5): V(f"v_sub_f32 v{NM1(b)}, v{NMC(b)}, v{NM1(b)}", NM1(b), [NMC(b), NM1(b)])
        for b in range(5): A.valu(f"v_exp_f32 v{NM1(b)}, v{NM1(b)}", [NM1(b)], [NM1(b)], kind="trans")
        for kt in (range(4, 5) if "nosm" in cfg.hack else range(4, 8)):
            for b in range(5):
                r = acc_s(kt, b)
                for h in range(2):
                    x = r + 2 * h
                    A.valu(f"v_pk_fma_f32 v[{x}:{x+1}], v[{x}:{x+1}], s[{sC}:{sC+1}], v[{NMC(b)}:{NMC(b)+1}] op_sel_hi:[1,0,0]",
                           [x, x + 1], [x, x + 1, NMC(b)])
            for b in range(5):
                r = acc_s(kt, b)
                for e in range(4):
                    A.valu(f"v_exp_f32 v{r+e}, v{r+e}", [r + e], [r + e], kind="trans")
            for b in range(5):
                r = acc_s(kt, b); l = LS(b)
                if kt == 4:
                    A.valu(f"v_pk_add_f32 v[{l}:{l+1}], v[{r}:{r+1}], v[{r+2}:{r+3}]", [l, l + 1], rng(r, 4))
                else:
                    A.valu(f"v_pk_add_f32 v[{l}:{l+1}], v[{l}:{l+1}], v[{r}:{r+1}]", [l, l + 1], [l, l + 1, r, r + 1])
            if kt > 4:
                for b in range(5):
                    r = acc_s(kt, b); l = LS(b)
                    A.valu(f"v_pk_add_f32 v[{l}:{l+1}], v[{l}:{l+1}], v[{r+2}:{r+3}]", [l, l + 1], [l, l + 1, r + 2, r + 3])
        for b in range(5): V(f"v_add_f32 v{LS(b)}, v{LS(b)}, v{LS(b)+1}", LS(b), [LS(b), LS(b) + 1])
        for b in range(5): V(f"v_fmac_f32 v{LS(b)}, v{L1(b)}, v{NM1(b)}", LS(b), [LS(b), L1(b), NM1(b)])
        xl_reduce(LS, lambda b: ML(b) + 1, "v_add_f32")
        assert ("SCR", 0) in avail
        so = phys["SCR", 0] * 2048
        A.salu("s_mov_b64 exec, 0xffff")
        for b in range(5):
            A.ds_write("ds_write_b64", vSW, ML(b), 2, so + b * 128)
        A.salu("s_mov_b64 exec, -1")
        if shared: need(("V", 0))
        A.wait_lgkm_all()
        self.bar(nm + "B5")
        if shared:
            release(("K", 15)); flush(side)
        RB = lambda b: [160, 168, 176, 196, 204][b]
        for b in range(5):
            for jj in range(4):
                A.ds_read("ds_read_b64", RB(b) + 2 * jj, 2, vSR, jj * RINGSZ + so + b * 128)
        MX = lambda b: vM + b
        for b in range(5):
            r = RB(b)
            V(f"v_max3_f32 v{MX(b)}, v{r}, v{r+2}, v{r+4}", MX(b), [r, r + 2, r + 4])
            V(f"v_max_f32 v{MX(b)}, v{MX(b)}, v{r+6}", MX(b), [MX(b), r + 6])
            V(f"v_mul_f32 v{MX(b)}, s{sNC}, v{MX(b)}", MX(b), [MX(b)])
            for jj in range(4):
                V(f"v_fma_f32 v{r+2*jj}, v{r+2*jj}, s{sC}, v{MX(b)}", r + 2 * jj, [r + 2 * jj, MX(b)])
            V(f"v_sub_f32 v{NMC(b)}, v{MX(b)}, v{NMC(b)}", NMC(b), [MX(b), NMC(b)])
        for b in range(5):
            r = RB(b)
            for jj in range(4):
                A.valu(f"v_exp_f32 v{r+2*jj}, v{r+2*jj}", [r + 2 * jj], [r + 2 * jj], kind="trans")
            A.valu(f"v_exp_f32 v{NMC(b)}, v{NMC(b)}", [NMC(b)], [NMC(b)], kind="trans")
        for b in range(5):
            r = RB(b)
            V(f"v_mul_f32 v{MX(b)}, v{r}, v{r+1}", MX(b), [r, r + 1])
            for jj in range(1, 4):
                V(f"v_fmac_f32 v{MX(b)}, v{r+2*jj}, v{r+2*jj+1}", MX(b), [MX(b), r + 2 * jj, r + 2 * jj + 1])
        for b in range(5):
            A.valu(f"v_rcp_f32 v{MX(b)}, v{MX(b)}", [MX(b)], [MX(b)], kind="trans")
        for b in range(5):
            V(f"v_mul_f32 v{MX(b)}, v{MX(b)}, v{NMC(b)}", MX(b), [MX(b), NMC(b)])
        for b in range(5):
            V(f"v_mul_f32 v{NMC(b)}, v{MX(b)}, v{NM1(b)}", NMC(b), [MX(b), NM1(b)])
        if shared:
            for s in range(2): V(f"v_add_u32 v{vKR+s}, s{sGR}, v{vKR+s}", vKR + s, [vKR + s])
            V(f"v_subrev_u32 v{vTR}, s{sGR}, v{vTR}", vTR, [vTR])
        for a in range(1, 4): V(f"v_xor_b32 v{vTR+a}, {a << 5}, v{vTR}", vTR + a, [vTR])
        prefetch_A("V", sh=shared)
        def writeP(i, b, tag=None):
            A.ds_write("ds_write_b128", vPW, acc_s(2 * i, b), 4, (i & 1) * 20480 + b * 1024, tag=tag)
        for i in range(2):
            for b in range(5):
                r0 = acc_s(2 * i, b); r1 = acc_s(2 * i + 1, b); f = NMC(b)
                for x in (r0, r0 + 2, r1, r1 + 2):
                    A.valu(f"v_pk_mul_f32 v[{x}:{x+1}], v[{x}:{x+1}], v[{f}:{f+1}] op_sel_hi:[1,0]", [x, x + 1], [x, x + 1, f])
                cvt(r0, r0, r0 + 1); cvt(r0 + 1, r0 + 2, r0 + 3); cvt(r0 + 2, r1, r1 + 1); cvt(r0 + 3, r1 + 2, r1 + 3)
                writeP(i, b)
        A.wait_lgkm_all()
        self.bar(nm + "B6")
        release(("SCR", 0))
        for u in range(1, 4): vq.append(lambda u=u: V(f"v_xor_b32 v{vXR+u}, {u << 6}, v{vXR}", vXR + u, [vXR]))
        for u in range(2): vq.append(lambda u=u: V(f"v_add_u32 v{vXRh+u}, 61440, v{vXR+u}", vXRh + u, [vXR + u]))
        vq.append(lambda: V(f"v_add_u32 v{vWQ+1}, {16*8192-1024}, v{vWQ}", vWQ + 1, [vWQ]))
        vq.append(lambda: V(f"v_add_u32 v{vWO+1}, {8*896-1024}, v{vWO}", vWO + 1, [vWO]))
        vq.append(lambda: V(f"v_add_u32 v{vLin1}, {BREG}, v{vLin0}", vLin1, [vLin0]))
        def q_pack(i):
            for b in range(5):
                r0 = acc_s(2 * i, b); r1 = acc_s(2 * i + 1, b)
                for x in rng(r0, 4) + rng(r1, 4):
                    vq.append(lambda x=x, b=b: V(f"v_mul_f32 v{x}, v{x}, v{MX(b)}", x, [x, MX(b)]))
                for (d, x) in ((r0, r0), (r0 + 1, r0 + 2), (r0 + 2, r1), (r0 + 3, r1 + 2)):
                    vq.append(lambda d=d, x=x: cvt(d, x, x + 1))
        q_pack(2)
        def q_write(i):
            for b in range(5): slow.append(lambda b=b: writeP(i, b, tag=("pw", i)))
        def at4():
            flush(vq); q_write(2); q_pack(3)
        def at8():
            q_write(3)
            if cfg.early:
                A.rfl(22, vQR)
                A.nop(2)
        def read_p(ks, b, dst):
            A.ds_read("ds_read_b128", dst, 4, vLinG, ((ks & 7) * 5 + b) * 1024)
        for b in range(5): read_p(0, b, B_tr(b))
        if cfg.early: A.bload(vQR, 1, vT1, 8, "0", flags="sc1", tag="chk")
        if not shared:
            release(("V", 0)); release(("V", 1))
        BXP = ACC + 140
        xq = deque((pair, t) for pair in range(2) for t in range(5))
        xs = [int(v) for v in cfg.xsplit.split(",")]
        xp = [int(v) for v in cfg.xpos.split(",")]
        def xl(n):
            for _ in range(n): side.append(lambda e=xq.popleft(): (xdone.add(e), (self.x_load_c if cfg.cond else self.x_load)(*e)))
        xdone = set()
        def pend_x(): return [(pair, t) for pair in range(2) for t in range(5) if (pair, t) not in xdone]
        xk = [int(v) for v in cfg.xk.split(",")] if cfg.xk else []
        def ex_p(b, s):
            if s == 12: read_p(15, b, BXP + 4 * b)
            if b == 2 and s in xk: xl(10 // len(xk))
        for s in range(14):
            kstep(s & 1, s == 0, ("V", s + 1, shared), lambda b, s=s: read_p(s + 1, b, B_tr(b)),
                  cur_sh=(("V", s) if shared else None), barrier=(s in (4, 8)),
                  after={4: at4, 8: at8}.get(s), pub={7: ("pw", 2), 11: ("pw", 3)}.get(s),
                  extra=(lambda b, s=s: ex_p(b, s)), label=("V", s))
        def el(gs):
            L = []
            for g in gs:
                r = ACC + 80 + 4 * g
                L += [f"s_add_u32 s{sT0}, s20, {g * 71680}",
                      f"buffer_load_dwordx4 v[{r}:{r+3}], v{vLin0}, s[16:19], s{sT0} offen sc1"]
            self.cond_block("s_cmp_eq_u32 s22, 8", L)
        def done_o(b):
            for i in range(2): pair_cvt(i, b, vq)
            for i in range(2):
                r0 = ACC + ((2 * i) * 5 + b) * 4
                vq.append(lambda r0=r0, i=i: A.ds_write("ds_write_b128", vOW, r0, 4, (i * 5 + b) * 1024))
        hooks = {}
        if not xk:
            for n, p in zip(xs, xp): hooks[p + 9] = (lambda n=n: xl(n))
        def o_h5():
            if shared:
                for a in range(4): V(f"v_add_u32 v{vTR+a}, s{sGR}, v{vTR+a}", vTR + a, [vTR + a])
        hooks[5] = o_h5
        hooks[32] = lambda: prefetch_A("WO")
        self.stamp(nm + "Pj")
        joint(("V", 15, shared), BXP, done_o, cur_sh=(("V", 14) if shared else None), hooks=hooks)
        A.wait_lgkm_all()
        release(("WO", 0)); release(("WO", 1))
        self.bar(nm + "B10")
        if cfg.w7:
            assert cfg.cond and not cfg.early
            A.salu(f"s_cmp_lg_u32 s{sW}, 7")
            A.salu(f"s_cbranch_scc1 L_o{blk}")
            save = (list(A.vm), list(A.lgkm), dict(A.vw), self.m0slot)
            for e in pend_x(): self.x_load_c(*e)
            A.raw("s_waitcnt vmcnt(0)")
            A.vm = []
            for n in range(5):
                for pc in range(2): self.slot_dma("WQ", n & 1, ("w7", n), n, pc, blk)
            A.barrier()
            for t in range(5): self.x_write_c(0, t)
            A.raw("s_waitcnt vmcnt(0) lgkmcnt(0)")
            A.barrier()
            for y in range(2):
                for a in range(4): tr_read(0, a, y, y * 2048, None)
            for b in range(5): read_x(0, b, B_tr(b))
            A.wait_lgkm_all()
            for n in range(5, 7):
                for pc in range(2): self.slot_dma("WQ", n & 1, ("w7", n), n % 5, pc, blk)
            A.salu(f"s_branch L_oend{blk}")
            A.label(f"L_o{blk}")
            A.vm, A.lgkm, A.vw, self.m0slot = save
        def read_o(ks, b):
            A.ds_read("ds_read_b128", B_tr(b), 4, vLin0 if ks < 8 else vLin1, ((ks & 7) * 5 + b) * 1024)
        for b in range(5): read_o(0, b)
        def mid_o():
            for t in range(5): slow.append(lambda t=t: (self.x_write_c if cfg.cond else self.x_write)(0, t))
        def tail_po(b):
            for i in range(2):
                r0 = ACC + ((2 * i) * 5 + b) * 4; r1 = ACC + ((2 * i + 1) * 5 + b) * 4
                d = ACC + 120 + (i * 5 + b) * 4
                for e, x in enumerate((r0, r0 + 2, r1, r1 + 2)):
                    vq.append(lambda d=d + e, x=x: cvt(d, x, x + 1))
        st["pr"] = 0
        eblk = deque()
        if cfg.early:
            D = ACC + 80; S_ = ACC + 112; t0_, t1_ = ACC + 140, ACC + 141
            for g in range(8):
                L = []
                for d in range(4):
                    src = D + 4 * g + d; lo = S_ + 2 * d
                    if g == 0:
                        L += [f"v_lshlrev_b32 v{lo}, 16, v{src}", f"v_and_b32 v{lo+1}, 0xffff0000, v{src}"]
                    else:
                        L += [f"v_lshlrev_b32 v{t0_}, 16, v{src}", f"v_and_b32 v{t1_}, 0xffff0000, v{src}",
                              f"v_add_f32 v{lo}, v{lo}, v{t0_}", f"v_add_f32 v{lo+1}, v{lo+1}, v{t1_}"]
                eblk.append(L[:8]);
                if len(L) > 8: eblk.append(L[8:])
            L = [f"v_cvt_pk_bf16_f32 v{D+d}, v{S_+2*d}, v{S_+2*d+1}" for d in range(4)]
            L += [f"v_bfe_u32 v{t0_}, v{vLin0}, 4, 4", f"v_mul_u32_u24 v{t0_}, 1792, v{t0_}",
                  f"v_bfe_u32 v{t1_}, v{vLin0}, 8, 1", f"v_lshl_add_u32 v{t0_}, v{t1_}, 5, v{t0_}",
                  f"v_lshrrev_b32 v{t1_}, 9, v{vLin0}", f"v_lshl_add_u32 v{t0_}, v{t1_}, 4, v{t0_}",
                  f"v_permlane16_swap_b32 v{D}, v{D+2}", f"v_permlane16_swap_b32 v{D+1}, v{D+3}",
                  f"buffer_store_dwordx4 v[{D}:{D+3}], v{t0_}, s[12:15], s21 offen"]
            eblk.append(L)
        def ex_o(b, s):
            ep = [int(v) for v in cfg.epos.split(",")]
            n = 8 // len(ep)
            if cfg.early and b == 0 and s in ep: el(range(ep.index(s) * n, ep.index(s) * n + n))
            assert cfg.ecomp >= ep[-1] + 3
            if s >= cfg.ecomp and eblk: self.cond_block("s_cmp_eq_u32 s22, 8", eblk.popleft())
        for s in range(16):
            last = s == 15
            kstep(s & 1, s == 0, ("NWQ", 0, False) if last else ("WO", s + 1, False),
                  (lambda b: read_x(0, b, B_tr(b))) if last else (lambda b, s=s: read_o(s + 1, b)),
                  barrier=(s == 8), after=(mid_o if s == 8 else None), pub=(("xw", 0) if s == 13 else None),
                  tail=(tail_po if last else None), label=("WO", s), extra=(lambda b, s=s: ex_o(b, s)))
            if s == 14: assert not eblk
        flush(side)
        if cfg.w7: A.label(f"L_oend{blk}")
        A.salu(f"s_mov_b64 s[{sPO}:{sPO+1}], s[{sPOB(blk)}:{sPOB(blk)+1}]")
        A.salu(f"s_mov_b32 s{sPO+2}, 71680")
        assert sorted(q[0][1] for q in slotq) == [2, 3, 4, 5, 6] and all(len(q) == 1 for q in slotq)
        act = [("WQ", t[1]) if t[0] == "NWQ" else t for t, _ in A.vm]
        can = [t for t, _ in self.canon_vm]
        assert act == can[len(can) - len(act):], (act, can)
        actl = [d for _, d in A.lgkm]; canl = [d for _, d in can_l]
        assert actl == canl[len(canl) - len(actl):], (actl, canl)
        self.stamp(nm + "Odone")
        A.salu(f"s_add_u32 s{sPH}, s{sPH}, 1")
        A.salu(f"s_cmp_eq_u32 s{sPH}, 2")
        A.salu("s_cbranch_scc1 L_final")
        if blk == 1: A.salu("s_branch L_body0")

    def final(self):
        A = self.A; cfg = self.cfg
        A.label("L_final")
        A.vm = []; A.lgkm = []
        V = self.V
        if cfg.fuse: A.raw("s_load_dwordx4 s[4:7], s[0:1], 80")
        for i in range(2):
            for b in range(5): self.store_po(i, b, cfg.pof_flags)
        if "dbl" in cfg.hack:
            A.salu(f"s_add_u32 s{sPO}, s{sPO}, 0x3000000"); A.salu(f"s_addc_u32 s{sPO+1}, s{sPO+1}, 0")
            for i in range(2):
                for b in range(5): self.store_po(i, b, cfg.pof_flags)
        if cfg.early:
            A.raw("v_mov_b32 v1, s22"); A.raw("v_mov_b32 v2, s23")
            A.raw("s_mov_b64 exec, 1")
            A.raw("global_store_dword v2, v1, s[24:25]")
            A.raw("s_mov_b64 exec, -1")
        if cfg.fuse:
            R = A.raw
            BS = 256 * 71680
            V(f"v_lshrrev_b32 v2, 4, v{vLin0}", 2, [vLin0])
            V("v_and_b32 v4, 15, v2", 4, [2])
            V("v_mul_u32_u24 v4, 1792, v4", 4, [4])
            V("v_bfe_u32 v5, v2, 4, 1", 5, [2])
            V("v_lshl_add_u32 v4, v5, 5, v4", 4, [4, 5])
            V("v_lshrrev_b32 v5, 5, v2", 5, [2])
            V("v_lshl_add_u32 v4, v5, 4, v4", 4, [4, 5])
            R(f"s_lshl_b32 s20, s{sB}, 2")
            V("v_mov_b32 v2, s20", 2, [])
            V("v_mov_b32 v1, 1", 1, [])
            V("v_mov_b32 v3, 0", 3, [])
            R(f"s_mul_i32 s20, s{sB}, {8*71680}")
            R("s_add_u32 s16, s24, s20"); R("s_addc_u32 s17, s25, 0"); R("s_and_b32 s17, s17, 0xffff")
            R(f"s_mov_b32 s18, {BS + 8*71680}"); R("s_mov_b32 s19, 0x20000")
            R(f"s_lshl_b32 s21, 1, s{sHG}")
            R("s_waitcnt vmcnt(0) lgkmcnt(0)")
            R("s_mov_b32 s8, s6"); R("s_and_b32 s9, s7, 0xffff"); R("s_mov_b32 s10, 256"); R("s_mov_b32 s11, 0x20000")
            R("s_mov_b32 s12, s4"); R("s_and_b32 s13, s5, 0xffff"); R(f"s_mov_b32 s14, {32*80*896*2}"); R("s_mov_b32 s15, 0x20000")
            R("s_barrier")
            self.stamp("drain")
            R(f"s_cmp_lg_u32 s{sW}, 0")
            R("s_cbranch_scc1 L_wait")
            R("s_mov_b64 exec, 1")
            R("buffer_atomic_add v1, v2, s[8:11], 0 offen sc0 sc1")
            R("s_waitcnt vmcnt(0)")
            R("v_readfirstlane_b32 s20, v1")
            R("s_nop 3")
            R("s_lshr_b32 s23, s20, 8"); R("s_or_b32 s23, s23, s21")
            R("s_and_b32 s20, s20, 0xff"); R("s_cmp_eq_u32 s20, 7")
            R("s_cbranch_scc1 L_pub")
            R("s_mov_b32 s23, s21")
            R(f"s_mov_b32 s22, {cfg.spin}")
            A.label("L_poll")
            if cfg.slp: R(f"s_sleep {cfg.slp}")
            R(f"buffer_load_dword v1, v2, s[8:11], 0 offen {cfg.pollflags}")
            R("s_waitcnt vmcnt(0)")
            R("v_readfirstlane_b32 s20, v1")
            R("s_nop 3")
            R("s_and_b32 s20, s20, 0xff"); R("s_cmp_eq_u32 s20, 8")
            R("s_cbranch_scc1 L_pub")
            R("s_sub_u32 s22, s22, 1"); R("s_cmp_lg_u32 s22, 0")
            R("s_cbranch_scc1 L_poll")
            R("s_lshl_b32 s20, s21, 8")
            R("v_mov_b32 v1, s20")
            R("buffer_atomic_or v1, v2, s[8:11], 0 offen sc0 sc1")
            R("s_waitcnt vmcnt(0)")
            R("v_readfirstlane_b32 s20, v1")
            R("s_nop 3")
            R("s_and_b32 s20, s20, 0xff"); R("s_cmp_eq_u32 s20, 8")
            R("s_cselect_b32 s23, s21, 0")
            A.label("L_pub")
            R("v_mov_b32 v1, s23")
            R("ds_write_b32 v3, v1")
            R("s_waitcnt lgkmcnt(0)")
            R("s_mov_b64 exec, -1")
            A.label("L_wait")
            R("s_barrier")
            R("ds_read_b32 v1, v3")
            R("s_waitcnt lgkmcnt(0)")
            R("v_readfirstlane_b32 s23, v1")
            R("s_nop 3")
            self.stamp("go")
            A.label("L_share")
            R("s_cmp_eq_u32 s23, 0")
            R("s_cbranch_scc1 L_shares_done")
            R("s_ff1_i32_b32 s20, s23")
            R("s_bitset0_b32 s23, s20")
            R(f"s_lshl_b32 s22, s{sW}, 3"); R("s_add_u32 s22, s22, s20")
            A.vm = []; A.lgkm = []; A.vw = {}
            for r in range(3):
                so = 28 + r
                R(f"s_add_u32 s32, s22, {64*r}")
                R("s_cmp_ge_u32 s32, 70"); R("s_cselect_b32 s33, 1, 0")
                R("s_mul_i32 s34, s33, 70"); R("s_sub_u32 s34, s32, s34")
                R("s_mul_i32 s35, s34, 205"); R("s_lshr_b32 s35, s35, 10")
                R("s_mul_i32 s36, s35, 5"); R("s_sub_u32 s36, s34, s36")
                R(f"s_mul_i32 s37, s{sB}, 80"); R("s_lshl_b32 s36, s36, 4"); R("s_add_u32 s37, s37, s36")
                R("s_mul_i32 s37, s37, 1792"); R("s_mul_i32 s36, s33, 896"); R("s_add_u32 s37, s37, s36")
                R("s_lshl_b32 s35, s35, 6"); R(f"s_add_u32 s{so}, s37, s35")
                R(f"s_mul_i32 s33, s33, {BS}"); R("s_lshl_b32 s34, s34, 10"); R("s_add_u32 s33, s33, s34")
                if r == 2:
                    R("s_cmp_lt_u32 s32, 140")
                    R("s_cselect_b32 s33, s33, 0x40000000"); R(f"s_cselect_b32 s{so}, s{so}, 0x40000000")
                for g in range(8):
                    A.bload(32 + (r * 8 + g) * 4, 4, vLin0, 16, 33, flags=cfg.shflags)
                    if g < 7: R("s_add_u32 s33, s33, 71680")
            for r in range(3):
                for g in range(8):
                    src = 32 + (r * 8 + g) * 4
                    for d in range(4):
                        lo = 16 + 2 * d; hi = lo + 1
                        if g == 0:
                            V(f"v_lshlrev_b32 v{lo}, 16, v{src+d}", lo, [src + d])
                            V(f"v_and_b32 v{hi}, 0xffff0000, v{src+d}", hi, [src + d])
                        else:
                            V(f"v_lshlrev_b32 v6, 16, v{src+d}", 6, [src + d])
                            V(f"v_and_b32 v7, 0xffff0000, v{src+d}", 7, [src + d])
                            A.valu(f"v_pk_add_f32 v[{lo}:{lo+1}], v[{lo}:{lo+1}], v[6:7]", [lo, lo + 1], [lo, lo + 1, 6, 7])
                o = 8 + 4 * (r & 1)
                for d in range(4): V(f"v_cvt_pk_bf16_f32 v{o+d}, v{16+2*d}, v{17+2*d}", o + d, [16 + 2 * d, 17 + 2 * d])
                A.valu(f"v_permlane16_swap_b32 v{o}, v{o+2}", [o, o + 2], [o, o + 2], kind="perm")
                A.valu(f"v_permlane16_swap_b32 v{o+1}, v{o+3}", [o + 1, o + 3], [o + 1, o + 3], kind="perm")
                A.bstore(o, 4, 4, 12, 28 + r)
            A.nop(2)
            R("s_branch L_share")
            A.label("L_shares_done")
        if cfg.stamp:
            A.raw("s_waitcnt vmcnt(0)")
            self.stamp("end")
            A.salu("s_add_u32 s28, s24, 0x8000000")
            A.salu("s_addc_u32 s29, s25, 0")
            A.salu("s_and_b32 s29, s29, 0xffff")
            A.salu("s_mov_b32 s30, 0x100000")
            A.salu("s_mov_b32 s31, 0x20000")
            A.salu(f"s_lshl_b32 s{sT0}, s2, 3")
            A.salu(f"s_add_u32 s{sT0}, s{sT0}, s{sW}")
            A.salu(f"s_lshl_b32 s{sT0}, s{sT0}, 8")
            A.valu(f"v_lshrrev_b32 v0, 2, v{vLin0}", [0], [vLin0])
            A.bstore(vSTAMP, 1, 0, 28, sT0)
            open(cfg.path + ".stamps", "w").write(" ".join(self.stamps))
        if cfg.dbgspan:
            R = A.raw
            R("s_load_dwordx2 s[6:7], s[0:1], 88")
            R("s_waitcnt vmcnt(0)")
            R("s_memrealtime s[4:5]")
            R("s_waitcnt lgkmcnt(0)")
            R("s_mov_b32 s8, s6"); R("s_and_b32 s9, s7, 0xffff"); R("s_mov_b32 s10, 256"); R("s_mov_b32 s11, 0x20000")
            R("s_not_b32 s26, s26")
            R("v_mov_b32 v1, s26"); R("v_mov_b32 v2, s4"); R("v_mov_b32 v3, 0")
            R("s_mov_b64 exec, 1")
            R("buffer_atomic_umax v1, v3, s[8:11], 0 offen sc1")
            R("buffer_atomic_umax v2, v3, s[8:11], 0 offen offset:4 sc1")
        A.label("L_attn_done")
        A.raw("s_endpgm")


def gen_main(cfg):
    g = Gen(cfg)
    if "nomfma" in cfg.hack:
        om = g.A.mfma
        def fake(d, a, b, czero=False):
            g.A._mem_ready(rng(a, 4) + rng(b, 4))
        g.A.mfma = fake
    kn = NAME + "_kernel"
    g.A.label(kn)
    g.setup(); g.body(0); g.body(1); g.final()
    return kn, g.A


def gen_reduce(cfg):
    A = Asm()
    kn = "reduce_kernel"
    R = A.salu
    def V(text, w, r): A.valu(text, w if isinstance(w, list) else [w], r)
    A.label(kn)
    if cfg.span: A.raw("s_memrealtime s[28:29]")
    rw = cfg.rw
    R(f"s_cmp_ge_u32 s2, {4480 // rw}")
    R("s_cbranch_scc1 L_red_done")
    R("s_load_dwordx2 s[4:5], s[0:1], 80")
    R("s_load_dwordx2 s[6:7], s[0:1], 96")
    V("v_lshrrev_b32 v1, 6, v0", 1, [0])
    V("v_and_b32 v2, 63, v0", 2, [0])
    A.rfl(8, 1)
    V("v_lshlrev_b32 v3, 4, v2", 3, [2])
    A.nop(2)
    R(f"s_mul_i32 s9, s2, {rw}"); R("s_add_u32 s9, s9, s8")
    R(f"s_mul_hi_u32 s10, s9, {(1 << 32) // 70 + 1}")
    R("s_mul_i32 s11, s10, 70"); R("s_sub_u32 s11, s9, s11")
    R("s_and_b32 s12, s10, 31")
    R("s_lshr_b32 s13, s10, 5")
    R("s_xor_b32 s14, s12, s13"); R("s_not_b32 s14, s14"); R("s_and_b32 s14, s14, 1")
    R("s_lshl_b32 s15, s12, 6"); R("s_add_u32 s15, s15, s11"); R("s_lshl_b32 s15, s15, 2"); R("s_add_u32 s15, s15, 0x4000000")
    A.raw("s_waitcnt lgkmcnt(0)")
    if cfg.early:
        R("s_cmp_eq_u32 s13, 0"); R("s_cbranch_scc1 L_red_go")
        R("s_cmp_ge_u32 s11, 64"); R("s_cbranch_scc1 L_red_go")
        R("s_load_dword s26, s[6:7], s15")
        A.raw("s_waitcnt lgkmcnt(0)")
        R("s_cmp_eq_u32 s26, 8"); R("s_cbranch_scc1 L_red_end")
        A.label("L_red_go")
    R("s_lshl_b32 s24, s14, 5"); R("s_add_u32 s24, s24, s12"); R(f"s_mul_i32 s24, s24, {8*71680}")
    R("s_add_u32 s16, s6, s24"); R("s_addc_u32 s17, s7, 0"); R("s_and_b32 s17, s17, 0xffff")
    R(f"s_mov_b32 s18, {8*71680}"); R("s_mov_b32 s19, 0x20000")
    R("s_lshl_b32 s15, s11, 10")
    for g in range(8):
        A.bload(16 + g * 4, 4, 3, 16, 15, flags=cfg.rd_flags)
        if g < 7: R("s_add_u32 s15, s15, 71680")
    R("s_mov_b32 s20, s4"); R("s_and_b32 s21, s5, 0xffff"); R(f"s_mov_b32 s22, {32*80*896*2}"); R("s_mov_b32 s23, 0x20000")
    R("s_mul_i32 s25, s11, 205"); R("s_lshr_b32 s25, s25, 10")
    R("s_mul_i32 s26, s25, 5"); R("s_sub_u32 s26, s11, s26")
    R("s_mul_i32 s24, s12, 80"); R("s_lshl_b32 s26, s26, 4"); R("s_add_u32 s24, s24, s26"); R("s_mul_i32 s24, s24, 1792")
    R("s_mul_i32 s26, s14, 896"); R("s_add_u32 s24, s24, s26"); R("s_lshl_b32 s25, s25, 6"); R("s_add_u32 s24, s24, s25")
    V("v_and_b32 v4, 15, v2", 4, [2])
    V("v_mul_u32_u24 v4, 1792, v4", 4, [4])
    V("v_bfe_u32 v5, v2, 4, 1", 5, [2])
    V("v_lshl_add_u32 v4, v5, 5, v4", 4, [4, 5])
    V("v_lshrrev_b32 v5, 5, v2", 5, [2])
    V("v_lshl_add_u32 v4, v5, 4, v4", 4, [4, 5])
    for g in range(8):
        src = 16 + g * 4
        for d in range(4):
            lo = 48 + 2 * d; hi = lo + 1
            if g == 0:
                V(f"v_lshlrev_b32 v{lo}, 16, v{src+d}", lo, [src + d])
                V(f"v_and_b32 v{hi}, 0xffff0000, v{src+d}", hi, [src + d])
            else:
                V(f"v_lshlrev_b32 v6, 16, v{src+d}", 6, [src + d])
                V(f"v_and_b32 v7, 0xffff0000, v{src+d}", 7, [src + d])
                A.valu(f"v_pk_add_f32 v[{lo}:{lo+1}], v[{lo}:{lo+1}], v[6:7]", [lo, lo + 1], [lo, lo + 1, 6, 7])
    for d in range(4): V(f"v_cvt_pk_bf16_f32 v{8+d}, v{48+2*d}, v{49+2*d}", 8 + d, [48 + 2 * d, 49 + 2 * d])
    A.valu("v_permlane16_swap_b32 v8, v10", [8, 10], [8, 10], kind="perm")
    A.valu("v_permlane16_swap_b32 v9, v11", [9, 11], [9, 11], kind="perm")
    A.bstore(8, 4, 4, 20, 24)
    A.label("L_red_end")
    if cfg.span:
        A.raw("s_waitcnt vmcnt(0)")
        A.raw("s_memrealtime s[30:31]")
        A.raw("s_waitcnt lgkmcnt(0)")
        A.raw("v_mov_b32 v8, s28"); A.raw("v_mov_b32 v9, s30"); A.raw("v_mov_b32 v10, 0")
        R("s_add_u32 s16, s6, 0x8100000"); R("s_addc_u32 s17, s7, 0"); R("s_and_b32 s17, s17, 0xffff")
        R("s_mov_b32 s18, 0x100000"); R("s_mov_b32 s19, 0x20000"); R("s_lshl_b32 s15, s9, 3")
        A.raw("buffer_store_dwordx2 v[8:9], v10, s[16:19], s15 offen")
    A.label("L_red_done")
    A.raw("s_endpgm")
    return kn, A


def build(cfg, path):
    cfg.path = path
    hdr = open("cdna_kernels/" + NAME + ".s.ref").read().split("\n")
    head = [l for l in hdr if l.startswith(";") and "@launch" not in l and "Override launch" not in l and "grid=ceil" not in l]
    k1, A1 = gen_main(cfg)
    ks = [(k1, A1)]
    out = "\n".join(head) + "\n"
    if cfg.listfmt: out += f"; @launch kernel={k1} grid=(256,1,1) block=(512,1,1) lds=163840\n"
    else: out += f"; @launch grid=(256,1,1) block=(512,1,1) lds=163840\n"
    if not cfg.fuse:
        k2, A2 = gen_reduce(cfg)
        ks.append((k2, A2))
        out += f"; @launch kernel={k2} grid=({4480 // cfg.rw},1,1) block=({64 * cfg.rw},1,1) lds=0\n"
    out += '.amdgcn_target "amdgcn-amd-amdhsa--gfx950"\n.text\n'
    for k, A in ks:
        out += f".globl {k}\n.p2align 8\n.type {k},@function\n" + A.text()
    out += '.section .rodata,"a"\n.p2align 6\n'
    out += kernel_desc(k1, 256, 102, 256)
    if not cfg.fuse: out += ".p2align 6\n" + kernel_desc(k2, 56, 32, 56)
    open(path, "w").write(out)
    print(path, "mfma", A1.nmfma, "lines", len(A1.lines))

if __name__ == "__main__":
    cfg = Cfg()
    for a in sys.argv[2:]:
        k, v = a.split("=")
        setattr(cfg, k, type(getattr(cfg, k))(v))
    if cfg.span: cfg.stamp = 1; cfg.rt = 1
    build(cfg, sys.argv[1] if len(sys.argv) > 1 else "cdna_kernels/" + NAME + ".s")
```

```python
import sys, struct
from collections import deque
from asmlib import *

NAME = "concat_heads__gqa_block_cached__mha_block_cached__near_ridge"

class Cfg:
    R = 5
    kv_flags = "nt"
    w_flags = ""
    x_flags = ""
    po_flags = "sc1"
    pof_flags = "sc1"
    rd_flags = ""
    rel_pos = 8
    s_rel_pos = 5
    stamp = 0
    order = 2
    pre = 0
    krot = 1
    kpA = 0
    kpB = 0
    kp_per = 2
    kp_start = 0
    relx = 5
    ypos = 10
    npump = 2
    prio = 0
    stpos = 'b1'
    tlb = 0
    only = 0
    rt = 0
    fuse = 0
    rw = 2
    spin = 3000
    slp = 0
    shflags = 'sc1'
    pollflags = 'sc0 sc1'
    listfmt = 1
    span = 0
    fair = 1
    fairs = 0
    kst = ''
    xpos = '0,12,24'
    st0 = 1
    pro = 1
    cond = 1
    early = 0
    w7 = 1
    dbgspan = 0
    kpf = 7
    stS = -1
    stA = '0,2'
    stB = '0,2'
    xk = ''
    x2f = ''
    noearly = 0
    epos = '4,8'
    ecomp = 11
    kpat = '2,5,8,11'
    kpn = 4
    kpbar = 1
    hack = ''
    dbgstart = 0
    tlbk = 0
    xsplit = '4,4,2'
    late = 1
    sm_per = 2

def f32bits(x):
    return struct.unpack("<I", struct.pack("<f", x))[0]

BREG = 40960
RING0 = 81920
RINGSZ = 10240

ACC = 0
FR = 160
def A_tr(par, a): return FR + par * 16 + a * 4
def B_tr(b): return FR + 32 + 4 * b
def B_s(s, b): return FR + (s * 5 + b) * 4
def A_s(par, s): return FR + 40 + par * 8 + s * 4
_v = 216
def _alloc(n=1):
    global _v
    r = _v; _v += n
    assert _v <= 256
    return r
vKR = _alloc(2); vK = _alloc(2); vV = _alloc(2); vX = _alloc(2)
vLinG = _alloc(); vQR = _alloc(); vSW = _alloc(); vSR = _alloc(); vPW = _alloc(); vRW = _alloc(); vLin0 = _alloc()
vQW = _alloc(); vOW = _alloc()
vTR = _alloc(4); vXR = _alloc(4); vXRh = _alloc(2); vWQ = _alloc(2); vWO = _alloc(2); vLin1 = _alloc()
vM = _alloc(5); vT0 = _alloc(); vT1 = _alloc()
BORROW = [vTR + 1, vTR + 2, vTR + 3, vXR + 1, vXR + 2, vXR + 3, vXRh, vXRh + 1, vWQ + 1, vWO + 1, vLin1]
assert _v <= 255
vSTAMP = 255

sX = 28; sWQ = 32; sNX = 36; sNWQ = 40; sPO = 44
def sKV(blk, k): return 48 + blk * 12 + k * 4
def sPOB(blk): return 72 + blk * 2
sRING = 76; sOFF = 77; sC = 78
sNC = 80; sXM0 = 81; sPOW = 82; sW = 83; sJ = 84; sG = 85; sB = 86; sHG = 87
sT0 = 88; sT1 = 89; sT2 = 90; sT3 = 91; sPH = 92; sGR = 93
sCOL = 94
sWQK = 98; sWOK = 99; sSTI = 100; sSIG = 101


class Gen:
    def __init__(self, cfg):
        self.cfg = cfg
        self.A = Asm()
        self.stamps = []

    def V(self, text, w, r):
        self.A.valu(text, w if isinstance(w, list) else [w], r)

    def stamp(self, name):
        if not self.cfg.stamp: return
        if self.cfg.span and name != "end": return
        A = self.A
        A.raw("s_memrealtime s[26:27]" if self.cfg.rt else "s_memtime s[26:27]")
        A.raw("s_waitcnt lgkmcnt(0)")
        A.lgkm = []
        A.raw(f"s_mov_b32 m0, s{sSTI}")
        A.raw(f"s_add_u32 s{sSTI}, s{sSTI}, 1")
        A.raw(f"s_min_u32 s{sSTI}, s{sSTI}, 62")
        A.raw(f"v_writelane_b32 v{vSTAMP}, s26, m0")
        self.m0slot = None
        self.stamps.append(name)

    def bar(self, name=None):
        self.A.barrier()
        if name: self.stamp(name)

    def setup(self):
        A = self.A; V = self.V; cfg = self.cfg
        if cfg.rt: A.raw("s_memrealtime s[70:71]")
        if cfg.dbgspan: A.raw("s_memrealtime s[26:27]")
        A.salu("s_cmp_ge_u32 s2, 256")
        A.salu("s_cbranch_scc1 L_attn_done")
        if cfg.only:
            A.salu(f"s_and_b32 s3, s2, {cfg.only}")
            A.salu("s_cbranch_scc1 L_attn_done")
        A.salu("s_load_dwordx16 s[4:19], s[0:1], 0")
        A.salu("s_load_dwordx4 s[20:23], s[0:1], 64")
        A.salu("s_load_dwordx2 s[24:25], s[0:1], 96")
        vL = 4; vG = 5; vQ = 6; vTmp = 7
        t1 = 1; t2 = 2; t3 = 3
        V(f"v_lshrrev_b32 v{vTmp}, 6, v0", vTmp, [0])
        V(f"v_and_b32 v{vL}, 63, v0", vL, [0])
        A.rfl(sW, vTmp)
        V(f"v_lshrrev_b32 v{vG}, 4, v{vL}", vG, [vL])
        V(f"v_and_b32 v{vQ}, 15, v{vL}", vQ, [vL])
        A.nop(2)
        A.salu(f"s_and_b32 s{sJ}, s{sW}, 3")
        A.salu(f"s_lshr_b32 s{sG}, s{sW}, 2")
        A.salu(f"s_lshr_b32 s{sB}, s2, 3")
        A.salu(f"s_and_b32 s{sHG}, s2, 7")
        A.salu(f"s_mul_i32 s{sRING}, s{sW}, {RINGSZ}")
        A.salu(f"s_add_u32 s{sRING}, s{sRING}, {RING0}")
        A.salu(f"s_mul_i32 s{sXM0}, s{sG}, 20480")
        A.salu(f"s_lshl_b32 s{sT0}, s{sJ}, 10")
        A.salu(f"s_add_u32 s{sXM0}, s{sXM0}, s{sT0}")
        V(f"v_and_b32 v{t1}, 7, v{vL}", t1, [vL])
        V(f"v_lshlrev_b32 v{t3}, 1, v{vG}", t3, [vG])
        V(f"v_xor_b32 v{t3}, v{t3}, v{t1}", t3, [t3, t1])
        V(f"v_lshlrev_b32 v{t3}, 4, v{t3}", t3, [t3])
        V(f"v_lshrrev_b32 v{t2}, 3, v{vL}", t2, [vL])
        A.salu(f"s_lshl_b32 s{sT0}, s{sJ}, 7")
        V(f"v_lshrrev_b32 v{vTmp}, 5, v{vL}", vTmp, [vL])
        V(f"v_lshlrev_b32 v{vTmp}, 3, v{vTmp}", vTmp, [vTmp])
        V(f"v_and_b32 v{vWQ}, 3, v{t2}", vWQ, [t2])
        V(f"v_add_u32 v{vTmp}, v{vTmp}, v{vWQ}", vTmp, [vTmp, vWQ])
        V(f"v_lshl_add_u32 v{vWQ}, v{vTmp}, 13, v{t3}", vWQ, [vTmp, t3])
        V(f"v_add_u32 v{vWQ}, s{sT0}, v{vWQ}", vWQ, [vWQ])
        V(f"v_add_u32 v{vWQ+1}, {16*8192-1024}, v{vWQ}", vWQ + 1, [vWQ])
        if cfg.krot == 2:
            A.salu(f"s_mul_i32 s{sT3}, s{sB}, 7")
            A.salu(f"s_lshr_b32 s{sT3}, s{sT3}, 4")
        elif cfg.krot:
            A.salu(f"s_lshr_b32 s{sT3}, s{sB}, 1")
            A.salu(f"s_min_u32 s{sT3}, s{sT3}, 13")
        else:
            A.salu(f"s_mov_b32 s{sT3}, 0")
        A.salu(f"s_lshl_b32 s{sWQK}, s{sT3}, 18")
        A.salu(f"s_sub_u32 s{sWQK}, s{sWQK}, 262144")
        A.salu(f"s_cselect_b32 s{sWQK}, {13*262144}, s{sWQK}")
        A.salu(f"s_lshl_b32 s{sT1}, s{sJ}, 2")
        A.salu(f"s_lshl_b32 s{sT2}, s{sG}, 8")
        A.salu(f"s_lshl_b32 s{sT3}, s{sT3}, 6")
        A.salu(f"s_add_u32 s{sT2}, s{sT2}, s{sT3}")
        V(f"v_add_u32 v8, s{sT1}, v{vG}", 8, [vG])
        V(f"v_xor_b32 v9, v8, v{vQ}", 9, [8, vQ])
        V(f"v_lshl_add_u32 v9, v9, 4, s{sT2}", 9, [9])
        V(f"v_mul_u32_u24 v8, 896, v8", 8, [8])
        for pair in range(2):
            if pair: V(f"v_add_u32 v9, 512, v9", 9, [9])
            V(f"v_subrev_u32 v10, 896, v9", 10, [9])
            V(f"v_min_u32 v10, v10, v9", 10, [10, 9])
            V(f"v_add_u32 v{vX+pair}, v8, v10", vX + pair, [8, 10])
        V(f"v_subrev_u32 v9, s{sT3}, v9", 9, [9])
        V(f"v_mov_b32 v10, 0x4000000", 10, [])
        V(f"v_cmp_gt_u32 vcc, 896, v9", [], [9])
        A.nop(2)
        V(f"v_cndmask_b32 v{vX+1}, v10, v{vX+1}, vcc", vX + 1, [10, vX + 1])
        A.raw("s_waitcnt lgkmcnt(0)")
        def fin(srd, off_s, nrec):
            A.salu(f"s_add_u32 s{srd}, s{srd}, s{off_s}")
            A.salu(f"s_addc_u32 s{srd+1}, s{srd+1}, 0")
            A.salu(f"s_and_b32 s{srd+1}, s{srd+1}, 0xffff")
            A.salu(f"s_mov_b32 s{srd+2}, {nrec}")
            A.salu(f"s_mov_b32 s{srd+3}, 0x20000")
        if cfg.order == 2: A.salu(f"s_and_b32 s3, s{sB}, 1")
        elif cfg.order == 3: A.salu(f"s_and_b32 s3, s{sHG}, 1")
        elif cfg.order == 7:
            A.salu(f"s_not_b32 s3, s{sHG}"); A.salu("s_and_b32 s3, s3, 1")
        elif cfg.order == 8: A.salu(f"s_bfe_u32 s3, s{sHG}, 0x10001")
        elif cfg.order == 9: A.salu(f"s_bfe_u32 s3, s{sHG}, 0x10002")
        elif cfg.order == 10:
            A.salu("s_getreg_b32 s3, hwreg(HW_REG_XCC_ID)"); A.salu("s_and_b32 s3, s3, 1")
        elif cfg.order == 6:
            A.salu(f"s_xor_b32 s3, s{sB}, s{sHG}"); A.salu("s_and_b32 s3, s3, 1")
        elif cfg.order == 4:
            A.salu(f"s_and_b32 s3, s{sB}, 7"); A.salu("s_cmp_lt_u32 s3, 3"); A.salu("s_cselect_b32 s3, 1, 0")
        elif cfg.order == 5:
            A.salu(f"s_and_b32 s3, s{sB}, 7"); A.salu("s_cmp_lt_u32 s3, 5"); A.salu("s_cselect_b32 s3, 1, 0")
        else: A.salu(f"s_mov_b32 s3, {cfg.order}")
        A.salu("s_cmp_eq_u32 s3, 1")
        A.salu(f"s_cselect_b64 s[{sX}:{sX+1}], s[14:15], s[4:5]")
        A.salu(f"s_cselect_b64 s[{sWQ}:{sWQ+1}], s[20:21], s[10:11]")
        A.salu(f"s_cselect_b64 s[{sNX}:{sNX+1}], s[4:5], s[14:15]")
        A.salu(f"s_cselect_b64 s[{sNWQ}:{sNWQ+1}], s[10:11], s[20:21]")
        A.salu(f"s_mul_i32 s{sT2}, s{sB}, 71680")
        fin(sX, sT2, 71680)
        A.salu(f"s_lshl_b32 s{sT1}, s{sHG}, 1")
        A.salu(f"s_add_u32 s{sT1}, s{sT1}, s{sG}")
        A.salu(f"s_lshl_b32 s{sT1}, s{sT1}, 9")
        A.salu(f"s_sub_u32 s{sT3}, {448*8192}, s{sT1}")
        fin(sWQ, sT1, f"s{sT3}")
        if cfg.stamp:
            V(f"v_mov_b32 v{vSTAMP}, 0", vSTAMP, [])
            A.salu(f"s_mov_b32 s{sSTI}, 0")
        if cfg.rt: A.raw(f"v_writelane_b32 v{vSTAMP}, s70, 63")
        self.stamp("start")
        self.m0slot = None
        for n in range(2):
            for pc in range(2): self.slot_dma("WQ", n & 1, ("WQ", n), n, pc, 0)
        if cfg.pro & 1: A.barrier()
        for t in range(5): self.x_dma(0, t)
        if cfg.pro & 2: A.barrier()
        for t in range(5):
            if cfg.cond: self.x_dma(1, t)
            else: self.x_load(1, t)
        fin(sNX, sT2, 71680)
        fin(sNWQ, sT1, f"s{sT3}")
        A.salu(f"s_mul_i32 s{sPOW}, s{sW}, 10240")
        c = 1.4426950408889634 / 16.0
        A.salu(f"s_mov_b32 s{sC}, {f32bits(c):#x}")
        A.salu(f"s_mov_b32 s{sC+1}, {f32bits(c):#x}")
        A.salu(f"s_mov_b32 s{sNC}, {f32bits(-c):#x}")
        A.salu(f"s_mov_b32 s{sPH}, 0")
        A.salu(f"s_mul_i32 s{sGR}, s{sG}, {4*RINGSZ}")
        for jj in range(4):
            A.salu(f"s_xor_b32 s{sCOL+jj}, s{sJ}, {jj}")
            A.salu(f"s_lshl_b32 s{sCOL+jj}, s{sCOL+jj}, 7")
        V(f"v_lshl_add_u32 v{vV}, v{t2}, 9, v{t3}", vV, [t2, t3])
        V(f"v_add_u32 v{vV}, s{sT0}, v{vV}", vV, [vV])
        V(f"v_add_u32 v{vV+1}, {4096-1024}, v{vV}", vV + 1, [vV])
        A.salu(f"s_lshl_b32 s{sT1}, s{sW}, 7")
        A.salu(f"s_cmp_eq_u32 s{sW}, 7")
        A.salu(f"s_cselect_b32 s{sT1}, 0x4000000, s{sT1}")
        V(f"v_mul_u32_u24 v{vWO}, 896, v{t2}", vWO, [t2])
        V(f"v_add3_u32 v{vWO}, v{vWO}, v{t3}, s{sT1}", vWO, [vWO, t3])
        V(f"v_add_u32 v{vWO+1}, {8*896-1024}, v{vWO}", vWO + 1, [vWO])
        V(f"v_xor_b32 v{t1}, v{t1}, v{vG}", t1, [t1, vG])
        V(f"v_lshlrev_b32 v{t1}, 4, v{t1}", t1, [t1])
        V(f"v_lshl_add_u32 v{vK}, v{t2}, 9, v{t1}", vK, [t2, t1])
        A.salu(f"s_lshl_b32 s{sT1}, s{sJ}, 16")
        V(f"v_add_u32 v{vK}, s{sT1}, v{vK}", vK, [vK])
        V(f"v_xor_b32 v{vK+1}, 64, v{vK}", vK + 1, [vK])
        V(f"v_add_u32 v{vK+1}, {4096-1024}, v{vK+1}", vK + 1, [vK + 1])
        V(f"v_lshrrev_b32 v{t1}, 2, v{vL}", t1, [vL])
        V(f"v_lshlrev_b32 v{t1}, 7, v{t1}", t1, [t1])
        V(f"v_bfe_u32 v{t2}, v{vL}, 3, 2", t2, [vL])
        V(f"v_lshl_add_u32 v{t1}, v{t2}, 5, v{t1}", t1, [t1, t2])
        V(f"v_and_b32 v{t2}, 3, v{vL}", t2, [vL])
        V(f"v_lshl_add_u32 v{t1}, v{t2}, 3, v{t1}", t1, [t1, t2])
        V(f"v_add_u32 v{vTR}, s{sRING}, v{t1}", vTR, [t1])
        for a in range(1, 4):
            V(f"v_xor_b32 v{vTR+a}, {a << 5}, v{vTR}", vTR + a, [vTR])
        V(f"v_lshrrev_b32 v{t1}, 1, v{vQ}", t1, [vQ])
        V(f"v_xor_b32 v{t1}, v{t1}, v{vG}", t1, [t1, vG])
        V(f"v_lshlrev_b32 v{t1}, 4, v{t1}", t1, [t1])
        V(f"v_lshl_add_u32 v{t1}, v{vQ}, 7, v{t1}", t1, [t1, vQ])
        V(f"v_add_u32 v{vKR}, s{sRING}, v{t1}", vKR, [t1])
        V(f"v_xor_b32 v{vKR+1}, 64, v{vKR}", vKR + 1, [vKR])
        V(f"v_xor_b32 v{t1}, v{vG}, v{vQ}", t1, [vG, vQ])
        V(f"v_lshlrev_b32 v{t1}, 4, v{t1}", t1, [t1])
        V(f"v_lshl_add_u32 v{vXR}, v{vQ}, 8, v{t1}", vXR, [vQ, t1])
        for u in range(1, 4):
            V(f"v_xor_b32 v{vXR+u}, {u << 6}, v{vXR}", vXR + u, [vXR])
        for u in range(2):
            V(f"v_add_u32 v{vXRh+u}, 61440, v{vXR+u}", vXRh + u, [vXR + u])
        V(f"v_lshlrev_b32 v{vLin0}, 4, v{vL}", vLin0, [vL])
        V(f"v_add_u32 v{vLin1}, {BREG}, v{vLin0}", vLin1, [vLin0])
        A.salu(f"s_mul_i32 s{sT1}, s{sG}, {BREG}")
        A.salu(f"s_mul_i32 s{sT2}, s{sJ}, 10240")
        A.salu(f"s_add_u32 s{sT2}, s{sT2}, s{sT1}")
        V(f"v_add_u32 v{vLinG}, s{sT1}, v{vLin0}", vLinG, [vLin0])
        A.salu(f"s_mul_i32 s{sT3}, s{sJ}, 5120")
        V(f"v_add_u32 v{vPW}, s{sT3}, v{vLinG}", vPW, [vLinG])
        V(f"v_lshrrev_b32 v{t1}, 1, v{vG}", t1, [vG])
        V(f"v_lshlrev_b32 v{t1}, 8, v{t1}", t1, [t1])
        V(f"v_and_b32 v{t2}, 1, v{vG}", t2, [vG])
        V(f"v_lshl_add_u32 v{t1}, v{t2}, 9, v{t1}", t1, [t1, t2])
        V(f"v_lshl_add_u32 v{t1}, v{vQ}, 4, v{t1}", t1, [t1, vQ])
        V(f"v_add_u32 v{vQW}, s{sT2}, v{t1}", vQW, [t1])
        V(f"v_lshlrev_b32 v{t1}, 3, v{vQ}", t1, [vQ])
        V(f"v_add_u32 v{vSW}, s{sRING}, v{t1}", vSW, [t1])
        A.salu(f"s_add_u32 s{sT1}, s{sGR}, {RING0}")
        V(f"v_add_u32 v{vSR}, s{sT1}, v{t1}", vSR, [t1])
        V(f"v_add_u32 v{vRW}, s{sXM0}, v{vLin0}", vRW, [vLin0])
        if cfg.krot:
            A.salu(f"s_lshr_b32 s{sT3}, s{sB}, 1")
            A.salu(f"s_and_b32 s{sT3}, s{sT3}, 14")
        else:
            A.salu(f"s_mov_b32 s{sT3}, 0")
        A.salu(f"s_lshl_b32 s{sT1}, s{sW}, 1")
        A.salu(f"s_sub_u32 s{sT1}, s{sT1}, s{sT3}")
        A.salu(f"s_and_b32 s{sT1}, s{sT1}, 15")
        A.salu(f"s_mul_i32 s{sT1}, s{sT1}, 5120")
        V(f"v_add_u32 v{vOW}, s{sT1}, v{vLin0}", vOW, [vLin0])
        A.salu(f"s_add_u32 s{sT3}, s{sT3}, 15")
        A.salu(f"s_and_b32 s{sT3}, s{sT3}, 15")
        A.salu(f"s_mul_i32 s{sWOK}, s{sT3}, {32*896}")
        A.salu(f"s_lshl_b32 s{sT1}, s{sB}, 3")
        A.salu(f"s_add_u32 s{sT1}, s{sT1}, s{sHG}")
        A.salu(f"s_lshl_b32 s{sT2}, s{sT1}, 18")
        A.salu(f"s_lshl_b32 s{sT3}, s{sG}, 13")
        A.salu(f"s_add_u32 s{sT2}, s{sT2}, s{sT3}")
        A.salu(f"s_sub_u32 s{sT3}, 262144, s{sT3}")
        A.salu(f"s_mov_b64 s[{sKV(0,0)}:{sKV(0,0)+1}], s[6:7]")
        A.salu(f"s_mov_b64 s[{sKV(0,1)}:{sKV(0,1)+1}], s[8:9]")
        fin(sKV(0, 0), sT2, f"s{sT3}"); fin(sKV(0, 1), sT2, f"s{sT3}")
        A.salu(f"s_lshl_b32 s{sT2}, s{sT1}, 1")
        A.salu(f"s_add_u32 s{sT2}, s{sT2}, s{sG}")
        A.salu(f"s_lshl_b32 s{sT2}, s{sT2}, 18")
        A.salu(f"s_mov_b64 s[{sKV(1,0)}:{sKV(1,0)+1}], s[16:17]")
        A.salu(f"s_mov_b64 s[{sKV(1,1)}:{sKV(1,1)+1}], s[18:19]")
        fin(sKV(1, 0), sT2, 262144); fin(sKV(1, 1), sT2, 262144)
        A.salu(f"s_mul_i32 s{sT2}, s{sHG}, {512*896}")
        A.salu(f"s_mov_b64 s[{sKV(0,2)}:{sKV(0,2)+1}], s[12:13]")
        A.salu(f"s_mov_b64 s[{sKV(1,2)}:{sKV(1,2)+1}], s[22:23]")
        fin(sKV(0, 2), sT2, 512 * 896); fin(sKV(1, 2), sT2, 512 * 896)
        for blk in range(2):
            A.salu(f"s_add_u32 s{sT2}, s{sT1}, {blk*256}")
            A.salu(f"s_mul_i32 s{sT2}, s{sT2}, 71680")
            A.salu(f"s_add_u32 s{sPOB(blk)}, s24, s{sT2}")
            A.salu(f"s_addc_u32 s{sPOB(blk)+1}, s25, 0")
            A.salu(f"s_and_b32 s{sPOB(blk)+1}, s{sPOB(blk)+1}, 0xffff")
        A.salu(f"s_mov_b64 s[{sPO}:{sPO+1}], s[{sPOB(0)}:{sPOB(0)+1}]")
        A.salu(f"s_mov_b32 s{sPO+2}, 0")
        A.salu(f"s_mov_b32 s{sPO+3}, 0x20000")
        if "now" in cfg.hack:
            for r in (sWQ, sNWQ, sKV(0, 2), sKV(1, 2)): A.salu(f"s_mov_b32 s{r+2}, 0")
        if "nokv" in cfg.hack:
            for r in (sKV(0, 0), sKV(0, 1), sKV(1, 0), sKV(1, 1)): A.salu(f"s_mov_b32 s{r+2}, 0")
        if "nox" in cfg.hack:
            A.salu(f"s_mov_b32 s{sNX+2}, 0")
        if cfg.prio:
            A.salu(f"s_cmp_eq_u32 s{sG}, 0")
            A.salu("s_cbranch_scc1 L_noprio")
            A.salu(f"s_setprio {cfg.prio}")
            A.label("L_noprio")
        if cfg.early:
            assert cfg.order == 2
            R_ = A.salu
            R_("s_load_dwordx4 s[4:7], s[0:1], 80")
            R_(f"s_lshl_b32 s{sT0}, s3, 5"); R_(f"s_add_u32 s{sT0}, s{sT0}, s{sB}")
            R_(f"s_mul_i32 s{sT0}, s{sT0}, {8*71680}")
            R_(f"s_add_u32 s16, s24, s{sT0}"); R_("s_addc_u32 s17, s25, 0"); R_("s_and_b32 s17, s17, 0xffff")
            R_(f"s_mov_b32 s18, {8*71680}"); R_("s_mov_b32 s19, 0x20000")
            R_(f"s_lshl_b32 s{sT0}, s{sHG}, 3"); R_(f"s_add_u32 s{sT0}, s{sT0}, s{sW}")
            R_(f"s_lshl_b32 s20, s{sT0}, 10")
            R_(f"s_lshl_b32 s23, s{sB}, 6"); R_(f"s_add_u32 s23, s23, s{sT0}"); R_("s_lshl_b32 s23, s23, 2")
            R_("s_add_u32 s23, s23, 0x4000000")
            R_(f"s_mul_i32 s{sT1}, s{sT0}, 205"); R_(f"s_lshr_b32 s{sT1}, s{sT1}, 10")
            R_(f"s_mul_i32 s{sT2}, s{sT1}, 5"); R_(f"s_sub_u32 s{sT2}, s{sT0}, s{sT2}")
            R_(f"s_mul_i32 s21, s{sB}, 80"); R_(f"s_lshl_b32 s{sT2}, s{sT2}, 4"); R_(f"s_add_u32 s21, s21, s{sT2}")
            R_("s_mul_i32 s21, s21, 1792"); R_(f"s_mul_i32 s{sT2}, s3, 896"); R_(f"s_add_u32 s21, s21, s{sT2}")
            R_(f"s_lshl_b32 s{sT1}, s{sT1}, 6"); R_(f"s_add_u32 s21, s21, s{sT1}")
            R_("s_mov_b32 s22, 0")
            R_(f"s_cmp_eq_u32 s{sW}, 0"); R_(f"s_cselect_b32 s{sSIG}, 1, 2")
            R_(f"s_lshl_b32 s{sT0}, s{sB}, 2")
            V(f"v_mov_b32 v{vT1}, s{sT0}", vT1, [])
            V(f"v_mov_b32 v{vT0}, 1", vT0, [])
        if cfg.kpf:
            assert not cfg.early and cfg.cond
            V(f"v_add_u32 v{vT0}, s{sRING}, v{vLin0}", vT0, [vLin0])
            L = []
            for i in range(cfg.kpf):
                u = 6 + i; jj, kt = u // 4, u % 4
                L.append(f"s_add_u32 s{sT0}, s{sCOL+jj}, {kt * 8192}")
                for pc in range(2):
                    r = ACC + 100 + 8 * i + 4 * pc
                    L.append(f"buffer_load_dwordx4 v[{r}:{r+3}], v{vK+pc}, s[{sKV(1,0)}:{sKV(1,0)+3}], s{sT0} offen" + (" offset:1024" if pc else "") + f" {cfg.kv_flags}")
            self.cond_block("s_cmp_eq_u32 s3, 1", L)
        for n in range(2, 5):
            for pc in range(2): self.slot_dma("WQ", n & 1, ("WQ", n), n, pc, 0)
        if cfg.early:
            A.raw("s_waitcnt lgkmcnt(0)")
            R_("s_mov_b32 s8, s6"); R_("s_and_b32 s9, s7, 0xffff"); R_("s_mov_b32 s10, 256"); R_("s_mov_b32 s11, 0x20000")
            R_("s_mov_b32 s12, s4"); R_("s_and_b32 s13, s5, 0xffff"); R_(f"s_mov_b32 s14, {32*80*896*2}"); R_("s_mov_b32 s15, 0x20000")
        A.wait_vm_tag(("WQ", 1))
        for y in range(2):
            for a in range(4):
                A.ds_read("ds_read_b64_tr_b16", A_tr(0, a) + 2 * y, 2, vTR + a, y * 2048)
        A.wait_vm_tag(("x", 0))
        A.wait_lgkm_all()
        self.bar("AB1")
        for b in range(5): A.ds_read("ds_read_b128", B_tr(b), 4, vXR, b * 4096)
        for n in range(5, 7):
            for pc in range(2): self.slot_dma("WQ", n & 1, ("WQ", n), n % 5, pc, 0)
        A.wait_lgkm_all()
        self.canon_vm = [e for e in A.vm if e[0][0] == "WQ"]
        assert [e[0][1] for e in self.canon_vm] == [2, 2, 3, 3, 4, 4, 5, 5, 6, 6]
        self.canon_lgkm = None
        A.salu("s_cmp_eq_u32 s3, 1")
        A.salu("s_cbranch_scc1 L_body1")

    def wq_off(self, n):
        return n & 1

    def x_dma(self, pair, t):
        A = self.A
        A.salu(f"s_mov_b32 s{sOFF}, {t * 14336}")
        A.salu(f"s_add_u32 m0, s{sXM0}, {pair * 40960 + t * 4096}", m0=True)
        self.m0slot = None
        A.dma(vX + pair, sX, sOFF, flags=self.cfg.x_flags, tag=("x", pair))

    def skip_begin(self, ph):
        self.nlab = getattr(self, "nlab", 0) + 1
        self.A.salu(f"s_cmp_eq_u32 s{sPH}, {ph}")
        self.A.salu(f"s_cbranch_scc1 L_sk{self.nlab}")

    def skip_end(self):
        self.A.label(f"L_sk{self.nlab}")

    def cond_block(self, cmp, lines):
        self.nlab = getattr(self, "nlab", 0) + 1
        A = self.A
        A.salu(cmp)
        A.salu(f"s_cbranch_scc0 L_sk{self.nlab}")
        for l in lines: A.raw(l, 0)
        A.label(f"L_sk{self.nlab}")

    def x_load_c(self, pair, t):
        A = self.A
        if "nx2" in self.cfg.hack: return
        r = ACC + 80 + (pair * 5 + t) * 4
        A._mem_ready(rng(r, 4)); A._haz("mem", [vX + pair], rng(r, 4))
        self.skip_begin(1)
        A.raw(f"s_mov_b32 s{sT0}, {t * 14336}", 0)
        A.raw(f"buffer_load_dwordx4 v[{r}:{r+3}], v{vX+pair}, s[{sX}:{sX+3}], s{sT0} offen {self.cfg.x2f}", 0)
        self.skip_end()

    def x_write_c(self, pair, t):
        A = self.A
        if "nx2" in self.cfg.hack or "nxw" in self.cfg.hack: return
        r = ACC + 80 + (pair * 5 + t) * 4
        if len(A.lgkm) >= 13: A._wait_lgkm_idx(len(A.lgkm) - 13)
        self.skip_begin(1 - pair)
        A.raw(f"ds_write_b128 v{vRW}, v[{r}:{r+3}] offset:{pair * 40960 + t * 4096}", 0)
        self.skip_end()
        self.xw_mark = True

    def x_load(self, pair, t):
        A = self.A
        A.salu(f"s_mov_b32 s{sOFF}, {t * 14336}")
        self.m0slot = None
        A.bload(ACC + 80 + (pair * 5 + t) * 4, 4, vX + pair, sX, sOFF, flags=self.cfg.x_flags, tag=("xr", pair))

    def x_write(self, pair, t):
        self.A.ds_write("ds_write_b128", vRW, ACC + 80 + (pair * 5 + t) * 4, 4, pair * 40960 + t * 4096, tag=("xw", pair))

    def store_po_cond(self, i, b, flags):
        A = self.A
        self.nlab = getattr(self, "nlab", 0) + 1
        r = ACC + 120 + (i * 5 + b) * 4
        A.salu(f"s_cmp_eq_u32 s{sPH}, 0")
        A.salu(f"s_cbranch_scc1 L_sk{self.nlab}")
        A.raw(f"s_add_u32 s{sT0}, s{sPOW}, {(i * 5 + b) * 1024}", 0)
        A.raw(f"buffer_store_dwordx4 v[{r}:{r+3}], v{vLin0}, s[{sPO}:{sPO+3}], s{sT0} offen {flags}", 0)
        A.label(f"L_sk{self.nlab}")

    def store_po(self, i, b, flags):
        A = self.A
        A.salu(f"s_add_u32 s{sT0}, s{sPOW}, {(i * 5 + b) * 1024}")
        A.bstore(ACC + 120 + (i * 5 + b) * 4, 4, vLin0, sPO, sT0, flags=flags, tag="po")

    def set_off(self, typ, off, adv):
        A = self.A
        if typ in ("WQ", "WO"):
            reg, step, cnt, ystep = (sWQK, 262144, 14, 32768) if typ == "WQ" else (sWOK, 32 * 896, 16, 16 * 896)
            if adv and off == 0:
                A.salu(f"s_add_u32 s{reg}, s{reg}, {step}")
                A.salu(f"s_sub_u32 s{sOFF}, s{reg}, {step * cnt}")
                A.salu(f"s_cselect_b32 s{reg}, s{reg}, s{sOFF}")
            A.salu(f"s_add_u32 s{sOFF}, s{reg}, {off * ystep}")
        elif typ == "K": A.salu(f"s_add_u32 s{sOFF}, s{sCOL+off[1]}, {off[0]}")
        else: A.salu(f"s_mov_b32 s{sOFF}, {off}")

    def slot_dma(self, typ, off, key, phys, pc, blk):
        A = self.A; cfg = self.cfg
        vo, srd, fl = {"WQ": (vWQ, sWQ, cfg.w_flags), "K": (vK, sKV(blk, 0), cfg.kv_flags),
                       "V": (vV, sKV(blk, 1), cfg.kv_flags), "WO": (vWO, sKV(blk, 2), cfg.w_flags)}[typ]
        if pc == 0 or self.m0slot != key:
            self.set_off(typ, off, pc == 0)
            A.salu(f"s_add_u32 m0, s{sRING}, {phys * 2048}", m0=True)
            self.m0slot = key
        A.dma(vo + pc, srd, sOFF, off=1024 * pc, flags=fl, tag=key)

    def cvt(self, dst, a, b):
        self.A.valu(f"v_cvt_pk_bf16_f32 v{dst}, v{a}, v{b}", [dst], [a, b])

    def body(self, blk):
        A = self.A; V = self.V; cfg = self.cfg; R = cfg.R; cvt = self.cvt
        assert R == 5
        shared = (blk == 0)
        A.label(f"L_body{blk}")
        A.vm = list(self.canon_vm)
        can_l = []
        for a in range(4): can_l.append((None, set(rng(A_tr(0, a), 2))))
        for a in range(4): can_l.append((None, set(rng(A_tr(0, a) + 2, 2))))
        for b in range(5): can_l.append((None, set(rng(B_tr(b), 4))))
        A.lgkm = list(can_l)
        A.vw = {}; A.mfma_c_read = {}
        self.m0slot = None
        nm = "AB"[blk]
        units = [(jj, 4 * r + k) for r in range(2) for jj in range(4) for k in range(4)]
        use = {}; phys = {}; order = []
        def add(key, typ, off):
            use[key] = (typ, off); order.append(key)
        for n in range(2, 28):
            add(("WQ", n), "WQ", n & 1); phys["WQ", n] = n % 5
        nK = 16 if shared else 32
        for i in range(nK):
            jj, kt = units[2 * i] if shared else units[i]
            add(("K", i), "K", (kt * 8192, jj))
        kpreg = {}
        add(("SCR", 0), "SCR", 0)
        for ks in range(16):
            t, w = divmod(ks, 4)
            key0 = 128 * w + 32 * t
            if shared: add(("V", ks), "V", key0 * 512)
            else:
                for y in range(2): add(("V", 2 * ks + y), "V", (key0 + 16 * y) * 512)
        for n in range(32): add(("WO", n), "WO", n & 1)
        for n in range(7): add(("NWQ", n), "WQ", n & 1)
        T = order[order.index(("K", 0)):]
        for i, key in enumerate(T): phys[key] = (i - (len(T) - 7)) % 5
        slotq = [deque(k for k in order if phys[k] == p) for p in range(5)]
        issued = set(("WQ", n) for n in range(7)); avail = set()
        side = deque(); vq = deque(); slow = deque()
        st = {"wq_left": 21, "pr": 0}

        def issue(key, pc):
            typ, off = use[key]
            if key[0] == "K" and key[1] in kpreg:
                A.ds_write("ds_write_b128", vT0, kpreg[key[1]] + 4 * pc, 4, phys[key] * 2048 + pc * 1024)
            else:
                self.slot_dma(typ, off, key, phys[key], pc, blk)
            if pc == 1:
                issued.add(key)
                if key[0] == "WQ":
                    st["wq_left"] -= 1
                    if st["wq_left"] == 0: switch_srd()

        def switch_srd():
            A.salu(f"s_mov_b64 s[{sX}:{sX+1}], s[{sNX}:{sNX+1}]")
            A.salu(f"s_mov_b32 s{sX+2}, s{sNX+2}")
            A.salu(f"s_mov_b64 s[{sWQ}:{sWQ+1}], s[{sNWQ}:{sNWQ+1}]")
            A.salu(f"s_mov_b32 s{sWQ+2}, s{sNWQ+2}")
            A.salu(f"s_mov_b32 s{sNX+2}, 0")
            A.salu(f"s_mov_b32 s{sNWQ+2}, 0")

        def release(key):
            q = slotq[phys[key]]
            assert q[0] == key, (key, q[0])
            q.popleft()
            if not q: return
            nx = q[0]
            if nx[0] == "SCR": avail.add(nx)
            else:
                side.append(lambda: issue(nx, 0)); side.append(lambda: issue(nx, 1))

        def pump(q, k=1):
            for _ in range(k):
                if q: q.popleft()()

        def flush(q):
            while q: q.popleft()()

        def need(key):
            while key not in issued:
                assert side, key
                side.popleft()()
            A.wait_vm_tag(key)

        def tr_read(par, a, y, off, tag):
            A.ds_read("ds_read_b64_tr_b16", A_tr(par, a) + 2 * y, 2, vTR + a, off, tag=tag)

        def offs(typ, s, y, sh):
            return (phys[typ, s] * 2048 + y * 4 * RINGSZ) if sh else phys[typ, 2 * s + y] * 2048

        def prio():
            if cfg.fair:
                A.salu(f"s_setprio {3 - st['pr'] % 4}"); st["pr"] += 1

        def kstep(par, czero, nx, bread, cur_sh=None, barrier=False, pub=None, after=None, extra=None, tail=None, label=None):
            typ, s, sh = nx
            for p in range(20):
                b, a = divmod(p, 4)
                if p == 0:
                    if label and label[0] in cfg.kst.split(","): self.stamp(nm + label[0] + str(label[1]))
                    if not sh: prio()
                    need((typ, s) if sh else (typ, 2 * s))
                    if pub:
                        if pub[0] == "xw": assert not slow
                        flush(vq); flush(slow); A.wait_lgkm_tag(pub)
                    if (sh or barrier or pub) and not ("nopvbar" in cfg.hack and typ == "V" and not sh):
                        if cur_sh: A.wait_lgkm_tag(("rd",) + cur_sh)
                        A.barrier()
                        if cur_sh: release(cur_sh)
                    if after: after()
                if p == cfg.ypos and not sh: need((typ, 2 * s + 1))
                A.mfma(ACC + (a * 5 + b) * 4, A_tr(par, a), B_tr(b), czero=czero)
                if sh: yy = (p >> 1, p & 1) if p < 4 else None
                else: yy = (0, p) if p < 2 else ((1, p - cfg.ypos) if 0 <= p - cfg.ypos < 2 else None)
                if yy:
                    y, hh = yy
                    for a2 in (hh * 2, hh * 2 + 1):
                        tr_read(par ^ 1, a2, y, offs(typ, s, y, sh), ("rd", typ, s) if sh else ("rd", typ, 2 * s + y))
                if a == 3 and bread: bread(b)
                if a == 1 and extra: extra(b)
                if not sh:
                    for y, rp in ((0, cfg.relx), (1, cfg.ypos + cfg.relx)):
                        if p == rp:
                            A.wait_lgkm_tag(("rd", typ, 2 * s + y))
                            release((typ, 2 * s + y))
                if p >= 2: pump(side, cfg.npump)
                if p in (8, 18): pump(slow)
                if tail and a == 3 and b >= 1: tail(b - 1)
                pump(vq, 3 if tail else 1)
            if tail:
                tail(4); flush(vq)

        def joint(nx, BX, done, cur_sh=None, hooks={}):
            typ, s, sh = nx
            groups = [(0, 0), (0, 1), (1, 0), (0, 2), (1, 1), (0, 3), (1, 2), (0, 4), (1, 3), (1, 4)]
            pend = None
            for gi, (o, b) in enumerate(groups):
                for a in range(4):
                    p = gi * 4 + a
                    if p == 0:
                        if not sh: prio()
                        need((typ, s) if sh else (typ, 2 * s))
                        if sh:
                            A.wait_lgkm_tag(("rd",) + cur_sh)
                            A.barrier()
                            release(cur_sh)
                    if p == 2 and not sh: need((typ, 2 * s + 1))
                    if p == 20 and not sh: prio()
                    if p == 8:
                        A.wait_lgkm_all()
                        if not sh:
                            release((typ, 2 * s)); release((typ, 2 * s + 1))
                        A.barrier()
                        if sh: release((typ, s))
                    A.mfma(ACC + (a * 5 + b) * 4, A_tr(o, a), (BX + 4 * b) if o else B_tr(b))
                    if p < 4:
                        y, hh = p >> 1, p & 1
                        for a2 in (hh * 2, hh * 2 + 1):
                            tr_read(1, a2, y, offs(typ, s, y, sh), None)
                    if p in hooks: hooks[p]()
                    if p >= 4: pump(side, cfg.npump)
                    if a == 2 and pend is not None:
                        done(pend); pend = None
                    pump(vq, 3)
                if o: pend = b
            done(pend); flush(vq)
            if cfg.fair: A.salu("s_setprio 0")

        def prefetch_A(typ, sh=False):
            if not sh:
                need((typ, 0)); need((typ, 1))
            for y in range(2):
                for a in range(4): tr_read(0, a, y, offs(typ, 0, y, sh), ("rd", typ, 0))

        def pair_cvt(i, b, q):
            r0 = ACC + ((2 * i) * 5 + b) * 4; r1 = ACC + ((2 * i + 1) * 5 + b) * 4
            for (d, x) in ((r0, r0), (r0 + 1, r0 + 2), (r0 + 2, r1), (r0 + 3, r1 + 2)):
                q.append(lambda d=d, x=x: cvt(d, x, x + 1))
            return r0

        def read_x(ks, b, dst):
            cidx, u = divmod(ks, 4)
            if cidx < 3: A.ds_read("ds_read_b128", dst, 4, vXR + u, cidx * 20480 + b * 4096)
            else: A.ds_read("ds_read_b128", dst, 4, vXRh + u, b * 4096)
        def q_after1():
            for t in range(5): slow.append(lambda t=t: (self.x_write_c if cfg.cond else self.x_write)(1, t))
        BXQ = ACC + 80
        stq = deque((i, b) for i in range(2) for b in range(5))
        for s in range(12):
            def ex(b, s=s):
                if s == 10: read_x(13, b, BXQ + 4 * b)
                s0, per = [int(v) for v in (cfg.stA, cfg.stB)[blk].split(",")]
                if s >= s0 and stq and b in (3, 1, 0, 2, 4)[:per] and not (cfg.stS >= 0 and blk == 1):
                    e_ = stq.popleft()
                    if "nost" not in cfg.hack: self.store_po_cond(*e_, cfg.po_flags)
            kstep(s & 1, s == 0, ("WQ", s + 1, False), lambda b, s=s: read_x(s + 1, b, B_tr(b)),
                  barrier=(s == 1), after=(q_after1 if s == 1 else None), pub=(("xw", 1) if s == 7 else None),
                  extra=ex, label=("WQ", s))
        assert not stq or cfg.stS >= 0
        def set_qr(jj):
            A.salu(f"s_mul_i32 s{sT0}, s{sCOL+jj}, 80")
            V(f"v_add_u32 v{vQR}, s{sT0}, v{vLinG}", vQR, [vLinG])
        def k_off(u):
            if shared: return phys["K", u >> 1] * 2048 + (u & 1) * 4 * RINGSZ
            return phys["K", u] * 2048
        def k_read(u, s):
            A.ds_read("ds_read_b128", A_s(u & 1, s), 4, vKR + s, k_off(u), tag=("rk", u))
        def done_q(b):
            for i in range(2):
                r0 = pair_cvt(i, b, vq)
            for i in range(2):
                r0 = ACC + ((2 * i) * 5 + b) * 4
                for e in range(2):
                    vq.append(lambda r=r0 + e: A.valu(f"v_permlane16_swap_b32 v{r}, v{r+2}", [r, r + 2], [r, r + 2], kind="perm"))
            for i in range(2):
                r0 = ACC + ((2 * i) * 5 + b) * 4
                vq.append(lambda r0=r0, i=i: A.ds_write("ds_write_b128", vQW, r0, 4, (i * 5 + b) * 1024))
        def q_h10():
            set_qr(0)
            if shared:
                for s in range(2): V(f"v_subrev_u32 v{vKR+s}, s{sGR}, v{vKR+s}", vKR + s, [vKR + s])
        self.stamp(nm + "Qj")
        joint(("WQ", 13, False), BXQ, done_q, hooks={10: q_h10})
        flush(side)
        need(("K", 0))
        if shared:
            A.wait_lgkm_all()
            self.bar(nm + "B4")
            for s in range(2): k_read(0, s)
        else:
            for s in range(2): k_read(0, s)
            A.wait_lgkm_all()
            release(("K", 0))
            self.bar(nm + "B4")
        if cfg.early and not cfg.noearly:
            self.cond_block(f"s_cmp_eq_u32 s{sPH}, s{sSIG}", ["s_mov_b64 exec, 1",
                f"buffer_atomic_add v{vT0}, v{vT1}, s[8:11], 0 offen sc1", "s_mov_b64 exec, -1"])
        for s in range(2):
            for b in range(5):
                A.ds_read("ds_read_b128", B_s(s, b), 4, vQR, (s * 5 + b) * 1024)
        def acc_s(kt, b): return ACC + (kt * 5 + b) * 4
        NM1 = lambda b: BORROW[b]
        L1 = lambda b: BORROW[5 + b]
        smq = deque()
        def q_max(kt):
            for b in range(5):
                r = acc_s(kt, b); m = vM + b
                if kt == 0:
                    smq.append(lambda r=r, m=m: V(f"v_max3_f32 v{m}, v{r}, v{r+1}, v{r+2}", m, [r, r+1, r+2]))
                    smq.append(lambda r=r, m=m: V(f"v_max_f32 v{m}, v{m}, v{r+3}", m, [m, r+3]))
                else:
                    smq.append(lambda r=r, m=m: V(f"v_max3_f32 v{m}, v{m}, v{r}, v{r+1}", m, [m, r, r+1]))
                    smq.append(lambda r=r, m=m: V(f"v_max3_f32 v{m}, v{m}, v{r+2}, v{r+3}", m, [m, r+2, r+3]))
        def q_round1():
            for sw in ("v_permlane32_swap_b32", "v_permlane16_swap_b32"):
                for b in range(5): smq.append(lambda b=b: V(f"v_mov_b32 v{L1(b)}, v{vM+b}", L1(b), [vM + b]))
                for b in range(5): smq.append(lambda b=b, sw=sw: A.valu(f"{sw} v{vM+b}, v{L1(b)}", [vM + b, L1(b)], [vM + b, L1(b)], kind="perm"))
                for b in range(5): smq.append(lambda b=b: V(f"v_max_f32 v{vM+b}, v{vM+b}, v{L1(b)}", vM + b, [vM + b, L1(b)]))
            for b in range(5): smq.append(lambda b=b: V(f"v_mul_f32 v{NM1(b)}, s{sNC}, v{vM+b}", NM1(b), [vM + b]))
            for kt in range(4):
                for b in range(5):
                    r = acc_s(kt, b)
                    for e in range(4): smq.append(lambda x=r+e, b=b: V(f"v_fma_f32 v{x}, v{x}, s{sC}, v{NM1(b)}", x, [x, NM1(b)]))
                    for e in range(4): smq.append(lambda x=r+e: A.valu(f"v_exp_f32 v{x}, v{x}", [x], [x], kind="trans"))
                    if kt == 0:
                        smq.append(lambda r=r, b=b: V(f"v_add_f32 v{L1(b)}, v{r}, v{r+1}", L1(b), [r, r + 1]))
                        rest = (2, 3)
                    else: rest = (0, 1, 2, 3)
                    for e in rest: smq.append(lambda x=r+e, b=b: V(f"v_add_f32 v{L1(b)}, v{L1(b)}, v{x}", L1(b), [L1(b), x]))
        def unit(u):
            jj, kt = units[u]
            par = u & 1
            nxt = u + 1 < 32
            last_in_pass = (kt & 3) == 3
            for p in range(10):
                s, b = divmod(p, 5)
                if p == 0 and cfg.fairs and not shared and u % cfg.fairs == 0: A.salu(f"s_setprio {3 - (u // cfg.fairs) % 4}")
                if nxt and p == 0:
                    if shared:
                        if u & 1:
                            need(("K", (u + 1) // 2))
                            A.wait_lgkm_tag(("rk", u))
                            if "nobar" not in cfg.hack: A.barrier()
                            release(("K", u // 2))
                    else:
                        need(("K", u + 1))
                A.mfma(acc_s(kt, b), A_s(par, s), B_s(s, b), czero=(jj == 0 and s == 0))
                if nxt and p < 2: k_read(u + 1, p)
                if (kt & 3) == 2 and p == 9 and u + 2 < 32: set_qr(units[u + 2][0])
                if last_in_pass and nxt:
                    A.ds_read("ds_read_b128", B_s(s, b), 4, vQR, (s * 5 + b) * 1024)
                if nxt and p == cfg.s_rel_pos and not shared:
                    A.wait_lgkm_tag(("rk", u + 1))
                    release(("K", u + 1))
                if p >= 2: pump(side, cfg.npump)
                if blk == 1 and u == cfg.stS and not kpreg: self.store_po_cond(p // 5, p % 5, cfg.po_flags)
                if p >= 4 or u > 16: pump(smq, cfg.sm_per)
            if u == 17 and "hx" in cfg.hack:
                flush(smq)
                for i in range(40): V(f"v_mov_b32 v{vT1}, v{vT1}", vT1, [vT1])
            if jj == 3: q_max(kt)
            if u == 15 and not ("nosm1" in cfg.hack): q_round1()
        u0 = 0
        if cfg.kpf and not shared:
            import copy
            u0 = 12
            assert 6 + cfg.kpf - 1 <= u0
            flush(side)
            def snap(): return (list(A.vm), list(A.lgkm), dict(A.vw), dict(A.mfma_c_read), dict(A.store_data), [list(q) for q in slotq], set(issued), self.m0slot)
            sv = snap()
            A.salu(f"s_cmp_lg_u32 s{sPH}, 0")
            A.salu("s_cbranch_scc1 L_snorm")
            for i in range(cfg.kpf): kpreg[6 + i] = ACC + 100 + 8 * i
            for u in range(u0): unit(u)
            flush(side); assert not smq
            end1 = ([t for t, _ in A.vm], [d for _, d in A.lgkm], [list(q) for q in slotq])
            A.salu("s_branch L_sjoin")
            A.label("L_snorm")
            kpreg.clear()
            A.vm, A.lgkm, A.vw, A.mfma_c_read, A.store_data = sv[0], sv[1], {}, {}, {}
            for q, l in zip(slotq, sv[5]): q.clear(); q.extend(l)
            issued.clear(); issued.update(sv[6]); self.m0slot = None
            for u in range(u0): unit(u)
            flush(side); assert not smq
            end2 = ([t for t, _ in A.vm], [d for _, d in A.lgkm], [list(q) for q in slotq])
            assert end1 == end2, (end1, end2)
            A.label("L_sjoin")
            self.m0slot = None
        for u in range(u0, 32): unit(u)
        flush(side); flush(smq)
        if cfg.fairs and not shared: A.salu("s_setprio 0")
        self.stamp(nm + "Sdone")
        ML = lambda b: 176 + 2 * b
        NMC = lambda b: 186 + 2 * b
        LS = lambda b: 196 + 2 * b
        TT = lambda b: 206 + b
        def xl_reduce(src, dst, op):
            for b in range(5): V(f"v_mov_b32 v{TT(b)}, v{src(b)}", TT(b), [src(b)])
            for b in range(5): A.valu(f"v_permlane32_swap_b32 v{src(b)}, v{TT(b)}", [src(b), TT(b)], [src(b), TT(b)], kind="perm")
            for b in range(5): V(f"{op} v{src(b)}, v{src(b)}, v{TT(b)}", src(b), [src(b), TT(b)])
            for b in range(5): V(f"v_mov_b32 v{TT(b)}, v{src(b)}", TT(b), [src(b)])
            for b in range(5): A.valu(f"v_permlane16_swap_b32 v{src(b)}, v{TT(b)}", [src(b), TT(b)], [src(b), TT(b)], kind="perm")
            for b in range(5): V(f"{op} v{dst(b)}, v{src(b)}, v{TT(b)}", dst(b), [src(b), TT(b)])
        xl_reduce(lambda b: vM + b, ML, "v_max_f32")
        for b in range(5): V(f"v_mul_f32 v{NMC(b)}, s{sNC}, v{ML(b)}", NMC(b), [ML(b)])
        for b in range(5): V(f"v_sub_f32 v{NM1(b)}, v{NMC(b)}, v{NM1(b)}", NM1(b), [NMC(b), NM1(b)])
        for b in range(5): A.valu(f"v_exp_f32 v{NM1(b)}, v{NM1(b)}", [NM1(b)], [NM1(b)], kind="trans")
        for kt in (range(4, 5) if "nosm" in cfg.hack else range(4, 8)):
            for b in range(5):
                r = acc_s(kt, b)
                for h in range(2):
                    x = r + 2 * h
                    A.valu(f"v_pk_fma_f32 v[{x}:{x+1}], v[{x}:{x+1}], s[{sC}:{sC+1}], v[{NMC(b)}:{NMC(b)+1}] op_sel_hi:[1,0,0]",
                           [x, x + 1], [x, x + 1, NMC(b)])
            for b in range(5):
                r = acc_s(kt, b)
                for e in range(4):
                    A.valu(f"v_exp_f32 v{r+e}, v{r+e}", [r + e], [r + e], kind="trans")
            for b in range(5):
                r = acc_s(kt, b); l = LS(b)
                if kt == 4:
                    A.valu(f"v_pk_add_f32 v[{l}:{l+1}], v[{r}:{r+1}], v[{r+2}:{r+3}]", [l, l + 1], rng(r, 4))
                else:
                    A.valu(f"v_pk_add_f32 v[{l}:{l+1}], v[{l}:{l+1}], v[{r}:{r+1}]", [l, l + 1], [l, l + 1, r, r + 1])
            if kt > 4:
                for b in range(5):
                    r = acc_s(kt, b); l = LS(b)
                    A.valu(f"v_pk_add_f32 v[{l}:{l+1}], v[{l}:{l+1}], v[{r+2}:{r+3}]", [l, l + 1], [l, l + 1, r + 2, r + 3])
        for b in range(5): V(f"v_add_f32 v{LS(b)}, v{LS(b)}, v{LS(b)+1}", LS(b), [LS(b), LS(b) + 1])
        for b in range(5): V(f"v_fmac_f32 v{LS(b)}, v{L1(b)}, v{NM1(b)}", LS(b), [LS(b), L1(b), NM1(b)])
        xl_reduce(LS, lambda b: ML(b) + 1, "v_add_f32")
        assert ("SCR", 0) in avail
        so = phys["SCR", 0] * 2048
        A.salu("s_mov_b64 exec, 0xffff")
        for b in range(5):
            A.ds_write("ds_write_b64", vSW, ML(b), 2, so + b * 128)
        A.salu("s_mov_b64 exec, -1")
        if shared: need(("V", 0))
        A.wait_lgkm_all()
        self.bar(nm + "B5")
        if shared:
            release(("K", 15)); flush(side)
        RB = lambda b: [160, 168, 176, 196, 204][b]
        for b in range(5):
            for jj in range(4):
                A.ds_read("ds_read_b64", RB(b) + 2 * jj, 2, vSR, jj * RINGSZ + so + b * 128)
        MX = lambda b: vM + b
        for b in range(5):
            r = RB(b)
            V(f"v_max3_f32 v{MX(b)}, v{r}, v{r+2}, v{r+4}", MX(b), [r, r + 2, r + 4])
            V(f"v_max_f32 v{MX(b)}, v{MX(b)}, v{r+6}", MX(b), [MX(b), r + 6])
            V(f"v_mul_f32 v{MX(b)}, s{sNC}, v{MX(b)}", MX(b), [MX(b)])
            for jj in range(4):
                V(f"v_fma_f32 v{r+2*jj}, v{r+2*jj}, s{sC}, v{MX(b)}", r + 2 * jj, [r + 2 * jj, MX(b)])
            V(f"v_sub_f32 v{NMC(b)}, v{MX(b)}, v{NMC(b)}", NMC(b), [MX(b), NMC(b)])
        for b in range(5):
            r = RB(b)
            for jj in range(4):
                A.valu(f"v_exp_f32 v{r+2*jj}, v{r+2*jj}", [r + 2 * jj], [r + 2 * jj], kind="trans")
            A.valu(f"v_exp_f32 v{NMC(b)}, v{NMC(b)}", [NMC(b)], [NMC(b)], kind="trans")
        for b in range(5):
            r = RB(b)
            V(f"v_mul_f32 v{MX(b)}, v{r}, v{r+1}", MX(b), [r, r + 1])
            for jj in range(1, 4):
                V(f"v_fmac_f32 v{MX(b)}, v{r+2*jj}, v{r+2*jj+1}", MX(b), [MX(b), r + 2 * jj, r + 2 * jj + 1])
        for b in range(5):
            A.valu(f"v_rcp_f32 v{MX(b)}, v{MX(b)}", [MX(b)], [MX(b)], kind="trans")
        for b in range(5):
            V(f"v_mul_f32 v{MX(b)}, v{MX(b)}, v{NMC(b)}", MX(b), [MX(b), NMC(b)])
        for b in range(5):
            V(f"v_mul_f32 v{NMC(b)}, v{MX(b)}, v{NM1(b)}", NMC(b), [MX(b), NM1(b)])
        if shared:
            for s in range(2): V(f"v_add_u32 v{vKR+s}, s{sGR}, v{vKR+s}", vKR + s, [vKR + s])
            V(f"v_subrev_u32 v{vTR}, s{sGR}, v{vTR}", vTR, [vTR])
        for a in range(1, 4): V(f"v_xor_b32 v{vTR+a}, {a << 5}, v{vTR}", vTR + a, [vTR])
        prefetch_A("V", sh=shared)
        def writeP(i, b, tag=None):
            A.ds_write("ds_write_b128", vPW, acc_s(2 * i, b), 4, (i & 1) * 20480 + b * 1024, tag=tag)
        for i in range(2):
            for b in range(5):
                r0 = acc_s(2 * i, b); r1 = acc_s(2 * i + 1, b); f = NMC(b)
                for x in (r0, r0 + 2, r1, r1 + 2):
                    A.valu(f"v_pk_mul_f32 v[{x}:{x+1}], v[{x}:{x+1}], v[{f}:{f+1}] op_sel_hi:[1,0]", [x, x + 1], [x, x + 1, f])
                cvt(r0, r0, r0 + 1); cvt(r0 + 1, r0 + 2, r0 + 3); cvt(r0 + 2, r1, r1 + 1); cvt(r0 + 3, r1 + 2, r1 + 3)
                writeP(i, b)
        if "hx" in cfg.hack:
            for i in range(160): V(f"v_mov_b32 v{vT1}, v{vLin0}", vT1, [vLin0])
        A.wait_lgkm_all()
        self.bar(nm + "B6")
        release(("SCR", 0))
        for u in range(1, 4): vq.append(lambda u=u: V(f"v_xor_b32 v{vXR+u}, {u << 6}, v{vXR}", vXR + u, [vXR]))
        for u in range(2): vq.append(lambda u=u: V(f"v_add_u32 v{vXRh+u}, 61440, v{vXR+u}", vXRh + u, [vXR + u]))
        vq.append(lambda: V(f"v_add_u32 v{vWQ+1}, {16*8192-1024}, v{vWQ}", vWQ + 1, [vWQ]))
        vq.append(lambda: V(f"v_add_u32 v{vWO+1}, {8*896-1024}, v{vWO}", vWO + 1, [vWO]))
        vq.append(lambda: V(f"v_add_u32 v{vLin1}, {BREG}, v{vLin0}", vLin1, [vLin0]))
        def q_pack(i):
            for b in (range(0) if "nopack" in cfg.hack else range(5)):
                r0 = acc_s(2 * i, b); r1 = acc_s(2 * i + 1, b)
                for x in rng(r0, 4) + rng(r1, 4):
                    vq.append(lambda x=x, b=b: V(f"v_mul_f32 v{x}, v{x}, v{MX(b)}", x, [x, MX(b)]))
                for (d, x) in ((r0, r0), (r0 + 1, r0 + 2), (r0 + 2, r1), (r0 + 3, r1 + 2)):
                    vq.append(lambda d=d, x=x: cvt(d, x, x + 1))
        q_pack(2)
        def q_write(i):
            for b in range(5): slow.append(lambda b=b: writeP(i, b, tag=("pw", i)))
        def at4():
            flush(vq); q_write(2); q_pack(3)
        def at8():
            q_write(3)
            if cfg.early:
                A.rfl(22, vQR)
                A.nop(2)
        def read_p(ks, b, dst):
            A.ds_read("ds_read_b128", dst, 4, vLinG, ((ks & 7) * 5 + b) * 1024)
        for b in range(5): read_p(0, b, B_tr(b))
        if cfg.early: A.bload(vQR, 1, vT1, 8, "0", flags="sc1", tag="chk")
        if not shared:
            release(("V", 0)); release(("V", 1))
        BXP = ACC + 140
        xq = deque((pair, t) for pair in range(2) for t in range(5))
        xs = [int(v) for v in cfg.xsplit.split(",")]
        xp = [int(v) for v in cfg.xpos.split(",")]
        def xl(n):
            for _ in range(n): side.append(lambda e=xq.popleft(): (xdone.add(e), (self.x_load_c if cfg.cond else self.x_load)(*e)))
        xdone = set()
        def pend_x(): return [(pair, t) for pair in range(2) for t in range(5) if (pair, t) not in xdone]
        xk = [int(v) for v in cfg.xk.split(",")] if cfg.xk else []
        def ex_p(b, s):
            if s == 12: read_p(15, b, BXP + 4 * b)
            if b == 2 and s in xk: xl(10 // len(xk))
        for s in range(14):
            kstep(s & 1, s == 0, ("V", s + 1, shared), lambda b, s=s: read_p(s + 1, b, B_tr(b)),
                  cur_sh=(("V", s) if shared else None), barrier=(s in (4, 8)),
                  after={4: at4, 8: at8}.get(s), pub={7: ("pw", 2), 11: ("pw", 3)}.get(s),
                  extra=(lambda b, s=s: ex_p(b, s)), label=("V", s))
        def el(gs):
            L = []
            for g in gs:
                r = ACC + 80 + 4 * g
                L += [f"s_add_u32 s{sT0}, s20, {g * 71680}",
                      f"buffer_load_dwordx4 v[{r}:{r+3}], v{vLin0}, s[16:19], s{sT0} offen sc1"]
            self.cond_block("s_cmp_eq_u32 s22, 8", L)
        def done_o(b):
            for i in range(2): pair_cvt(i, b, vq)
            for i in range(2):
                r0 = ACC + ((2 * i) * 5 + b) * 4
                vq.append(lambda r0=r0, i=i: A.ds_write("ds_write_b128", vOW, r0, 4, (i * 5 + b) * 1024))
        hooks = {}
        if not xk:
            for n, p in zip(xs, xp): hooks[p + 9] = (lambda n=n: xl(n))
        def o_h5():
            if shared:
                for a in range(4): V(f"v_add_u32 v{vTR+a}, s{sGR}, v{vTR+a}", vTR + a, [vTR + a])
        hooks[5] = o_h5
        hooks[32] = lambda: prefetch_A("WO")
        self.stamp(nm + "Pj")
        joint(("V", 15, shared), BXP, done_o, cur_sh=(("V", 14) if shared else None), hooks=hooks)
        A.wait_lgkm_all()
        release(("WO", 0)); release(("WO", 1))
        self.bar(nm + "B10")
        if cfg.w7:
            assert cfg.cond and not cfg.early
            A.salu(f"s_cmp_lg_u32 s{sW}, 7")
            A.salu(f"s_cbranch_scc1 L_o{blk}")
            save = (list(A.vm), list(A.lgkm), dict(A.vw), self.m0slot)
            for e in pend_x(): self.x_load_c(*e)
            A.raw("s_waitcnt vmcnt(0)")
            A.vm = []
            for n in range(5):
                for pc in range(2): self.slot_dma("WQ", n & 1, ("w7", n), n, pc, blk)
            A.barrier()
            for t in range(5): self.x_write_c(0, t)
            A.raw("s_waitcnt vmcnt(0) lgkmcnt(0)")
            A.barrier()
            for y in range(2):
                for a in range(4): tr_read(0, a, y, y * 2048, None)
            for b in range(5): read_x(0, b, B_tr(b))
            A.wait_lgkm_all()
            for n in range(5, 7):
                for pc in range(2): self.slot_dma("WQ", n & 1, ("w7", n), n % 5, pc, blk)
            A.salu(f"s_branch L_oend{blk}")
            A.label(f"L_o{blk}")
            A.vm, A.lgkm, A.vw, self.m0slot = save
        def read_o(ks, b):
            A.ds_read("ds_read_b128", B_tr(b), 4, vLin0 if ks < 8 else vLin1, ((ks & 7) * 5 + b) * 1024)
        for b in range(5): read_o(0, b)
        def mid_o():
            for t in range(5): slow.append(lambda t=t: (self.x_write_c if cfg.cond else self.x_write)(0, t))
        def tail_po(b):
            for i in range(2):
                r0 = ACC + ((2 * i) * 5 + b) * 4; r1 = ACC + ((2 * i + 1) * 5 + b) * 4
                d = ACC + 120 + (i * 5 + b) * 4
                for e, x in enumerate((r0, r0 + 2, r1, r1 + 2)):
                    vq.append(lambda d=d + e, x=x: cvt(d, x, x + 1))
        st["pr"] = 0
        eblk = deque()
        if cfg.early:
            D = ACC + 80; S_ = ACC + 112; t0_, t1_ = ACC + 140, ACC + 141
            for g in range(8):
                L = []
                for d in range(4):
                    src = D + 4 * g + d; lo = S_ + 2 * d
                    if g == 0:
                        L += [f"v_lshlrev_b32 v{lo}, 16, v{src}", f"v_and_b32 v{lo+1}, 0xffff0000, v{src}"]
                    else:
                        L += [f"v_lshlrev_b32 v{t0_}, 16, v{src}", f"v_and_b32 v{t1_}, 0xffff0000, v{src}",
                              f"v_add_f32 v{lo}, v{lo}, v{t0_}", f"v_add_f32 v{lo+1}, v{lo+1}, v{t1_}"]
                eblk.append(L[:8]);
                if len(L) > 8: eblk.append(L[8:])
            L = [f"v_cvt_pk_bf16_f32 v{D+d}, v{S_+2*d}, v{S_+2*d+1}" for d in range(4)]
            L += [f"v_bfe_u32 v{t0_}, v{vLin0}, 4, 4", f"v_mul_u32_u24 v{t0_}, 1792, v{t0_}",
                  f"v_bfe_u32 v{t1_}, v{vLin0}, 8, 1", f"v_lshl_add_u32 v{t0_}, v{t1_}, 5, v{t0_}",
                  f"v_lshrrev_b32 v{t1_}, 9, v{vLin0}", f"v_lshl_add_u32 v{t0_}, v{t1_}, 4, v{t0_}",
                  f"v_permlane16_swap_b32 v{D}, v{D+2}", f"v_permlane16_swap_b32 v{D+1}, v{D+3}",
                  f"buffer_store_dwordx4 v[{D}:{D+3}], v{t0_}, s[12:15], s21 offen"]
            eblk.append(L)
        def ex_o(b, s):
            ep = [int(v) for v in cfg.epos.split(",")]
            n = 8 // len(ep)
            if cfg.early and b == 0 and s in ep: el(range(ep.index(s) * n, ep.index(s) * n + n))
            assert cfg.ecomp >= ep[-1] + 3
            if s >= cfg.ecomp and eblk: self.cond_block("s_cmp_eq_u32 s22, 8", eblk.popleft())
        for s in range(16):
            last = s == 15
            kstep(s & 1, s == 0, ("NWQ", 0, False) if last else ("WO", s + 1, False),
                  (lambda b: read_x(0, b, B_tr(b))) if last else (lambda b, s=s: read_o(s + 1, b)),
                  barrier=(s == 8), after=(mid_o if s == 8 else None), pub=(("xw", 0) if s == 13 else None),
                  tail=(tail_po if last else None), label=("WO", s), extra=(lambda b, s=s: ex_o(b, s)))
            if s == 14: assert not eblk
        flush(side)
        if cfg.w7: A.label(f"L_oend{blk}")
        A.salu(f"s_mov_b64 s[{sPO}:{sPO+1}], s[{sPOB(blk)}:{sPOB(blk)+1}]")
        A.salu(f"s_mov_b32 s{sPO+2}, 71680")
        assert sorted(q[0][1] for q in slotq) == [2, 3, 4, 5, 6] and all(len(q) == 1 for q in slotq)
        act = [("WQ", t[1]) if t[0] == "NWQ" else t for t, _ in A.vm]
        can = [t for t, _ in self.canon_vm]
        assert act == can[len(can) - len(act):], (act, can)
        actl = [d for _, d in A.lgkm]; canl = [d for _, d in can_l]
        assert actl == canl[len(canl) - len(actl):], (actl, canl)
        self.stamp(nm + "Odone")
        A.salu(f"s_add_u32 s{sPH}, s{sPH}, 1")
        A.salu(f"s_cmp_eq_u32 s{sPH}, 2")
        A.salu("s_cbranch_scc1 L_final")
        if blk == 1: A.salu("s_branch L_body0")

    def final(self):
        A = self.A; cfg = self.cfg
        A.label("L_final")
        A.vm = []; A.lgkm = []
        V = self.V
        if cfg.fuse: A.raw("s_load_dwordx4 s[4:7], s[0:1], 80")
        for i in range(2):
            for b in range(5): self.store_po(i, b, cfg.pof_flags)
        if "dbl" in cfg.hack:
            A.salu(f"s_add_u32 s{sPO}, s{sPO}, 0x3000000"); A.salu(f"s_addc_u32 s{sPO+1}, s{sPO+1}, 0")
            for i in range(2):
                for b in range(5): self.store_po(i, b, cfg.pof_flags)
        if cfg.early:
            A.raw("v_mov_b32 v1, s22"); A.raw("v_mov_b32 v2, s23")
            A.raw("s_mov_b64 exec, 1")
            A.raw("global_store_dword v2, v1, s[24:25]")
            A.raw("s_mov_b64 exec, -1")
        if cfg.fuse:
            R = A.raw
            BS = 256 * 71680
            V(f"v_lshrrev_b32 v2, 4, v{vLin0}", 2, [vLin0])
            V("v_and_b32 v4, 15, v2", 4, [2])
            V("v_mul_u32_u24 v4, 1792, v4", 4, [4])
            V("v_bfe_u32 v5, v2, 4, 1", 5, [2])
            V("v_lshl_add_u32 v4, v5, 5, v4", 4, [4, 5])
            V("v_lshrrev_b32 v5, 5, v2", 5, [2])
            V("v_lshl_add_u32 v4, v5, 4, v4", 4, [4, 5])
            R(f"s_lshl_b32 s20, s{sB}, 2")
            V("v_mov_b32 v2, s20", 2, [])
            V("v_mov_b32 v1, 1", 1, [])
            V("v_mov_b32 v3, 0", 3, [])
            R(f"s_mul_i32 s20, s{sB}, {8*71680}")
            R("s_add_u32 s16, s24, s20"); R("s_addc_u32 s17, s25, 0"); R("s_and_b32 s17, s17, 0xffff")
            R(f"s_mov_b32 s18, {BS + 8*71680}"); R("s_mov_b32 s19, 0x20000")
            R(f"s_lshl_b32 s21, 1, s{sHG}")
            R("s_waitcnt vmcnt(0) lgkmcnt(0)")
            R("s_mov_b32 s8, s6"); R("s_and_b32 s9, s7, 0xffff"); R("s_mov_b32 s10, 256"); R("s_mov_b32 s11, 0x20000")
            R("s_mov_b32 s12, s4"); R("s_and_b32 s13, s5, 0xffff"); R(f"s_mov_b32 s14, {32*80*896*2}"); R("s_mov_b32 s15, 0x20000")
            R("s_barrier")
            self.stamp("drain")
            R(f"s_cmp_lg_u32 s{sW}, 0")
            R("s_cbranch_scc1 L_wait")
            R("s_mov_b64 exec, 1")
            R("buffer_atomic_add v1, v2, s[8:11], 0 offen sc0 sc1")
            R("s_waitcnt vmcnt(0)")
            R("v_readfirstlane_b32 s20, v1")
            R("s_nop 3")
            R("s_lshr_b32 s23, s20, 8"); R("s_or_b32 s23, s23, s21")
            R("s_and_b32 s20, s20, 0xff"); R("s_cmp_eq_u32 s20, 7")
            R("s_cbranch_scc1 L_pub")
            R("s_mov_b32 s23, s21")
            R(f"s_mov_b32 s22, {cfg.spin}")
            A.label("L_poll")
            if cfg.slp: R(f"s_sleep {cfg.slp}")
            R(f"buffer_load_dword v1, v2, s[8:11], 0 offen {cfg.pollflags}")
            R("s_waitcnt vmcnt(0)")
            R("v_readfirstlane_b32 s20, v1")
            R("s_nop 3")
            R("s_and_b32 s20, s20, 0xff"); R("s_cmp_eq_u32 s20, 8")
            R("s_cbranch_scc1 L_pub")
            R("s_sub_u32 s22, s22, 1"); R("s_cmp_lg_u32 s22, 0")
            R("s_cbranch_scc1 L_poll")
            R("s_lshl_b32 s20, s21, 8")
            R("v_mov_b32 v1, s20")
            R("buffer_atomic_or v1, v2, s[8:11], 0 offen sc0 sc1")
            R("s_waitcnt vmcnt(0)")
            R("v_readfirstlane_b32 s20, v1")
            R("s_nop 3")
            R("s_and_b32 s20, s20, 0xff"); R("s_cmp_eq_u32 s20, 8")
            R("s_cselect_b32 s23, s21, 0")
            A.label("L_pub")
            R("v_mov_b32 v1, s23")
            R("ds_write_b32 v3, v1")
            R("s_waitcnt lgkmcnt(0)")
            R("s_mov_b64 exec, -1")
            A.label("L_wait")
            R("s_barrier")
            R("ds_read_b32 v1, v3")
            R("s_waitcnt lgkmcnt(0)")
            R("v_readfirstlane_b32 s23, v1")
            R("s_nop 3")
            self.stamp("go")
            A.label("L_share")
            R("s_cmp_eq_u32 s23, 0")
            R("s_cbranch_scc1 L_shares_done")
            R("s_ff1_i32_b32 s20, s23")
            R("s_bitset0_b32 s23, s20")
            R(f"s_lshl_b32 s22, s{sW}, 3"); R("s_add_u32 s22, s22, s20")
            A.vm = []; A.lgkm = []; A.vw = {}
            for r in range(3):
                so = 28 + r
                R(f"s_add_u32 s32, s22, {64*r}")
                R("s_cmp_ge_u32 s32, 70"); R("s_cselect_b32 s33, 1, 0")
                R("s_mul_i32 s34, s33, 70"); R("s_sub_u32 s34, s32, s34")
                R("s_mul_i32 s35, s34, 205"); R("s_lshr_b32 s35, s35, 10")
                R("s_mul_i32 s36, s35, 5"); R("s_sub_u32 s36, s34, s36")
                R(f"s_mul_i32 s37, s{sB}, 80"); R("s_lshl_b32 s36, s36, 4"); R("s_add_u32 s37, s37, s36")
                R("s_mul_i32 s37, s37, 1792"); R("s_mul_i32 s36, s33, 896"); R("s_add_u32 s37, s37, s36")
                R("s_lshl_b32 s35, s35, 6"); R(f"s_add_u32 s{so}, s37, s35")
                R(f"s_mul_i32 s33, s33, {BS}"); R("s_lshl_b32 s34, s34, 10"); R("s_add_u32 s33, s33, s34")
                if r == 2:
                    R("s_cmp_lt_u32 s32, 140")
                    R("s_cselect_b32 s33, s33, 0x40000000"); R(f"s_cselect_b32 s{so}, s{so}, 0x40000000")
                for g in range(8):
                    A.bload(32 + (r * 8 + g) * 4, 4, vLin0, 16, 33, flags=cfg.shflags)
                    if g < 7: R("s_add_u32 s33, s33, 71680")
            for r in range(3):
                for g in range(8):
                    src = 32 + (r * 8 + g) * 4
                    for d in range(4):
                        lo = 16 + 2 * d; hi = lo + 1
                        if g == 0:
                            V(f"v_lshlrev_b32 v{lo}, 16, v{src+d}", lo, [src + d])
                            V(f"v_and_b32 v{hi}, 0xffff0000, v{src+d}", hi, [src + d])
                        else:
                            V(f"v_lshlrev_b32 v6, 16, v{src+d}", 6, [src + d])
                            V(f"v_and_b32 v7, 0xffff0000, v{src+d}", 7, [src + d])
                            A.valu(f"v_pk_add_f32 v[{lo}:{lo+1}], v[{lo}:{lo+1}], v[6:7]", [lo, lo + 1], [lo, lo + 1, 6, 7])
                o = 8 + 4 * (r & 1)
                for d in range(4): V(f"v_cvt_pk_bf16_f32 v{o+d}, v{16+2*d}, v{17+2*d}", o + d, [16 + 2 * d, 17 + 2 * d])
                A.valu(f"v_permlane16_swap_b32 v{o}, v{o+2}", [o, o + 2], [o, o + 2], kind="perm")
                A.valu(f"v_permlane16_swap_b32 v{o+1}, v{o+3}", [o + 1, o + 3], [o + 1, o + 3], kind="perm")
                A.bstore(o, 4, 4, 12, 28 + r)
            A.nop(2)
            R("s_branch L_share")
            A.label("L_shares_done")
        if cfg.stamp:
            A.raw("s_waitcnt vmcnt(0)")
            self.stamp("end")
            A.salu("s_add_u32 s28, s24, 0x8000000")
            A.salu("s_addc_u32 s29, s25, 0")
            A.salu("s_and_b32 s29, s29, 0xffff")
            A.salu("s_mov_b32 s30, 0x100000")
            A.salu("s_mov_b32 s31, 0x20000")
            A.salu(f"s_lshl_b32 s{sT0}, s2, 3")
            A.salu(f"s_add_u32 s{sT0}, s{sT0}, s{sW}")
            A.salu(f"s_lshl_b32 s{sT0}, s{sT0}, 8")
            A.valu(f"v_lshrrev_b32 v0, 2, v{vLin0}", [0], [vLin0])
            A.bstore(vSTAMP, 1, 0, 28, sT0)
            open(cfg.path + ".stamps", "w").write(" ".join(self.stamps))
        if cfg.dbgspan:
            R = A.raw
            R("s_load_dwordx2 s[6:7], s[0:1], 88")
            R("s_waitcnt vmcnt(0)")
            R("s_memrealtime s[4:5]")
            R("s_waitcnt lgkmcnt(0)")
            R("s_mov_b32 s8, s6"); R("s_and_b32 s9, s7, 0xffff"); R("s_mov_b32 s10, 256"); R("s_mov_b32 s11, 0x20000")
            R("s_not_b32 s26, s26")
            R("v_mov_b32 v1, s26"); R("v_mov_b32 v2, s4"); R("v_mov_b32 v3, 0")
            R("s_mov_b64 exec, 1")
            R("buffer_atomic_umax v1, v3, s[8:11], 0 offen sc1")
            R("buffer_atomic_umax v2, v3, s[8:11], 0 offen offset:4 sc1")
        A.label("L_attn_done")
        A.raw("s_endpgm")


def gen_main(cfg):
    g = Gen(cfg)
    if "nomfma" in cfg.hack:
        om = g.A.mfma
        def fake(d, a, b, czero=False):
            g.A._mem_ready(rng(a, 4) + rng(b, 4))
        g.A.mfma = fake
    kn = NAME + "_kernel"
    g.A.label(kn)
    g.setup(); g.body(0); g.body(1); g.final()
    return kn, g.A


def gen_reduce(cfg):
    A = Asm()
    kn = "reduce_kernel"
    R = A.salu
    def V(text, w, r): A.valu(text, w if isinstance(w, list) else [w], r)
    A.label(kn)
    if cfg.span: A.raw("s_memrealtime s[28:29]")
    rw = cfg.rw
    R(f"s_cmp_ge_u32 s2, {4480 // rw}")
    R("s_cbranch_scc1 L_red_done")
    R("s_load_dwordx2 s[4:5], s[0:1], 80")
    R("s_load_dwordx2 s[6:7], s[0:1], 96")
    V("v_lshrrev_b32 v1, 6, v0", 1, [0])
    V("v_and_b32 v2, 63, v0", 2, [0])
    A.rfl(8, 1)
    V("v_lshlrev_b32 v3, 4, v2", 3, [2])
    A.nop(2)
    R(f"s_mul_i32 s9, s2, {rw}"); R("s_add_u32 s9, s9, s8")
    R(f"s_mul_hi_u32 s10, s9, {(1 << 32) // 70 + 1}")
    R("s_mul_i32 s11, s10, 70"); R("s_sub_u32 s11, s9, s11")
    R("s_and_b32 s12, s10, 31")
    R("s_lshr_b32 s13, s10, 5")
    R("s_xor_b32 s14, s12, s13"); R("s_not_b32 s14, s14"); R("s_and_b32 s14, s14, 1")
    R("s_lshl_b32 s15, s12, 6"); R("s_add_u32 s15, s15, s11"); R("s_lshl_b32 s15, s15, 2"); R("s_add_u32 s15, s15, 0x4000000")
    A.raw("s_waitcnt lgkmcnt(0)")
    if cfg.early:
        R("s_cmp_eq_u32 s13, 0"); R("s_cbranch_scc1 L_red_go")
        R("s_cmp_ge_u32 s11, 64"); R("s_cbranch_scc1 L_red_go")
        R("s_load_dword s26, s[6:7], s15")
        A.raw("s_waitcnt lgkmcnt(0)")
        R("s_cmp_eq_u32 s26, 8"); R("s_cbranch_scc1 L_red_end")
        A.label("L_red_go")
    R("s_lshl_b32 s24, s14, 5"); R("s_add_u32 s24, s24, s12"); R(f"s_mul_i32 s24, s24, {8*71680}")
    R("s_add_u32 s16, s6, s24"); R("s_addc_u32 s17, s7, 0"); R("s_and_b32 s17, s17, 0xffff")
    R(f"s_mov_b32 s18, {8*71680}"); R("s_mov_b32 s19, 0x20000")
    R("s_lshl_b32 s15, s11, 10")
    for g in range(8):
        A.bload(16 + g * 4, 4, 3, 16, 15, flags=cfg.rd_flags)
        if g < 7: R("s_add_u32 s15, s15, 71680")
    R("s_mov_b32 s20, s4"); R("s_and_b32 s21, s5, 0xffff"); R(f"s_mov_b32 s22, {32*80*896*2}"); R("s_mov_b32 s23, 0x20000")
    R("s_mul_i32 s25, s11, 205"); R("s_lshr_b32 s25, s25, 10")
    R("s_mul_i32 s26, s25, 5"); R("s_sub_u32 s26, s11, s26")
    R("s_mul_i32 s24, s12, 80"); R("s_lshl_b32 s26, s26, 4"); R("s_add_u32 s24, s24, s26"); R("s_mul_i32 s24, s24, 1792")
    R("s_mul_i32 s26, s14, 896"); R("s_add_u32 s24, s24, s26"); R("s_lshl_b32 s25, s25, 6"); R("s_add_u32 s24, s24, s25")
    V("v_and_b32 v4, 15, v2", 4, [2])
    V("v_mul_u32_u24 v4, 1792, v4", 4, [4])
    V("v_bfe_u32 v5, v2, 4, 1", 5, [2])
    V("v_lshl_add_u32 v4, v5, 5, v4", 4, [4, 5])
    V("v_lshrrev_b32 v5, 5, v2", 5, [2])
    V("v_lshl_add_u32 v4, v5, 4, v4", 4, [4, 5])
    for g in range(8):
        src = 16 + g * 4
        for d in range(4):
            lo = 48 + 2 * d; hi = lo + 1
            if g == 0:
                V(f"v_lshlrev_b32 v{lo}, 16, v{src+d}", lo, [src + d])
                V(f"v_and_b32 v{hi}, 0xffff0000, v{src+d}", hi, [src + d])
            else:
                V(f"v_lshlrev_b32 v6, 16, v{src+d}", 6, [src + d])
                V(f"v_and_b32 v7, 0xffff0000, v{src+d}", 7, [src + d])
                A.valu(f"v_pk_add_f32 v[{lo}:{lo+1}], v[{lo}:{lo+1}], v[6:7]", [lo, lo + 1], [lo, lo + 1, 6, 7])
    for d in range(4): V(f"v_cvt_pk_bf16_f32 v{8+d}, v{48+2*d}, v{49+2*d}", 8 + d, [48 + 2 * d, 49 + 2 * d])
    A.valu("v_permlane16_swap_b32 v8, v10", [8, 10], [8, 10], kind="perm")
    A.valu("v_permlane16_swap_b32 v9, v11", [9, 11], [9, 11], kind="perm")
    A.bstore(8, 4, 4, 20, 24)
    A.label("L_red_end")
    if cfg.span:
        A.raw("s_waitcnt vmcnt(0)")
        A.raw("s_memrealtime s[30:31]")
        A.raw("s_waitcnt lgkmcnt(0)")
        A.raw("v_mov_b32 v8, s28"); A.raw("v_mov_b32 v9, s30"); A.raw("v_mov_b32 v10, 0")
        R("s_add_u32 s16, s6, 0x8100000"); R("s_addc_u32 s17, s7, 0"); R("s_and_b32 s17, s17, 0xffff")
        R("s_mov_b32 s18, 0x100000"); R("s_mov_b32 s19, 0x20000"); R("s_lshl_b32 s15, s9, 3")
        A.raw("buffer_store_dwordx2 v[8:9], v10, s[16:19], s15 offen")
    A.label("L_red_done")
    A.raw("s_endpgm")
    return kn, A


def build(cfg, path):
    cfg.path = path
    hdr = open("cdna_kernels/" + NAME + ".s.ref").read().split("\n")
    head = [l for l in hdr if l.startswith(";") and "@launch" not in l and "Override launch" not in l and "grid=ceil" not in l]
    k1, A1 = gen_main(cfg)
    ks = [(k1, A1)]
    out = "\n".join(head) + "\n"
    if cfg.listfmt: out += f"; @launch kernel={k1} grid=(256,1,1) block=(512,1,1) lds=163840\n"
    else: out += f"; @launch grid=(256,1,1) block=(512,1,1) lds=163840\n"
    if not cfg.fuse:
        k2, A2 = gen_reduce(cfg)
        ks.append((k2, A2))
        out += f"; @launch kernel={k2} grid=({4480 // cfg.rw},1,1) block=({64 * cfg.rw},1,1) lds=0\n"
    out += '.amdgcn_target "amdgcn-amd-amdhsa--gfx950"\n.text\n'
    for k, A in ks:
        out += f".globl {k}\n.p2align 8\n.type {k},@function\n" + A.text()
    out += '.section .rodata,"a"\n.p2align 6\n'
    out += kernel_desc(k1, 256, 102, 256)
    if not cfg.fuse: out += ".p2align 6\n" + kernel_desc(k2, 56, 32, 56)
    open(path, "w").write(out)
    print(path, "mfma", A1.nmfma, "lines", len(A1.lines))

if __name__ == "__main__":
    cfg = Cfg()
    for a in sys.argv[2:]:
        k, v = a.split("=")
        setattr(cfg, k, type(getattr(cfg, k))(v))
    if cfg.span: cfg.stamp = 1; cfg.rt = 1
    build(cfg, sys.argv[1] if len(sys.argv) > 1 else "cdna_kernels/" + NAME + ".s")
```

```python
import sys, struct
from collections import deque
from asmlib import *

NAME = "concat_heads__gqa_block_cached__mha_block_cached__near_ridge"

class Cfg:
    R = 5
    kv_flags = "nt"
    w_flags = ""
    x_flags = ""
    po_flags = "sc1"
    pof_flags = "sc1"
    rd_flags = ""
    rel_pos = 8
    s_rel_pos = 5
    stamp = 0
    order = 10
    pre = 0
    krot = 1
    kpA = 0
    kpB = 0
    kp_per = 2
    kp_start = 0
    relx = 5
    ypos = 10
    npump = 2
    prio = 0
    stpos = 'b1'
    tlb = 0
    only = 0
    rt = 0
    fuse = 0
    rw = 2
    spin = 3000
    slp = 0
    shflags = 'sc1'
    pollflags = 'sc0 sc1'
    listfmt = 1
    span = 0
    fair = 1
    fairs = 0
    kst = ''
    xpos = '0,12,24'
    st0 = 1
    pro = 1
    cond = 1
    early = 0
    w7 = 1
    dbgspan = 0
    kpf = 7
    minor = 8
    touch = ''
    tsh = 16
    qrm = -1
    qrs = 0
    stS = -1
    stA = '0,2'
    stB = '0,2'
    xk = ''
    x2f = ''
    noearly = 0
    epos = '4,8'
    ecomp = 11
    kpat = '2,5,8,11'
    kpn = 4
    kpbar = 1
    hack = ''
    dbgstart = 0
    tlbk = 0
    xsplit = '4,4,2'
    late = 1
    sm_per = 2

def f32bits(x):
    return struct.unpack("<I", struct.pack("<f", x))[0]

BREG = 40960
RING0 = 81920
RINGSZ = 10240

ACC = 0
FR = 160
def A_tr(par, a): return FR + par * 16 + a * 4
def B_tr(b): return FR + 32 + 4 * b
def B_s(s, b): return FR + (s * 5 + b) * 4
def A_s(par, s): return FR + 40 + par * 8 + s * 4
_v = 216
def _alloc(n=1):
    global _v
    r = _v; _v += n
    assert _v <= 256
    return r
vKR = _alloc(2); vK = _alloc(2); vV = _alloc(2); vX = _alloc(2)
vLinG = _alloc(); vQR = _alloc(); vSW = _alloc(); vSR = _alloc(); vPW = _alloc(); vRW = _alloc(); vLin0 = _alloc()
vQW = _alloc(); vOW = _alloc()
vTR = _alloc(4); vXR = _alloc(4); vXRh = _alloc(2); vWQ = _alloc(2); vWO = _alloc(2); vLin1 = _alloc()
vM = _alloc(5); vT0 = _alloc(); vT1 = _alloc()
BORROW = [vTR + 1, vTR + 2, vTR + 3, vXR + 1, vXR + 2, vXR + 3, vXRh, vXRh + 1, vWQ + 1, vWO + 1, vLin1]
assert _v <= 255
vSTAMP = 255

sX = 28; sWQ = 32; sNX = 36; sNWQ = 40; sPO = 44
def sKV(blk, k): return 48 + blk * 12 + k * 4
def sPOB(blk): return 72 + blk * 2
sRING = 76; sOFF = 77; sC = 78
sNC = 80; sXM0 = 81; sPOW = 82; sW = 83; sJ = 84; sG = 85; sB = 86; sHG = 87
sT0 = 88; sT1 = 89; sT2 = 90; sT3 = 91; sPH = 92; sGR = 93
sCOL = 94
sWQK = 98; sWOK = 99; sSTI = 100; sSIG = 101


class Gen:
    def __init__(self, cfg):
        self.cfg = cfg
        self.A = Asm()
        self.stamps = []

    def V(self, text, w, r):
        self.A.valu(text, w if isinstance(w, list) else [w], r)

    def stamp(self, name):
        if not self.cfg.stamp: return
        if self.cfg.span and name != "end": return
        A = self.A
        A.raw("s_memrealtime s[26:27]" if self.cfg.rt else "s_memtime s[26:27]")
        A.raw("s_waitcnt lgkmcnt(0)")
        A.lgkm = []
        A.raw(f"s_mov_b32 m0, s{sSTI}")
        A.raw(f"s_add_u32 s{sSTI}, s{sSTI}, 1")
        A.raw(f"s_min_u32 s{sSTI}, s{sSTI}, 62")
        A.raw(f"v_writelane_b32 v{vSTAMP}, s26, m0")
        self.m0slot = None
        self.stamps.append(name)

    def bar(self, name=None):
        self.A.barrier()
        if name: self.stamp(name)

    def setup(self):
        A = self.A; V = self.V; cfg = self.cfg
        if cfg.rt: A.raw("s_memrealtime s[70:71]")
        if cfg.dbgspan: A.raw("s_memrealtime s[26:27]")
        A.salu("s_cmp_ge_u32 s2, 256")
        A.salu("s_cbranch_scc1 L_attn_done")
        if cfg.only:
            A.salu(f"s_and_b32 s3, s2, {cfg.only}")
            A.salu("s_cbranch_scc1 L_attn_done")
        A.salu("s_load_dwordx16 s[4:19], s[0:1], 0")
        A.salu("s_load_dwordx4 s[20:23], s[0:1], 64")
        A.salu("s_load_dwordx2 s[24:25], s[0:1], 96")
        vL = 4; vG = 5; vQ = 6; vTmp = 7
        t1 = 1; t2 = 2; t3 = 3
        V(f"v_lshrrev_b32 v{vTmp}, 6, v0", vTmp, [0])
        V(f"v_and_b32 v{vL}, 63, v0", vL, [0])
        A.rfl(sW, vTmp)
        V(f"v_lshrrev_b32 v{vG}, 4, v{vL}", vG, [vL])
        V(f"v_and_b32 v{vQ}, 15, v{vL}", vQ, [vL])
        A.nop(2)
        A.salu(f"s_and_b32 s{sJ}, s{sW}, 3")
        A.salu(f"s_lshr_b32 s{sG}, s{sW}, 2")
        A.salu(f"s_lshr_b32 s{sB}, s2, 3")
        A.salu(f"s_and_b32 s{sHG}, s2, 7")
        A.salu(f"s_mul_i32 s{sRING}, s{sW}, {RINGSZ}")
        A.salu(f"s_add_u32 s{sRING}, s{sRING}, {RING0}")
        A.salu(f"s_mul_i32 s{sXM0}, s{sG}, 20480")
        A.salu(f"s_lshl_b32 s{sT0}, s{sJ}, 10")
        A.salu(f"s_add_u32 s{sXM0}, s{sXM0}, s{sT0}")
        V(f"v_and_b32 v{t1}, 7, v{vL}", t1, [vL])
        V(f"v_lshlrev_b32 v{t3}, 1, v{vG}", t3, [vG])
        V(f"v_xor_b32 v{t3}, v{t3}, v{t1}", t3, [t3, t1])
        V(f"v_lshlrev_b32 v{t3}, 4, v{t3}", t3, [t3])
        V(f"v_lshrrev_b32 v{t2}, 3, v{vL}", t2, [vL])
        A.salu(f"s_lshl_b32 s{sT0}, s{sJ}, 7")
        V(f"v_lshrrev_b32 v{vTmp}, 5, v{vL}", vTmp, [vL])
        V(f"v_lshlrev_b32 v{vTmp}, 3, v{vTmp}", vTmp, [vTmp])
        V(f"v_and_b32 v{vWQ}, 3, v{t2}", vWQ, [t2])
        V(f"v_add_u32 v{vTmp}, v{vTmp}, v{vWQ}", vTmp, [vTmp, vWQ])
        V(f"v_lshl_add_u32 v{vWQ}, v{vTmp}, 13, v{t3}", vWQ, [vTmp, t3])
        V(f"v_add_u32 v{vWQ}, s{sT0}, v{vWQ}", vWQ, [vWQ])
        V(f"v_add_u32 v{vWQ+1}, {16*8192-1024}, v{vWQ}", vWQ + 1, [vWQ])
        if cfg.qrm >= 0:
            A.salu(f"s_lshr_b32 s{sT3}, s{sB}, 1")
            A.salu(f"s_and_b32 s{sT3}, s{sT3}, {cfg.qrm}")
            A.salu(f"s_lshl_b32 s{sT3}, s{sT3}, {cfg.qrs}")
        elif cfg.krot == 2:
            A.salu(f"s_mul_i32 s{sT3}, s{sB}, 7")
            A.salu(f"s_lshr_b32 s{sT3}, s{sT3}, 4")
        elif cfg.krot:
            A.salu(f"s_lshr_b32 s{sT3}, s{sB}, 1")
            A.salu(f"s_min_u32 s{sT3}, s{sT3}, 13")
        else:
            A.salu(f"s_mov_b32 s{sT3}, 0")
        A.salu(f"s_lshl_b32 s{sWQK}, s{sT3}, 18")
        A.salu(f"s_sub_u32 s{sWQK}, s{sWQK}, 262144")
        A.salu(f"s_cselect_b32 s{sWQK}, {13*262144}, s{sWQK}")
        A.salu(f"s_lshl_b32 s{sT1}, s{sJ}, 2")
        A.salu(f"s_lshl_b32 s{sT2}, s{sG}, 8")
        A.salu(f"s_lshl_b32 s{sT3}, s{sT3}, 6")
        A.salu(f"s_add_u32 s{sT2}, s{sT2}, s{sT3}")
        V(f"v_add_u32 v8, s{sT1}, v{vG}", 8, [vG])
        V(f"v_xor_b32 v9, v8, v{vQ}", 9, [8, vQ])
        V(f"v_lshl_add_u32 v9, v9, 4, s{sT2}", 9, [9])
        V(f"v_mul_u32_u24 v8, 896, v8", 8, [8])
        for pair in range(2):
            if pair: V(f"v_add_u32 v9, 512, v9", 9, [9])
            V(f"v_subrev_u32 v10, 896, v9", 10, [9])
            V(f"v_min_u32 v10, v10, v9", 10, [10, 9])
            V(f"v_add_u32 v{vX+pair}, v8, v10", vX + pair, [8, 10])
        V(f"v_subrev_u32 v9, s{sT3}, v9", 9, [9])
        V(f"v_mov_b32 v10, 0x4000000", 10, [])
        V(f"v_cmp_gt_u32 vcc, 896, v9", [], [9])
        A.nop(2)
        V(f"v_cndmask_b32 v{vX+1}, v10, v{vX+1}, vcc", vX + 1, [10, vX + 1])
        A.raw("s_waitcnt lgkmcnt(0)")
        def fin(srd, off_s, nrec):
            A.salu(f"s_add_u32 s{srd}, s{srd}, s{off_s}")
            A.salu(f"s_addc_u32 s{srd+1}, s{srd+1}, 0")
            A.salu(f"s_and_b32 s{srd+1}, s{srd+1}, 0xffff")
            A.salu(f"s_mov_b32 s{srd+2}, {nrec}")
            A.salu(f"s_mov_b32 s{srd+3}, 0x20000")
        if cfg.order == 2: A.salu(f"s_and_b32 s3, s{sB}, 1")
        elif cfg.order == 3: A.salu(f"s_and_b32 s3, s{sHG}, 1")
        elif cfg.order == 7:
            A.salu(f"s_not_b32 s3, s{sHG}"); A.salu("s_and_b32 s3, s3, 1")
        elif cfg.order == 8: A.salu(f"s_bfe_u32 s3, s{sHG}, 0x10001")
        elif cfg.order == 9: A.salu(f"s_bfe_u32 s3, s{sHG}, 0x10002")
        elif cfg.order == 11:
            A.salu(f"s_mul_i32 s3, s{sB}, {cfg.minor}"); A.salu("s_and_b32 s3, s3, 31"); A.salu(f"s_cmp_lt_u32 s3, {cfg.minor}")
            A.salu("s_cselect_b32 s3, 1, 0"); A.salu(f"s_xor_b32 s3, s3, s{sHG}"); A.salu("s_and_b32 s3, s3, 1")
        elif cfg.order == 10:
            A.salu("s_getreg_b32 s3, hwreg(HW_REG_XCC_ID)"); A.salu("s_and_b32 s3, s3, 1")
        elif cfg.order == 6:
            A.salu(f"s_xor_b32 s3, s{sB}, s{sHG}"); A.salu("s_and_b32 s3, s3, 1")
        elif cfg.order == 4:
            A.salu(f"s_and_b32 s3, s{sB}, 7"); A.salu("s_cmp_lt_u32 s3, 3"); A.salu("s_cselect_b32 s3, 1, 0")
        elif cfg.order == 5:
            A.salu(f"s_and_b32 s3, s{sB}, 7"); A.salu("s_cmp_lt_u32 s3, 5"); A.salu("s_cselect_b32 s3, 1, 0")
        else: A.salu(f"s_mov_b32 s3, {cfg.order}")
        A.salu("s_cmp_eq_u32 s3, 1")
        A.salu(f"s_cselect_b64 s[{sX}:{sX+1}], s[14:15], s[4:5]")
        A.salu(f"s_cselect_b64 s[{sWQ}:{sWQ+1}], s[20:21], s[10:11]")
        A.salu(f"s_cselect_b64 s[{sNX}:{sNX+1}], s[4:5], s[14:15]")
        A.salu(f"s_cselect_b64 s[{sNWQ}:{sNWQ+1}], s[10:11], s[20:21]")
        A.salu(f"s_mul_i32 s{sT2}, s{sB}, 71680")
        fin(sX, sT2, 71680)
        A.salu(f"s_lshl_b32 s{sT1}, s{sHG}, 1")
        A.salu(f"s_add_u32 s{sT1}, s{sT1}, s{sG}")
        A.salu(f"s_lshl_b32 s{sT1}, s{sT1}, 9")
        A.salu(f"s_sub_u32 s{sT3}, {448*8192}, s{sT1}")
        fin(sWQ, sT1, f"s{sT3}")
        if cfg.stamp:
            V(f"v_mov_b32 v{vSTAMP}, 0", vSTAMP, [])
            A.salu(f"s_mov_b32 s{sSTI}, 0")
        if cfg.rt: A.raw(f"v_writelane_b32 v{vSTAMP}, s70, 63")
        self.stamp("start")
        self.m0slot = None
        for n in range(2):
            for pc in range(2): self.slot_dma("WQ", n & 1, ("WQ", n), n, pc, 0)
        if cfg.pro & 1: A.barrier()
        for t in range(5): self.x_dma(0, t)
        if cfg.pro & 2: A.barrier()
        for t in range(5):
            if cfg.cond: self.x_dma(1, t)
            else: self.x_load(1, t)
        fin(sNX, sT2, 71680)
        fin(sNWQ, sT1, f"s{sT3}")
        A.salu(f"s_mul_i32 s{sPOW}, s{sW}, 10240")
        c = 1.4426950408889634 / 16.0
        A.salu(f"s_mov_b32 s{sC}, {f32bits(c):#x}")
        A.salu(f"s_mov_b32 s{sC+1}, {f32bits(c):#x}")
        A.salu(f"s_mov_b32 s{sNC}, {f32bits(-c):#x}")
        A.salu(f"s_mov_b32 s{sPH}, 0")
        A.salu(f"s_mul_i32 s{sGR}, s{sG}, {4*RINGSZ}")
        for jj in range(4):
            A.salu(f"s_xor_b32 s{sCOL+jj}, s{sJ}, {jj}")
            A.salu(f"s_lshl_b32 s{sCOL+jj}, s{sCOL+jj}, 7")
        V(f"v_lshl_add_u32 v{vV}, v{t2}, 9, v{t3}", vV, [t2, t3])
        V(f"v_add_u32 v{vV}, s{sT0}, v{vV}", vV, [vV])
        V(f"v_add_u32 v{vV+1}, {4096-1024}, v{vV}", vV + 1, [vV])
        A.salu(f"s_lshl_b32 s{sT1}, s{sW}, 7")
        A.salu(f"s_cmp_eq_u32 s{sW}, 7")
        A.salu(f"s_cselect_b32 s{sT1}, 0x4000000, s{sT1}")
        V(f"v_mul_u32_u24 v{vWO}, 896, v{t2}", vWO, [t2])
        V(f"v_add3_u32 v{vWO}, v{vWO}, v{t3}, s{sT1}", vWO, [vWO, t3])
        V(f"v_add_u32 v{vWO+1}, {8*896-1024}, v{vWO}", vWO + 1, [vWO])
        V(f"v_xor_b32 v{t1}, v{t1}, v{vG}", t1, [t1, vG])
        V(f"v_lshlrev_b32 v{t1}, 4, v{t1}", t1, [t1])
        V(f"v_lshl_add_u32 v{vK}, v{t2}, 9, v{t1}", vK, [t2, t1])
        A.salu(f"s_lshl_b32 s{sT1}, s{sJ}, 16")
        V(f"v_add_u32 v{vK}, s{sT1}, v{vK}", vK, [vK])
        V(f"v_xor_b32 v{vK+1}, 64, v{vK}", vK + 1, [vK])
        V(f"v_add_u32 v{vK+1}, {4096-1024}, v{vK+1}", vK + 1, [vK + 1])
        V(f"v_lshrrev_b32 v{t1}, 2, v{vL}", t1, [vL])
        V(f"v_lshlrev_b32 v{t1}, 7, v{t1}", t1, [t1])
        V(f"v_bfe_u32 v{t2}, v{vL}, 3, 2", t2, [vL])
        V(f"v_lshl_add_u32 v{t1}, v{t2}, 5, v{t1}", t1, [t1, t2])
        V(f"v_and_b32 v{t2}, 3, v{vL}", t2, [vL])
        V(f"v_lshl_add_u32 v{t1}, v{t2}, 3, v{t1}", t1, [t1, t2])
        V(f"v_add_u32 v{vTR}, s{sRING}, v{t1}", vTR, [t1])
        for a in range(1, 4):
            V(f"v_xor_b32 v{vTR+a}, {a << 5}, v{vTR}", vTR + a, [vTR])
        V(f"v_lshrrev_b32 v{t1}, 1, v{vQ}", t1, [vQ])
        V(f"v_xor_b32 v{t1}, v{t1}, v{vG}", t1, [t1, vG])
        V(f"v_lshlrev_b32 v{t1}, 4, v{t1}", t1, [t1])
        V(f"v_lshl_add_u32 v{t1}, v{vQ}, 7, v{t1}", t1, [t1, vQ])
        V(f"v_add_u32 v{vKR}, s{sRING}, v{t1}", vKR, [t1])
        V(f"v_xor_b32 v{vKR+1}, 64, v{vKR}", vKR + 1, [vKR])
        V(f"v_xor_b32 v{t1}, v{vG}, v{vQ}", t1, [vG, vQ])
        V(f"v_lshlrev_b32 v{t1}, 4, v{t1}", t1, [t1])
        V(f"v_lshl_add_u32 v{vXR}, v{vQ}, 8, v{t1}", vXR, [vQ, t1])
        for u in range(1, 4):
            V(f"v_xor_b32 v{vXR+u}, {u << 6}, v{vXR}", vXR + u, [vXR])
        for u in range(2):
            V(f"v_add_u32 v{vXRh+u}, 61440, v{vXR+u}", vXRh + u, [vXR + u])
        V(f"v_lshlrev_b32 v{vLin0}, 4, v{vL}", vLin0, [vL])
        V(f"v_add_u32 v{vLin1}, {BREG}, v{vLin0}", vLin1, [vLin0])
        A.salu(f"s_mul_i32 s{sT1}, s{sG}, {BREG}")
        A.salu(f"s_mul_i32 s{sT2}, s{sJ}, 10240")
        A.salu(f"s_add_u32 s{sT2}, s{sT2}, s{sT1}")
        V(f"v_add_u32 v{vLinG}, s{sT1}, v{vLin0}", vLinG, [vLin0])
        A.salu(f"s_mul_i32 s{sT3}, s{sJ}, 5120")
        V(f"v_add_u32 v{vPW}, s{sT3}, v{vLinG}", vPW, [vLinG])
        V(f"v_lshrrev_b32 v{t1}, 1, v{vG}", t1, [vG])
        V(f"v_lshlrev_b32 v{t1}, 8, v{t1}", t1, [t1])
        V(f"v_and_b32 v{t2}, 1, v{vG}", t2, [vG])
        V(f"v_lshl_add_u32 v{t1}, v{t2}, 9, v{t1}", t1, [t1, t2])
        V(f"v_lshl_add_u32 v{t1}, v{vQ}, 4, v{t1}", t1, [t1, vQ])
        V(f"v_add_u32 v{vQW}, s{sT2}, v{t1}", vQW, [t1])
        V(f"v_lshlrev_b32 v{t1}, 3, v{vQ}", t1, [vQ])
        V(f"v_add_u32 v{vSW}, s{sRING}, v{t1}", vSW, [t1])
        A.salu(f"s_add_u32 s{sT1}, s{sGR}, {RING0}")
        V(f"v_add_u32 v{vSR}, s{sT1}, v{t1}", vSR, [t1])
        V(f"v_add_u32 v{vRW}, s{sXM0}, v{vLin0}", vRW, [vLin0])
        if cfg.krot:
            A.salu(f"s_lshr_b32 s{sT3}, s{sB}, 1")
            A.salu(f"s_and_b32 s{sT3}, s{sT3}, 14")
        else:
            A.salu(f"s_mov_b32 s{sT3}, 0")
        A.salu(f"s_lshl_b32 s{sT1}, s{sW}, 1")
        A.salu(f"s_sub_u32 s{sT1}, s{sT1}, s{sT3}")
        A.salu(f"s_and_b32 s{sT1}, s{sT1}, 15")
        A.salu(f"s_mul_i32 s{sT1}, s{sT1}, 5120")
        V(f"v_add_u32 v{vOW}, s{sT1}, v{vLin0}", vOW, [vLin0])
        A.salu(f"s_add_u32 s{sT3}, s{sT3}, 15")
        A.salu(f"s_and_b32 s{sT3}, s{sT3}, 15")
        A.salu(f"s_mul_i32 s{sWOK}, s{sT3}, {32*896}")
        A.salu(f"s_lshl_b32 s{sT1}, s{sB}, 3")
        A.salu(f"s_add_u32 s{sT1}, s{sT1}, s{sHG}")
        A.salu(f"s_lshl_b32 s{sT2}, s{sT1}, 18")
        A.salu(f"s_lshl_b32 s{sT3}, s{sG}, 13")
        A.salu(f"s_add_u32 s{sT2}, s{sT2}, s{sT3}")
        A.salu(f"s_sub_u32 s{sT3}, 262144, s{sT3}")
        A.salu(f"s_mov_b64 s[{sKV(0,0)}:{sKV(0,0)+1}], s[6:7]")
        A.salu(f"s_mov_b64 s[{sKV(0,1)}:{sKV(0,1)+1}], s[8:9]")
        fin(sKV(0, 0), sT2, f"s{sT3}"); fin(sKV(0, 1), sT2, f"s{sT3}")
        A.salu(f"s_lshl_b32 s{sT2}, s{sT1}, 1")
        A.salu(f"s_add_u32 s{sT2}, s{sT2}, s{sG}")
        A.salu(f"s_lshl_b32 s{sT2}, s{sT2}, 18")
        A.salu(f"s_mov_b64 s[{sKV(1,0)}:{sKV(1,0)+1}], s[16:17]")
        A.salu(f"s_mov_b64 s[{sKV(1,1)}:{sKV(1,1)+1}], s[18:19]")
        fin(sKV(1, 0), sT2, 262144); fin(sKV(1, 1), sT2, 262144)
        A.salu(f"s_mul_i32 s{sT2}, s{sHG}, {512*896}")
        A.salu(f"s_mov_b64 s[{sKV(0,2)}:{sKV(0,2)+1}], s[12:13]")
        A.salu(f"s_mov_b64 s[{sKV(1,2)}:{sKV(1,2)+1}], s[22:23]")
        fin(sKV(0, 2), sT2, 512 * 896); fin(sKV(1, 2), sT2, 512 * 896)
        for blk in range(2):
            A.salu(f"s_add_u32 s{sT2}, s{sT1}, {blk*256}")
            A.salu(f"s_mul_i32 s{sT2}, s{sT2}, 71680")
            A.salu(f"s_add_u32 s{sPOB(blk)}, s24, s{sT2}")
            A.salu(f"s_addc_u32 s{sPOB(blk)+1}, s25, 0")
            A.salu(f"s_and_b32 s{sPOB(blk)+1}, s{sPOB(blk)+1}, 0xffff")
        A.salu(f"s_mov_b64 s[{sPO}:{sPO+1}], s[{sPOB(0)}:{sPOB(0)+1}]")
        A.salu(f"s_mov_b32 s{sPO+2}, 0")
        A.salu(f"s_mov_b32 s{sPO+3}, 0x20000")
        if "now" in cfg.hack:
            for r in (sWQ, sNWQ, sKV(0, 2), sKV(1, 2)): A.salu(f"s_mov_b32 s{r+2}, 0")
        if "nokv" in cfg.hack:
            for r in (sKV(0, 0), sKV(0, 1), sKV(1, 0), sKV(1, 1)): A.salu(f"s_mov_b32 s{r+2}, 0")
        if "nox" in cfg.hack:
            A.salu(f"s_mov_b32 s{sNX+2}, 0")
        if cfg.prio:
            A.salu(f"s_cmp_eq_u32 s{sG}, 0")
            A.salu("s_cbranch_scc1 L_noprio")
            A.salu(f"s_setprio {cfg.prio}")
            A.label("L_noprio")
        if cfg.early:
            assert cfg.order == 2
            R_ = A.salu
            R_("s_load_dwordx4 s[4:7], s[0:1], 80")
            R_(f"s_lshl_b32 s{sT0}, s3, 5"); R_(f"s_add_u32 s{sT0}, s{sT0}, s{sB}")
            R_(f"s_mul_i32 s{sT0}, s{sT0}, {8*71680}")
            R_(f"s_add_u32 s16, s24, s{sT0}"); R_("s_addc_u32 s17, s25, 0"); R_("s_and_b32 s17, s17, 0xffff")
            R_(f"s_mov_b32 s18, {8*71680}"); R_("s_mov_b32 s19, 0x20000")
            R_(f"s_lshl_b32 s{sT0}, s{sHG}, 3"); R_(f"s_add_u32 s{sT0}, s{sT0}, s{sW}")
            R_(f"s_lshl_b32 s20, s{sT0}, 10")
            R_(f"s_lshl_b32 s23, s{sB}, 6"); R_(f"s_add_u32 s23, s23, s{sT0}"); R_("s_lshl_b32 s23, s23, 2")
            R_("s_add_u32 s23, s23, 0x4000000")
            R_(f"s_mul_i32 s{sT1}, s{sT0}, 205"); R_(f"s_lshr_b32 s{sT1}, s{sT1}, 10")
            R_(f"s_mul_i32 s{sT2}, s{sT1}, 5"); R_(f"s_sub_u32 s{sT2}, s{sT0}, s{sT2}")
            R_(f"s_mul_i32 s21, s{sB}, 80"); R_(f"s_lshl_b32 s{sT2}, s{sT2}, 4"); R_(f"s_add_u32 s21, s21, s{sT2}")
            R_("s_mul_i32 s21, s21, 1792"); R_(f"s_mul_i32 s{sT2}, s3, 896"); R_(f"s_add_u32 s21, s21, s{sT2}")
            R_(f"s_lshl_b32 s{sT1}, s{sT1}, 6"); R_(f"s_add_u32 s21, s21, s{sT1}")
            R_("s_mov_b32 s22, 0")
            R_(f"s_cmp_eq_u32 s{sW}, 0"); R_(f"s_cselect_b32 s{sSIG}, 1, 2")
            R_(f"s_lshl_b32 s{sT0}, s{sB}, 2")
            V(f"v_mov_b32 v{vT1}, s{sT0}", vT1, [])
            V(f"v_mov_b32 v{vT0}, 1", vT0, [])
        if cfg.touch:
            V(f"v_lshlrev_b32 v11, {cfg.tsh - 4}, v{vLin0}", 11, [vLin0])
            for blk in range(2):
                A.salu(f"s_mov_b64 s[{4+4*blk}:{5+4*blk}], s[{sPOB(blk)}:{sPOB(blk)+1}]")
                A.salu(f"s_mov_b32 s{6+4*blk}, 71680"); A.salu(f"s_mov_b32 s{7+4*blk}, 0x20000")
            srds = {"p": [4, 8], "x": [sNX], "q": [sNWQ], "o": [sKV(0, 2), sKV(1, 2)], "k": [sKV(0, 0), sKV(0, 1), sKV(1, 0), sKV(1, 1)]}
            L = []
            for ch in cfg.touch:
                for r in srds[ch]:
                    L.append(f"buffer_load_dword v{12 + len(L)}, v11, s[{r}:{r+3}], 0 offen nt")
            self.cond_block(f"s_cmp_eq_u32 s{sJ}, 0", L)
        if cfg.kpf:
            assert not cfg.early and cfg.cond
            V(f"v_add_u32 v{vT0}, s{sRING}, v{vLin0}", vT0, [vLin0])
            L = []
            for i in range(cfg.kpf):
                u = 6 + i; jj, kt = u // 4, u % 4
                L.append(f"s_add_u32 s{sT0}, s{sCOL+jj}, {kt * 8192}")
                for pc in range(2):
                    r = ACC + 100 + 8 * i + 4 * pc
                    L.append(f"buffer_load_dwordx4 v[{r}:{r+3}], v{vK+pc}, s[{sKV(1,0)}:{sKV(1,0)+3}], s{sT0} offen" + (" offset:1024" if pc else "") + f" {cfg.kv_flags}")
            self.cond_block("s_cmp_eq_u32 s3, 1", L)
        for n in range(2, 5):
            for pc in range(2): self.slot_dma("WQ", n & 1, ("WQ", n), n, pc, 0)
        if cfg.early:
            A.raw("s_waitcnt lgkmcnt(0)")
            R_("s_mov_b32 s8, s6"); R_("s_and_b32 s9, s7, 0xffff"); R_("s_mov_b32 s10, 256"); R_("s_mov_b32 s11, 0x20000")
            R_("s_mov_b32 s12, s4"); R_("s_and_b32 s13, s5, 0xffff"); R_(f"s_mov_b32 s14, {32*80*896*2}"); R_("s_mov_b32 s15, 0x20000")
        A.wait_vm_tag(("WQ", 1))
        for y in range(2):
            for a in range(4):
                A.ds_read("ds_read_b64_tr_b16", A_tr(0, a) + 2 * y, 2, vTR + a, y * 2048)
        A.wait_vm_tag(("x", 0))
        A.wait_lgkm_all()
        self.bar("AB1")
        for b in range(5): A.ds_read("ds_read_b128", B_tr(b), 4, vXR, b * 4096)
        for n in range(5, 7):
            for pc in range(2): self.slot_dma("WQ", n & 1, ("WQ", n), n % 5, pc, 0)
        A.wait_lgkm_all()
        self.canon_vm = [e for e in A.vm if e[0][0] == "WQ"]
        assert [e[0][1] for e in self.canon_vm] == [2, 2, 3, 3, 4, 4, 5, 5, 6, 6]
        self.canon_lgkm = None
        A.salu("s_cmp_eq_u32 s3, 1")
        A.salu("s_cbranch_scc1 L_body1")

    def wq_off(self, n):
        return n & 1

    def x_dma(self, pair, t):
        A = self.A
        A.salu(f"s_mov_b32 s{sOFF}, {t * 14336}")
        A.salu(f"s_add_u32 m0, s{sXM0}, {pair * 40960 + t * 4096}", m0=True)
        self.m0slot = None
        A.dma(vX + pair, sX, sOFF, flags=self.cfg.x_flags, tag=("x", pair))

    def skip_begin(self, ph):
        self.nlab = getattr(self, "nlab", 0) + 1
        self.A.salu(f"s_cmp_eq_u32 s{sPH}, {ph}")
        self.A.salu(f"s_cbranch_scc1 L_sk{self.nlab}")

    def skip_end(self):
        self.A.label(f"L_sk{self.nlab}")

    def cond_block(self, cmp, lines):
        self.nlab = getattr(self, "nlab", 0) + 1
        A = self.A
        A.salu(cmp)
        A.salu(f"s_cbranch_scc0 L_sk{self.nlab}")
        for l in lines: A.raw(l, 0)
        A.label(f"L_sk{self.nlab}")

    def x_load_c(self, pair, t):
        A = self.A
        if "nx2" in self.cfg.hack: return
        r = ACC + 80 + (pair * 5 + t) * 4
        A._mem_ready(rng(r, 4)); A._haz("mem", [vX + pair], rng(r, 4))
        self.skip_begin(1)
        A.raw(f"s_mov_b32 s{sT0}, {t * 14336}", 0)
        A.raw(f"buffer_load_dwordx4 v[{r}:{r+3}], v{vX+pair}, s[{sX}:{sX+3}], s{sT0} offen {self.cfg.x2f}", 0)
        self.skip_end()

    def x_write_c(self, pair, t):
        A = self.A
        if "nx2" in self.cfg.hack or "nxw" in self.cfg.hack: return
        r = ACC + 80 + (pair * 5 + t) * 4
        if len(A.lgkm) >= 13: A._wait_lgkm_idx(len(A.lgkm) - 13)
        self.skip_begin(1 - pair)
        A.raw(f"ds_write_b128 v{vRW}, v[{r}:{r+3}] offset:{pair * 40960 + t * 4096}", 0)
        self.skip_end()
        self.xw_mark = True

    def x_load(self, pair, t):
        A = self.A
        A.salu(f"s_mov_b32 s{sOFF}, {t * 14336}")
        self.m0slot = None
        A.bload(ACC + 80 + (pair * 5 + t) * 4, 4, vX + pair, sX, sOFF, flags=self.cfg.x_flags, tag=("xr", pair))

    def x_write(self, pair, t):
        self.A.ds_write("ds_write_b128", vRW, ACC + 80 + (pair * 5 + t) * 4, 4, pair * 40960 + t * 4096, tag=("xw", pair))

    def store_po_cond(self, i, b, flags):
        A = self.A
        self.nlab = getattr(self, "nlab", 0) + 1
        r = ACC + 120 + (i * 5 + b) * 4
        A.salu(f"s_cmp_eq_u32 s{sPH}, 0")
        A.salu(f"s_cbranch_scc1 L_sk{self.nlab}")
        A.raw(f"s_add_u32 s{sT0}, s{sPOW}, {(i * 5 + b) * 1024}", 0)
        A.raw(f"buffer_store_dwordx4 v[{r}:{r+3}], v{vLin0}, s[{sPO}:{sPO+3}], s{sT0} offen {flags}", 0)
        A.label(f"L_sk{self.nlab}")

    def store_po(self, i, b, flags):
        A = self.A
        A.salu(f"s_add_u32 s{sT0}, s{sPOW}, {(i * 5 + b) * 1024}")
        A.bstore(ACC + 120 + (i * 5 + b) * 4, 4, vLin0, sPO, sT0, flags=flags, tag="po")

    def set_off(self, typ, off, adv):
        A = self.A
        if typ in ("WQ", "WO"):
            reg, step, cnt, ystep = (sWQK, 262144, 14, 32768) if typ == "WQ" else (sWOK, 32 * 896, 16, 16 * 896)
            if adv and off == 0:
                A.salu(f"s_add_u32 s{reg}, s{reg}, {step}")
                A.salu(f"s_sub_u32 s{sOFF}, s{reg}, {step * cnt}")
                A.salu(f"s_cselect_b32 s{reg}, s{reg}, s{sOFF}")
            A.salu(f"s_add_u32 s{sOFF}, s{reg}, {off * ystep}")
        elif typ == "K": A.salu(f"s_add_u32 s{sOFF}, s{sCOL+off[1]}, {off[0]}")
        else: A.salu(f"s_mov_b32 s{sOFF}, {off}")

    def slot_dma(self, typ, off, key, phys, pc, blk):
        A = self.A; cfg = self.cfg
        vo, srd, fl = {"WQ": (vWQ, sWQ, cfg.w_flags), "K": (vK, sKV(blk, 0), cfg.kv_flags),
                       "V": (vV, sKV(blk, 1), cfg.kv_flags), "WO": (vWO, sKV(blk, 2), cfg.w_flags)}[typ]
        if pc == 0 or self.m0slot != key:
            self.set_off(typ, off, pc == 0)
            A.salu(f"s_add_u32 m0, s{sRING}, {phys * 2048}", m0=True)
            self.m0slot = key
        A.dma(vo + pc, srd, sOFF, off=1024 * pc, flags=fl, tag=key)

    def cvt(self, dst, a, b):
        self.A.valu(f"v_cvt_pk_bf16_f32 v{dst}, v{a}, v{b}", [dst], [a, b])

    def body(self, blk):
        A = self.A; V = self.V; cfg = self.cfg; R = cfg.R; cvt = self.cvt
        assert R == 5
        shared = (blk == 0)
        A.label(f"L_body{blk}")
        A.vm = list(self.canon_vm)
        can_l = []
        for a in range(4): can_l.append((None, set(rng(A_tr(0, a), 2))))
        for a in range(4): can_l.append((None, set(rng(A_tr(0, a) + 2, 2))))
        for b in range(5): can_l.append((None, set(rng(B_tr(b), 4))))
        A.lgkm = list(can_l)
        A.vw = {}; A.mfma_c_read = {}
        self.m0slot = None
        nm = "AB"[blk]
        units = [(jj, 4 * r + k) for r in range(2) for jj in range(4) for k in range(4)]
        use = {}; phys = {}; order = []
        def add(key, typ, off):
            use[key] = (typ, off); order.append(key)
        for n in range(2, 28):
            add(("WQ", n), "WQ", n & 1); phys["WQ", n] = n % 5
        nK = 16 if shared else 32
        for i in range(nK):
            jj, kt = units[2 * i] if shared else units[i]
            add(("K", i), "K", (kt * 8192, jj))
        kpreg = {}
        add(("SCR", 0), "SCR", 0)
        for ks in range(16):
            t, w = divmod(ks, 4)
            key0 = 128 * w + 32 * t
            if shared: add(("V", ks), "V", key0 * 512)
            else:
                for y in range(2): add(("V", 2 * ks + y), "V", (key0 + 16 * y) * 512)
        for n in range(32): add(("WO", n), "WO", n & 1)
        for n in range(7): add(("NWQ", n), "WQ", n & 1)
        T = order[order.index(("K", 0)):]
        for i, key in enumerate(T): phys[key] = (i - (len(T) - 7)) % 5
        slotq = [deque(k for k in order if phys[k] == p) for p in range(5)]
        issued = set(("WQ", n) for n in range(7)); avail = set()
        side = deque(); vq = deque(); slow = deque()
        st = {"wq_left": 21, "pr": 0}

        def issue(key, pc):
            typ, off = use[key]
            if key[0] == "K" and key[1] in kpreg:
                A.ds_write("ds_write_b128", vT0, kpreg[key[1]] + 4 * pc, 4, phys[key] * 2048 + pc * 1024)
            else:
                self.slot_dma(typ, off, key, phys[key], pc, blk)
            if pc == 1:
                issued.add(key)
                if key[0] == "WQ":
                    st["wq_left"] -= 1
                    if st["wq_left"] == 0: switch_srd()

        def switch_srd():
            A.salu(f"s_mov_b64 s[{sX}:{sX+1}], s[{sNX}:{sNX+1}]")
            A.salu(f"s_mov_b32 s{sX+2}, s{sNX+2}")
            A.salu(f"s_mov_b64 s[{sWQ}:{sWQ+1}], s[{sNWQ}:{sNWQ+1}]")
            A.salu(f"s_mov_b32 s{sWQ+2}, s{sNWQ+2}")
            A.salu(f"s_mov_b32 s{sNX+2}, 0")
            A.salu(f"s_mov_b32 s{sNWQ+2}, 0")

        def release(key):
            q = slotq[phys[key]]
            assert q[0] == key, (key, q[0])
            q.popleft()
            if not q: return
            nx = q[0]
            if nx[0] == "SCR": avail.add(nx)
            else:
                side.append(lambda: issue(nx, 0)); side.append(lambda: issue(nx, 1))

        def pump(q, k=1):
            for _ in range(k):
                if q: q.popleft()()

        def flush(q):
            while q: q.popleft()()

        def need(key):
            while key not in issued:
                assert side, key
                side.popleft()()
            A.wait_vm_tag(key)

        def tr_read(par, a, y, off, tag):
            A.ds_read("ds_read_b64_tr_b16", A_tr(par, a) + 2 * y, 2, vTR + a, off, tag=tag)

        def offs(typ, s, y, sh):
            return (phys[typ, s] * 2048 + y * 4 * RINGSZ) if sh else phys[typ, 2 * s + y] * 2048

        def prio():
            if cfg.fair:
                A.salu(f"s_setprio {3 - st['pr'] % 4}"); st["pr"] += 1

        def kstep(par, czero, nx, bread, cur_sh=None, barrier=False, pub=None, after=None, extra=None, tail=None, label=None):
            typ, s, sh = nx
            for p in range(20):
                b, a = divmod(p, 4)
                if p == 0:
                    if label and label[0] in cfg.kst.split(","): self.stamp(nm + label[0] + str(label[1]))
                    if not sh: prio()
                    need((typ, s) if sh else (typ, 2 * s))
                    if pub:
                        if pub[0] == "xw": assert not slow
                        flush(vq); flush(slow); A.wait_lgkm_tag(pub)
                    if (sh or barrier or pub) and not ("nopvbar" in cfg.hack and typ == "V" and not sh):
                        if cur_sh: A.wait_lgkm_tag(("rd",) + cur_sh)
                        A.barrier()
                        if cur_sh: release(cur_sh)
                    if after: after()
                if p == cfg.ypos and not sh: need((typ, 2 * s + 1))
                A.mfma(ACC + (a * 5 + b) * 4, A_tr(par, a), B_tr(b), czero=czero)
                if sh: yy = (p >> 1, p & 1) if p < 4 else None
                else: yy = (0, p) if p < 2 else ((1, p - cfg.ypos) if 0 <= p - cfg.ypos < 2 else None)
                if yy:
                    y, hh = yy
                    for a2 in (hh * 2, hh * 2 + 1):
                        tr_read(par ^ 1, a2, y, offs(typ, s, y, sh), ("rd", typ, s) if sh else ("rd", typ, 2 * s + y))
                if a == 3 and bread: bread(b)
                if a == 1 and extra: extra(b)
                if not sh:
                    for y, rp in ((0, cfg.relx), (1, cfg.ypos + cfg.relx)):
                        if p == rp:
                            A.wait_lgkm_tag(("rd", typ, 2 * s + y))
                            release((typ, 2 * s + y))
                if p >= 2: pump(side, cfg.npump)
                if p in (8, 18): pump(slow)
                if tail and a == 3 and b >= 1: tail(b - 1)
                pump(vq, 3 if tail else 1)
            if tail:
                tail(4); flush(vq)

        def joint(nx, BX, done, cur_sh=None, hooks={}):
            typ, s, sh = nx
            groups = [(0, 0), (0, 1), (1, 0), (0, 2), (1, 1), (0, 3), (1, 2), (0, 4), (1, 3), (1, 4)]
            pend = None
            for gi, (o, b) in enumerate(groups):
                for a in range(4):
                    p = gi * 4 + a
                    if p == 0:
                        if not sh: prio()
                        need((typ, s) if sh else (typ, 2 * s))
                        if sh:
                            A.wait_lgkm_tag(("rd",) + cur_sh)
                            A.barrier()
                            release(cur_sh)
                    if p == 2 and not sh: need((typ, 2 * s + 1))
                    if p == 20 and not sh: prio()
                    if p == 8:
                        A.wait_lgkm_all()
                        if not sh:
                            release((typ, 2 * s)); release((typ, 2 * s + 1))
                        A.barrier()
                        if sh: release((typ, s))
                    A.mfma(ACC + (a * 5 + b) * 4, A_tr(o, a), (BX + 4 * b) if o else B_tr(b))
                    if p < 4:
                        y, hh = p >> 1, p & 1
                        for a2 in (hh * 2, hh * 2 + 1):
                            tr_read(1, a2, y, offs(typ, s, y, sh), None)
                    if p in hooks: hooks[p]()
                    if p >= 4: pump(side, cfg.npump)
                    if a == 2 and pend is not None:
                        done(pend); pend = None
                    pump(vq, 3)
                if o: pend = b
            done(pend); flush(vq)
            if cfg.fair: A.salu("s_setprio 0")

        def prefetch_A(typ, sh=False):
            if not sh:
                need((typ, 0)); need((typ, 1))
            for y in range(2):
                for a in range(4): tr_read(0, a, y, offs(typ, 0, y, sh), ("rd", typ, 0))

        def pair_cvt(i, b, q):
            r0 = ACC + ((2 * i) * 5 + b) * 4; r1 = ACC + ((2 * i + 1) * 5 + b) * 4
            for (d, x) in ((r0, r0), (r0 + 1, r0 + 2), (r0 + 2, r1), (r0 + 3, r1 + 2)):
                q.append(lambda d=d, x=x: cvt(d, x, x + 1))
            return r0

        def read_x(ks, b, dst):
            cidx, u = divmod(ks, 4)
            if cidx < 3: A.ds_read("ds_read_b128", dst, 4, vXR + u, cidx * 20480 + b * 4096)
            else: A.ds_read("ds_read_b128", dst, 4, vXRh + u, b * 4096)
        def q_after1():
            for t in range(5): slow.append(lambda t=t: (self.x_write_c if cfg.cond else self.x_write)(1, t))
        BXQ = ACC + 80
        stq = deque((i, b) for i in range(2) for b in range(5))
        for s in range(12):
            def ex(b, s=s):
                if s == 10: read_x(13, b, BXQ + 4 * b)
                s0, per = [int(v) for v in (cfg.stA, cfg.stB)[blk].split(",")]
                if s >= s0 and stq and b in (3, 1, 0, 2, 4)[:per] and not (cfg.stS >= 0 and blk == 1):
                    e_ = stq.popleft()
                    if "nost" not in cfg.hack: self.store_po_cond(*e_, cfg.po_flags)
            kstep(s & 1, s == 0, ("WQ", s + 1, False), lambda b, s=s: read_x(s + 1, b, B_tr(b)),
                  barrier=(s == 1), after=(q_after1 if s == 1 else None), pub=(("xw", 1) if s == 7 else None),
                  extra=ex, label=("WQ", s))
        assert not stq or cfg.stS >= 0
        def set_qr(jj):
            A.salu(f"s_mul_i32 s{sT0}, s{sCOL+jj}, 80")
            V(f"v_add_u32 v{vQR}, s{sT0}, v{vLinG}", vQR, [vLinG])
        def k_off(u):
            if shared: return phys["K", u >> 1] * 2048 + (u & 1) * 4 * RINGSZ
            return phys["K", u] * 2048
        def k_read(u, s):
            A.ds_read("ds_read_b128", A_s(u & 1, s), 4, vKR + s, k_off(u), tag=("rk", u))
        def done_q(b):
            for i in range(2):
                r0 = pair_cvt(i, b, vq)
            for i in range(2):
                r0 = ACC + ((2 * i) * 5 + b) * 4
                for e in range(2):
                    vq.append(lambda r=r0 + e: A.valu(f"v_permlane16_swap_b32 v{r}, v{r+2}", [r, r + 2], [r, r + 2], kind="perm"))
            for i in range(2):
                r0 = ACC + ((2 * i) * 5 + b) * 4
                vq.append(lambda r0=r0, i=i: A.ds_write("ds_write_b128", vQW, r0, 4, (i * 5 + b) * 1024))
        def q_h10():
            set_qr(0)
            if shared:
                for s in range(2): V(f"v_subrev_u32 v{vKR+s}, s{sGR}, v{vKR+s}", vKR + s, [vKR + s])
        self.stamp(nm + "Qj")
        joint(("WQ", 13, False), BXQ, done_q, hooks={10: q_h10})
        flush(side)
        need(("K", 0))
        if shared:
            A.wait_lgkm_all()
            self.bar(nm + "B4")
            for s in range(2): k_read(0, s)
        else:
            for s in range(2): k_read(0, s)
            A.wait_lgkm_all()
            release(("K", 0))
            self.bar(nm + "B4")
        if cfg.early and not cfg.noearly:
            self.cond_block(f"s_cmp_eq_u32 s{sPH}, s{sSIG}", ["s_mov_b64 exec, 1",
                f"buffer_atomic_add v{vT0}, v{vT1}, s[8:11], 0 offen sc1", "s_mov_b64 exec, -1"])
        for s in range(2):
            for b in range(5):
                A.ds_read("ds_read_b128", B_s(s, b), 4, vQR, (s * 5 + b) * 1024)
        def acc_s(kt, b): return ACC + (kt * 5 + b) * 4
        NM1 = lambda b: BORROW[b]
        L1 = lambda b: BORROW[5 + b]
        smq = deque()
        def q_max(kt):
            for b in range(5):
                r = acc_s(kt, b); m = vM + b
                if kt == 0:
                    smq.append(lambda r=r, m=m: V(f"v_max3_f32 v{m}, v{r}, v{r+1}, v{r+2}", m, [r, r+1, r+2]))
                    smq.append(lambda r=r, m=m: V(f"v_max_f32 v{m}, v{m}, v{r+3}", m, [m, r+3]))
                else:
                    smq.append(lambda r=r, m=m: V(f"v_max3_f32 v{m}, v{m}, v{r}, v{r+1}", m, [m, r, r+1]))
                    smq.append(lambda r=r, m=m: V(f"v_max3_f32 v{m}, v{m}, v{r+2}, v{r+3}", m, [m, r+2, r+3]))
        def q_round1():
            for sw in ("v_permlane32_swap_b32", "v_permlane16_swap_b32"):
                for b in range(5): smq.append(lambda b=b: V(f"v_mov_b32 v{L1(b)}, v{vM+b}", L1(b), [vM + b]))
                for b in range(5): smq.append(lambda b=b, sw=sw: A.valu(f"{sw} v{vM+b}, v{L1(b)}", [vM + b, L1(b)], [vM + b, L1(b)], kind="perm"))
                for b in range(5): smq.append(lambda b=b: V(f"v_max_f32 v{vM+b}, v{vM+b}, v{L1(b)}", vM + b, [vM + b, L1(b)]))
            for b in range(5): smq.append(lambda b=b: V(f"v_mul_f32 v{NM1(b)}, s{sNC}, v{vM+b}", NM1(b), [vM + b]))
            for kt in range(4):
                for b in range(5):
                    r = acc_s(kt, b)
                    for e in range(4): smq.append(lambda x=r+e, b=b: V(f"v_fma_f32 v{x}, v{x}, s{sC}, v{NM1(b)}", x, [x, NM1(b)]))
                    for e in range(4): smq.append(lambda x=r+e: A.valu(f"v_exp_f32 v{x}, v{x}", [x], [x], kind="trans"))
                    if kt == 0:
                        smq.append(lambda r=r, b=b: V(f"v_add_f32 v{L1(b)}, v{r}, v{r+1}", L1(b), [r, r + 1]))
                        rest = (2, 3)
                    else: rest = (0, 1, 2, 3)
                    for e in rest: smq.append(lambda x=r+e, b=b: V(f"v_add_f32 v{L1(b)}, v{L1(b)}, v{x}", L1(b), [L1(b), x]))
        def unit(u):
            jj, kt = units[u]
            par = u & 1
            nxt = u + 1 < 32
            last_in_pass = (kt & 3) == 3
            for p in range(10):
                s, b = divmod(p, 5)
                if p == 0 and cfg.fairs and not shared and u % cfg.fairs == 0: A.salu(f"s_setprio {3 - (u // cfg.fairs) % 4}")
                if nxt and p == 0:
                    if shared:
                        if u & 1:
                            need(("K", (u + 1) // 2))
                            A.wait_lgkm_tag(("rk", u))
                            if "nobar" not in cfg.hack: A.barrier()
                            release(("K", u // 2))
                    else:
                        need(("K", u + 1))
                A.mfma(acc_s(kt, b), A_s(par, s), B_s(s, b), czero=(jj == 0 and s == 0))
                if nxt and p < 2: k_read(u + 1, p)
                if (kt & 3) == 2 and p == 9 and u + 2 < 32: set_qr(units[u + 2][0])
                if last_in_pass and nxt:
                    A.ds_read("ds_read_b128", B_s(s, b), 4, vQR, (s * 5 + b) * 1024)
                if nxt and p == cfg.s_rel_pos and not shared:
                    A.wait_lgkm_tag(("rk", u + 1))
                    release(("K", u + 1))
                if p >= 2: pump(side, cfg.npump)
                if blk == 1 and u == cfg.stS and not kpreg: self.store_po_cond(p // 5, p % 5, cfg.po_flags)
                if p >= 4 or u > 16: pump(smq, cfg.sm_per)
            if u == 17 and "hx" in cfg.hack:
                flush(smq)
                for i in range(40): V(f"v_mov_b32 v{vT1}, v{vT1}", vT1, [vT1])
            if jj == 3: q_max(kt)
            if u == 15 and not ("nosm1" in cfg.hack): q_round1()
        u0 = 0
        if cfg.kpf and not shared:
            import copy
            u0 = 12
            assert 6 + cfg.kpf - 1 <= u0
            flush(side)
            def snap(): return (list(A.vm), list(A.lgkm), dict(A.vw), dict(A.mfma_c_read), dict(A.store_data), [list(q) for q in slotq], set(issued), self.m0slot)
            sv = snap()
            A.salu(f"s_cmp_lg_u32 s{sPH}, 0")
            A.salu("s_cbranch_scc1 L_snorm")
            for i in range(cfg.kpf): kpreg[6 + i] = ACC + 100 + 8 * i
            for u in range(u0): unit(u)
            flush(side); assert not smq
            end1 = ([t for t, _ in A.vm], [d for _, d in A.lgkm], [list(q) for q in slotq])
            A.salu("s_branch L_sjoin")
            A.label("L_snorm")
            kpreg.clear()
            A.vm, A.lgkm, A.vw, A.mfma_c_read, A.store_data = sv[0], sv[1], {}, {}, {}
            for q, l in zip(slotq, sv[5]): q.clear(); q.extend(l)
            issued.clear(); issued.update(sv[6]); self.m0slot = None
            for u in range(u0): unit(u)
            flush(side); assert not smq
            end2 = ([t for t, _ in A.vm], [d for _, d in A.lgkm], [list(q) for q in slotq])
            assert end1 == end2, (end1, end2)
            A.label("L_sjoin")
            self.m0slot = None
        for u in range(u0, 32): unit(u)
        flush(side); flush(smq)
        if cfg.fairs and not shared: A.salu("s_setprio 0")
        self.stamp(nm + "Sdone")
        ML = lambda b: 176 + 2 * b
        NMC = lambda b: 186 + 2 * b
        LS = lambda b: 196 + 2 * b
        TT = lambda b: 206 + b
        def xl_reduce(src, dst, op):
            for b in range(5): V(f"v_mov_b32 v{TT(b)}, v{src(b)}", TT(b), [src(b)])
            for b in range(5): A.valu(f"v_permlane32_swap_b32 v{src(b)}, v{TT(b)}", [src(b), TT(b)], [src(b), TT(b)], kind="perm")
            for b in range(5): V(f"{op} v{src(b)}, v{src(b)}, v{TT(b)}", src(b), [src(b), TT(b)])
            for b in range(5): V(f"v_mov_b32 v{TT(b)}, v{src(b)}", TT(b), [src(b)])
            for b in range(5): A.valu(f"v_permlane16_swap_b32 v{src(b)}, v{TT(b)}", [src(b), TT(b)], [src(b), TT(b)], kind="perm")
            for b in range(5): V(f"{op} v{dst(b)}, v{src(b)}, v{TT(b)}", dst(b), [src(b), TT(b)])
        xl_reduce(lambda b: vM + b, ML, "v_max_f32")
        for b in range(5): V(f"v_mul_f32 v{NMC(b)}, s{sNC}, v{ML(b)}", NMC(b), [ML(b)])
        for b in range(5): V(f"v_sub_f32 v{NM1(b)}, v{NMC(b)}, v{NM1(b)}", NM1(b), [NMC(b), NM1(b)])
        for b in range(5): A.valu(f"v_exp_f32 v{NM1(b)}, v{NM1(b)}", [NM1(b)], [NM1(b)], kind="trans")
        for kt in (range(4, 5) if "nosm" in cfg.hack else range(4, 8)):
            for b in range(5):
                r = acc_s(kt, b)
                for h in range(2):
                    x = r + 2 * h
                    A.valu(f"v_pk_fma_f32 v[{x}:{x+1}], v[{x}:{x+1}], s[{sC}:{sC+1}], v[{NMC(b)}:{NMC(b)+1}] op_sel_hi:[1,0,0]",
                           [x, x + 1], [x, x + 1, NMC(b)])
            for b in range(5):
                r = acc_s(kt, b)
                for e in range(4):
                    A.valu(f"v_exp_f32 v{r+e}, v{r+e}", [r + e], [r + e], kind="trans")
            for b in range(5):
                r = acc_s(kt, b); l = LS(b)
                if kt == 4:
                    A.valu(f"v_pk_add_f32 v[{l}:{l+1}], v[{r}:{r+1}], v[{r+2}:{r+3}]", [l, l + 1], rng(r, 4))
                else:
                    A.valu(f"v_pk_add_f32 v[{l}:{l+1}], v[{l}:{l+1}], v[{r}:{r+1}]", [l, l + 1], [l, l + 1, r, r + 1])
            if kt > 4:
                for b in range(5):
                    r = acc_s(kt, b); l = LS(b)
                    A.valu(f"v_pk_add_f32 v[{l}:{l+1}], v[{l}:{l+1}], v[{r+2}:{r+3}]", [l, l + 1], [l, l + 1, r + 2, r + 3])
        for b in range(5): V(f"v_add_f32 v{LS(b)}, v{LS(b)}, v{LS(b)+1}", LS(b), [LS(b), LS(b) + 1])
        for b in range(5): V(f"v_fmac_f32 v{LS(b)}, v{L1(b)}, v{NM1(b)}", LS(b), [LS(b), L1(b), NM1(b)])
        xl_reduce(LS, lambda b: ML(b) + 1, "v_add_f32")
        assert ("SCR", 0) in avail
        so = phys["SCR", 0] * 2048
        A.salu("s_mov_b64 exec, 0xffff")
        for b in range(5):
            A.ds_write("ds_write_b64", vSW, ML(b), 2, so + b * 128)
        A.salu("s_mov_b64 exec, -1")
        if shared: need(("V", 0))
        A.wait_lgkm_all()
        self.bar(nm + "B5")
        if shared:
            release(("K", 15)); flush(side)
        RB = lambda b: [160, 168, 176, 196, 204][b]
        for b in range(5):
            for jj in range(4):
                A.ds_read("ds_read_b64", RB(b) + 2 * jj, 2, vSR, jj * RINGSZ + so + b * 128)
        MX = lambda b: vM + b
        for b in range(5):
            r = RB(b)
            V(f"v_max3_f32 v{MX(b)}, v{r}, v{r+2}, v{r+4}", MX(b), [r, r + 2, r + 4])
            V(f"v_max_f32 v{MX(b)}, v{MX(b)}, v{r+6}", MX(b), [MX(b), r + 6])
            V(f"v_mul_f32 v{MX(b)}, s{sNC}, v{MX(b)}", MX(b), [MX(b)])
            for jj in range(4):
                V(f"v_fma_f32 v{r+2*jj}, v{r+2*jj}, s{sC}, v{MX(b)}", r + 2 * jj, [r + 2 * jj, MX(b)])
            V(f"v_sub_f32 v{NMC(b)}, v{MX(b)}, v{NMC(b)}", NMC(b), [MX(b), NMC(b)])
        for b in range(5):
            r = RB(b)
            for jj in range(4):
                A.valu(f"v_exp_f32 v{r+2*jj}, v{r+2*jj}", [r + 2 * jj], [r + 2 * jj], kind="trans")
            A.valu(f"v_exp_f32 v{NMC(b)}, v{NMC(b)}", [NMC(b)], [NMC(b)], kind="trans")
        for b in range(5):
            r = RB(b)
            V(f"v_mul_f32 v{MX(b)}, v{r}, v{r+1}", MX(b), [r, r + 1])
            for jj in range(1, 4):
                V(f"v_fmac_f32 v{MX(b)}, v{r+2*jj}, v{r+2*jj+1}", MX(b), [MX(b), r + 2 * jj, r + 2 * jj + 1])
        for b in range(5):
            A.valu(f"v_rcp_f32 v{MX(b)}, v{MX(b)}", [MX(b)], [MX(b)], kind="trans")
        for b in range(5):
            V(f"v_mul_f32 v{MX(b)}, v{MX(b)}, v{NMC(b)}", MX(b), [MX(b), NMC(b)])
        for b in range(5):
            V(f"v_mul_f32 v{NMC(b)}, v{MX(b)}, v{NM1(b)}", NMC(b), [MX(b), NM1(b)])
        if shared:
            for s in range(2): V(f"v_add_u32 v{vKR+s}, s{sGR}, v{vKR+s}", vKR + s, [vKR + s])
            V(f"v_subrev_u32 v{vTR}, s{sGR}, v{vTR}", vTR, [vTR])
        for a in range(1, 4): V(f"v_xor_b32 v{vTR+a}, {a << 5}, v{vTR}", vTR + a, [vTR])
        prefetch_A("V", sh=shared)
        def writeP(i, b, tag=None):
            A.ds_write("ds_write_b128", vPW, acc_s(2 * i, b), 4, (i & 1) * 20480 + b * 1024, tag=tag)
        for i in range(2):
            for b in range(5):
                r0 = acc_s(2 * i, b); r1 = acc_s(2 * i + 1, b); f = NMC(b)
                for x in (r0, r0 + 2, r1, r1 + 2):
                    A.valu(f"v_pk_mul_f32 v[{x}:{x+1}], v[{x}:{x+1}], v[{f}:{f+1}] op_sel_hi:[1,0]", [x, x + 1], [x, x + 1, f])
                cvt(r0, r0, r0 + 1); cvt(r0 + 1, r0 + 2, r0 + 3); cvt(r0 + 2, r1, r1 + 1); cvt(r0 + 3, r1 + 2, r1 + 3)
                writeP(i, b)
        if "hx" in cfg.hack:
            for i in range(160): V(f"v_mov_b32 v{vT1}, v{vLin0}", vT1, [vLin0])
        A.wait_lgkm_all()
        self.bar(nm + "B6")
        release(("SCR", 0))
        for u in range(1, 4): vq.append(lambda u=u: V(f"v_xor_b32 v{vXR+u}, {u << 6}, v{vXR}", vXR + u, [vXR]))
        for u in range(2): vq.append(lambda u=u: V(f"v_add_u32 v{vXRh+u}, 61440, v{vXR+u}", vXRh + u, [vXR + u]))
        vq.append(lambda: V(f"v_add_u32 v{vWQ+1}, {16*8192-1024}, v{vWQ}", vWQ + 1, [vWQ]))
        vq.append(lambda: V(f"v_add_u32 v{vWO+1}, {8*896-1024}, v{vWO}", vWO + 1, [vWO]))
        vq.append(lambda: V(f"v_add_u32 v{vLin1}, {BREG}, v{vLin0}", vLin1, [vLin0]))
        def q_pack(i):
            for b in (range(0) if "nopack" in cfg.hack else range(5)):
                r0 = acc_s(2 * i, b); r1 = acc_s(2 * i + 1, b)
                for x in rng(r0, 4) + rng(r1, 4):
                    vq.append(lambda x=x, b=b: V(f"v_mul_f32 v{x}, v{x}, v{MX(b)}", x, [x, MX(b)]))
                for (d, x) in ((r0, r0), (r0 + 1, r0 + 2), (r0 + 2, r1), (r0 + 3, r1 + 2)):
                    vq.append(lambda d=d, x=x: cvt(d, x, x + 1))
        q_pack(2)
        def q_write(i):
            for b in range(5): slow.append(lambda b=b: writeP(i, b, tag=("pw", i)))
        def at4():
            flush(vq); q_write(2); q_pack(3)
        def at8():
            q_write(3)
            if cfg.early:
                A.rfl(22, vQR)
                A.nop(2)
        def read_p(ks, b, dst):
            A.ds_read("ds_read_b128", dst, 4, vLinG, ((ks & 7) * 5 + b) * 1024)
        for b in range(5): read_p(0, b, B_tr(b))
        if cfg.early: A.bload(vQR, 1, vT1, 8, "0", flags="sc1", tag="chk")
        if not shared:
            release(("V", 0)); release(("V", 1))
        BXP = ACC + 140
        xq = deque((pair, t) for pair in range(2) for t in range(5))
        xs = [int(v) for v in cfg.xsplit.split(",")]
        xp = [int(v) for v in cfg.xpos.split(",")]
        def xl(n):
            for _ in range(n): side.append(lambda e=xq.popleft(): (xdone.add(e), (self.x_load_c if cfg.cond else self.x_load)(*e)))
        xdone = set()
        def pend_x(): return [(pair, t) for pair in range(2) for t in range(5) if (pair, t) not in xdone]
        xk = [int(v) for v in cfg.xk.split(",")] if cfg.xk else []
        def ex_p(b, s):
            if s == 12: read_p(15, b, BXP + 4 * b)
            if b == 2 and s in xk: xl(10 // len(xk))
        for s in range(14):
            kstep(s & 1, s == 0, ("V", s + 1, shared), lambda b, s=s: read_p(s + 1, b, B_tr(b)),
                  cur_sh=(("V", s) if shared else None), barrier=(s in (4, 8)),
                  after={4: at4, 8: at8}.get(s), pub={7: ("pw", 2), 11: ("pw", 3)}.get(s),
                  extra=(lambda b, s=s: ex_p(b, s)), label=("V", s))
        def el(gs):
            L = []
            for g in gs:
                r = ACC + 80 + 4 * g
                L += [f"s_add_u32 s{sT0}, s20, {g * 71680}",
                      f"buffer_load_dwordx4 v[{r}:{r+3}], v{vLin0}, s[16:19], s{sT0} offen sc1"]
            self.cond_block("s_cmp_eq_u32 s22, 8", L)
        def done_o(b):
            for i in range(2): pair_cvt(i, b, vq)
            for i in range(2):
                r0 = ACC + ((2 * i) * 5 + b) * 4
                vq.append(lambda r0=r0, i=i: A.ds_write("ds_write_b128", vOW, r0, 4, (i * 5 + b) * 1024))
        hooks = {}
        if not xk:
            for n, p in zip(xs, xp): hooks[p + 9] = (lambda n=n: xl(n))
        def o_h5():
            if shared:
                for a in range(4): V(f"v_add_u32 v{vTR+a}, s{sGR}, v{vTR+a}", vTR + a, [vTR + a])
        hooks[5] = o_h5
        hooks[32] = lambda: prefetch_A("WO")
        self.stamp(nm + "Pj")
        joint(("V", 15, shared), BXP, done_o, cur_sh=(("V", 14) if shared else None), hooks=hooks)
        A.wait_lgkm_all()
        release(("WO", 0)); release(("WO", 1))
        self.bar(nm + "B10")
        if cfg.w7:
            assert cfg.cond and not cfg.early
            A.salu(f"s_cmp_lg_u32 s{sW}, 7")
            A.salu(f"s_cbranch_scc1 L_o{blk}")
            save = (list(A.vm), list(A.lgkm), dict(A.vw), self.m0slot)
            for e in pend_x(): self.x_load_c(*e)
            A.raw("s_waitcnt vmcnt(0)")
            A.vm = []
            for n in range(5):
                for pc in range(2): self.slot_dma("WQ", n & 1, ("w7", n), n, pc, blk)
            A.barrier()
            for t in range(5): self.x_write_c(0, t)
            A.raw("s_waitcnt vmcnt(0) lgkmcnt(0)")
            A.barrier()
            for y in range(2):
                for a in range(4): tr_read(0, a, y, y * 2048, None)
            for b in range(5): read_x(0, b, B_tr(b))
            A.wait_lgkm_all()
            for n in range(5, 7):
                for pc in range(2): self.slot_dma("WQ", n & 1, ("w7", n), n % 5, pc, blk)
            A.salu(f"s_branch L_oend{blk}")
            A.label(f"L_o{blk}")
            A.vm, A.lgkm, A.vw, self.m0slot = save
        def read_o(ks, b):
            A.ds_read("ds_read_b128", B_tr(b), 4, vLin0 if ks < 8 else vLin1, ((ks & 7) * 5 + b) * 1024)
        for b in range(5): read_o(0, b)
        def mid_o():
            for t in range(5): slow.append(lambda t=t: (self.x_write_c if cfg.cond else self.x_write)(0, t))
        def tail_po(b):
            for i in range(2):
                r0 = ACC + ((2 * i) * 5 + b) * 4; r1 = ACC + ((2 * i + 1) * 5 + b) * 4
                d = ACC + 120 + (i * 5 + b) * 4
                for e, x in enumerate((r0, r0 + 2, r1, r1 + 2)):
                    vq.append(lambda d=d + e, x=x: cvt(d, x, x + 1))
        st["pr"] = 0
        eblk = deque()
        if cfg.early:
            D = ACC + 80; S_ = ACC + 112; t0_, t1_ = ACC + 140, ACC + 141
            for g in range(8):
                L = []
                for d in range(4):
                    src = D + 4 * g + d; lo = S_ + 2 * d
                    if g == 0:
                        L += [f"v_lshlrev_b32 v{lo}, 16, v{src}", f"v_and_b32 v{lo+1}, 0xffff0000, v{src}"]
                    else:
                        L += [f"v_lshlrev_b32 v{t0_}, 16, v{src}", f"v_and_b32 v{t1_}, 0xffff0000, v{src}",
                              f"v_add_f32 v{lo}, v{lo}, v{t0_}", f"v_add_f32 v{lo+1}, v{lo+1}, v{t1_}"]
                eblk.append(L[:8]);
                if len(L) > 8: eblk.append(L[8:])
            L = [f"v_cvt_pk_bf16_f32 v{D+d}, v{S_+2*d}, v{S_+2*d+1}" for d in range(4)]
            L += [f"v_bfe_u32 v{t0_}, v{vLin0}, 4, 4", f"v_mul_u32_u24 v{t0_}, 1792, v{t0_}",
                  f"v_bfe_u32 v{t1_}, v{vLin0}, 8, 1", f"v_lshl_add_u32 v{t0_}, v{t1_}, 5, v{t0_}",
                  f"v_lshrrev_b32 v{t1_}, 9, v{vLin0}", f"v_lshl_add_u32 v{t0_}, v{t1_}, 4, v{t0_}",
                  f"v_permlane16_swap_b32 v{D}, v{D+2}", f"v_permlane16_swap_b32 v{D+1}, v{D+3}",
                  f"buffer_store_dwordx4 v[{D}:{D+3}], v{t0_}, s[12:15], s21 offen"]
            eblk.append(L)
        def ex_o(b, s):
            ep = [int(v) for v in cfg.epos.split(",")]
            n = 8 // len(ep)
            if cfg.early and b == 0 and s in ep: el(range(ep.index(s) * n, ep.index(s) * n + n))
            assert cfg.ecomp >= ep[-1] + 3
            if s >= cfg.ecomp and eblk: self.cond_block("s_cmp_eq_u32 s22, 8", eblk.popleft())
        for s in range(16):
            last = s == 15
            kstep(s & 1, s == 0, ("NWQ", 0, False) if last else ("WO", s + 1, False),
                  (lambda b: read_x(0, b, B_tr(b))) if last else (lambda b, s=s: read_o(s + 1, b)),
                  barrier=(s == 8), after=(mid_o if s == 8 else None), pub=(("xw", 0) if s == 13 else None),
                  tail=(tail_po if last else None), label=("WO", s), extra=(lambda b, s=s: ex_o(b, s)))
            if s == 14: assert not eblk
        flush(side)
        if cfg.w7: A.label(f"L_oend{blk}")
        A.salu(f"s_mov_b64 s[{sPO}:{sPO+1}], s[{sPOB(blk)}:{sPOB(blk)+1}]")
        A.salu(f"s_mov_b32 s{sPO+2}, 71680")
        assert sorted(q[0][1] for q in slotq) == [2, 3, 4, 5, 6] and all(len(q) == 1 for q in slotq)
        act = [("WQ", t[1]) if t[0] == "NWQ" else t for t, _ in A.vm]
        can = [t for t, _ in self.canon_vm]
        assert act == can[len(can) - len(act):], (act, can)
        actl = [d for _, d in A.lgkm]; canl = [d for _, d in can_l]
        assert actl == canl[len(canl) - len(actl):], (actl, canl)
        self.stamp(nm + "Odone")
        A.salu(f"s_add_u32 s{sPH}, s{sPH}, 1")
        A.salu(f"s_cmp_eq_u32 s{sPH}, 2")
        A.salu("s_cbranch_scc1 L_final")
        if blk == 1: A.salu("s_branch L_body0")

    def final(self):
        A = self.A; cfg = self.cfg
        A.label("L_final")
        A.vm = []; A.lgkm = []
        V = self.V
        if cfg.fuse: A.raw("s_load_dwordx4 s[4:7], s[0:1], 80")
        for i in range(2):
            for b in range(5): self.store_po(i, b, cfg.pof_flags)
        if "dbl" in cfg.hack:
            A.salu(f"s_add_u32 s{sPO}, s{sPO}, 0x3000000"); A.salu(f"s_addc_u32 s{sPO+1}, s{sPO+1}, 0")
            for i in range(2):
                for b in range(5): self.store_po(i, b, cfg.pof_flags)
        if cfg.early:
            A.raw("v_mov_b32 v1, s22"); A.raw("v_mov_b32 v2, s23")
            A.raw("s_mov_b64 exec, 1")
            A.raw("global_store_dword v2, v1, s[24:25]")
            A.raw("s_mov_b64 exec, -1")
        if cfg.fuse:
            R = A.raw
            BS = 256 * 71680
            V(f"v_lshrrev_b32 v2, 4, v{vLin0}", 2, [vLin0])
            V("v_and_b32 v4, 15, v2", 4, [2])
            V("v_mul_u32_u24 v4, 1792, v4", 4, [4])
            V("v_bfe_u32 v5, v2, 4, 1", 5, [2])
            V("v_lshl_add_u32 v4, v5, 5, v4", 4, [4, 5])
            V("v_lshrrev_b32 v5, 5, v2", 5, [2])
            V("v_lshl_add_u32 v4, v5, 4, v4", 4, [4, 5])
            R(f"s_lshl_b32 s20, s{sB}, 2")
            V("v_mov_b32 v2, s20", 2, [])
            V("v_mov_b32 v1, 1", 1, [])
            V("v_mov_b32 v3, 0", 3, [])
            R(f"s_mul_i32 s20, s{sB}, {8*71680}")
            R("s_add_u32 s16, s24, s20"); R("s_addc_u32 s17, s25, 0"); R("s_and_b32 s17, s17, 0xffff")
            R(f"s_mov_b32 s18, {BS + 8*71680}"); R("s_mov_b32 s19, 0x20000")
            R(f"s_lshl_b32 s21, 1, s{sHG}")
            R("s_waitcnt vmcnt(0) lgkmcnt(0)")
            R("s_mov_b32 s8, s6"); R("s_and_b32 s9, s7, 0xffff"); R("s_mov_b32 s10, 256"); R("s_mov_b32 s11, 0x20000")
            R("s_mov_b32 s12, s4"); R("s_and_b32 s13, s5, 0xffff"); R(f"s_mov_b32 s14, {32*80*896*2}"); R("s_mov_b32 s15, 0x20000")
            R("s_barrier")
            self.stamp("drain")
            R(f"s_cmp_lg_u32 s{sW}, 0")
            R("s_cbranch_scc1 L_wait")
            R("s_mov_b64 exec, 1")
            R("buffer_atomic_add v1, v2, s[8:11], 0 offen sc0 sc1")
            R("s_waitcnt vmcnt(0)")
            R("v_readfirstlane_b32 s20, v1")
            R("s_nop 3")
            R("s_lshr_b32 s23, s20, 8"); R("s_or_b32 s23, s23, s21")
            R("s_and_b32 s20, s20, 0xff"); R("s_cmp_eq_u32 s20, 7")
            R("s_cbranch_scc1 L_pub")
            R("s_mov_b32 s23, s21")
            R(f"s_mov_b32 s22, {cfg.spin}")
            A.label("L_poll")
            if cfg.slp: R(f"s_sleep {cfg.slp}")
            R(f"buffer_load_dword v1, v2, s[8:11], 0 offen {cfg.pollflags}")
            R("s_waitcnt vmcnt(0)")
            R("v_readfirstlane_b32 s20, v1")
            R("s_nop 3")
            R("s_and_b32 s20, s20, 0xff"); R("s_cmp_eq_u32 s20, 8")
            R("s_cbranch_scc1 L_pub")
            R("s_sub_u32 s22, s22, 1"); R("s_cmp_lg_u32 s22, 0")
            R("s_cbranch_scc1 L_poll")
            R("s_lshl_b32 s20, s21, 8")
            R("v_mov_b32 v1, s20")
            R("buffer_atomic_or v1, v2, s[8:11], 0 offen sc0 sc1")
            R("s_waitcnt vmcnt(0)")
            R("v_readfirstlane_b32 s20, v1")
            R("s_nop 3")
            R("s_and_b32 s20, s20, 0xff"); R("s_cmp_eq_u32 s20, 8")
            R("s_cselect_b32 s23, s21, 0")
            A.label("L_pub")
            R("v_mov_b32 v1, s23")
            R("ds_write_b32 v3, v1")
            R("s_waitcnt lgkmcnt(0)")
            R("s_mov_b64 exec, -1")
            A.label("L_wait")
            R("s_barrier")
            R("ds_read_b32 v1, v3")
            R("s_waitcnt lgkmcnt(0)")
            R("v_readfirstlane_b32 s23, v1")
            R("s_nop 3")
            self.stamp("go")
            A.label("L_share")
            R("s_cmp_eq_u32 s23, 0")
            R("s_cbranch_scc1 L_shares_done")
            R("s_ff1_i32_b32 s20, s23")
            R("s_bitset0_b32 s23, s20")
            R(f"s_lshl_b32 s22, s{sW}, 3"); R("s_add_u32 s22, s22, s20")
            A.vm = []; A.lgkm = []; A.vw = {}
            for r in range(3):
                so = 28 + r
                R(f"s_add_u32 s32, s22, {64*r}")
                R("s_cmp_ge_u32 s32, 70"); R("s_cselect_b32 s33, 1, 0")
                R("s_mul_i32 s34, s33, 70"); R("s_sub_u32 s34, s32, s34")
                R("s_mul_i32 s35, s34, 205"); R("s_lshr_b32 s35, s35, 10")
                R("s_mul_i32 s36, s35, 5"); R("s_sub_u32 s36, s34, s36")
                R(f"s_mul_i32 s37, s{sB}, 80"); R("s_lshl_b32 s36, s36, 4"); R("s_add_u32 s37, s37, s36")
                R("s_mul_i32 s37, s37, 1792"); R("s_mul_i32 s36, s33, 896"); R("s_add_u32 s37, s37, s36")
                R("s_lshl_b32 s35, s35, 6"); R(f"s_add_u32 s{so}, s37, s35")
                R(f"s_mul_i32 s33, s33, {BS}"); R("s_lshl_b32 s34, s34, 10"); R("s_add_u32 s33, s33, s34")
                if r == 2:
                    R("s_cmp_lt_u32 s32, 140")
                    R("s_cselect_b32 s33, s33, 0x40000000"); R(f"s_cselect_b32 s{so}, s{so}, 0x40000000")
                for g in range(8):
                    A.bload(32 + (r * 8 + g) * 4, 4, vLin0, 16, 33, flags=cfg.shflags)
                    if g < 7: R("s_add_u32 s33, s33, 71680")
            for r in range(3):
                for g in range(8):
                    src = 32 + (r * 8 + g) * 4
                    for d in range(4):
                        lo = 16 + 2 * d; hi = lo + 1
                        if g == 0:
                            V(f"v_lshlrev_b32 v{lo}, 16, v{src+d}", lo, [src + d])
                            V(f"v_and_b32 v{hi}, 0xffff0000, v{src+d}", hi, [src + d])
                        else:
                            V(f"v_lshlrev_b32 v6, 16, v{src+d}", 6, [src + d])
                            V(f"v_and_b32 v7, 0xffff0000, v{src+d}", 7, [src + d])
                            A.valu(f"v_pk_add_f32 v[{lo}:{lo+1}], v[{lo}:{lo+1}], v[6:7]", [lo, lo + 1], [lo, lo + 1, 6, 7])
                o = 8 + 4 * (r & 1)
                for d in range(4): V(f"v_cvt_pk_bf16_f32 v{o+d}, v{16+2*d}, v{17+2*d}", o + d, [16 + 2 * d, 17 + 2 * d])
                A.valu(f"v_permlane16_swap_b32 v{o}, v{o+2}", [o, o + 2], [o, o + 2], kind="perm")
                A.valu(f"v_permlane16_swap_b32 v{o+1}, v{o+3}", [o + 1, o + 3], [o + 1, o + 3], kind="perm")
                A.bstore(o, 4, 4, 12, 28 + r)
            A.nop(2)
            R("s_branch L_share")
            A.label("L_shares_done")
        if cfg.stamp:
            A.raw("s_waitcnt vmcnt(0)")
            self.stamp("end")
            A.salu("s_add_u32 s28, s24, 0x8000000")
            A.salu("s_addc_u32 s29, s25, 0")
            A.salu("s_and_b32 s29, s29, 0xffff")
            A.salu("s_mov_b32 s30, 0x100000")
            A.salu("s_mov_b32 s31, 0x20000")
            A.salu(f"s_lshl_b32 s{sT0}, s2, 3")
            A.salu(f"s_add_u32 s{sT0}, s{sT0}, s{sW}")
            A.salu(f"s_lshl_b32 s{sT0}, s{sT0}, 8")
            A.valu(f"v_lshrrev_b32 v0, 2, v{vLin0}", [0], [vLin0])
            A.bstore(vSTAMP, 1, 0, 28, sT0)
            open(cfg.path + ".stamps", "w").write(" ".join(self.stamps))
        if cfg.dbgspan:
            R = A.raw
            R("s_load_dwordx2 s[6:7], s[0:1], 88")
            R("s_waitcnt vmcnt(0)")
            R("s_memrealtime s[4:5]")
            R("s_waitcnt lgkmcnt(0)")
            R("s_mov_b32 s8, s6"); R("s_and_b32 s9, s7, 0xffff"); R("s_mov_b32 s10, 256"); R("s_mov_b32 s11, 0x20000")
            R("s_not_b32 s26, s26")
            R("v_mov_b32 v1, s26"); R("v_mov_b32 v2, s4"); R("v_mov_b32 v3, 0")
            R("s_mov_b64 exec, 1")
            R("buffer_atomic_umax v1, v3, s[8:11], 0 offen sc1")
            R("buffer_atomic_umax v2, v3, s[8:11], 0 offen offset:4 sc1")
        A.label("L_attn_done")
        A.raw("s_endpgm")


def gen_main(cfg):
    g = Gen(cfg)
    if "nomfma" in cfg.hack:
        om = g.A.mfma
        def fake(d, a, b, czero=False):
            g.A._mem_ready(rng(a, 4) + rng(b, 4))
        g.A.mfma = fake
    kn = NAME + "_kernel"
    g.A.label(kn)
    g.setup(); g.body(0); g.body(1); g.final()
    return kn, g.A


def gen_reduce(cfg):
    A = Asm()
    kn = "reduce_kernel"
    R = A.salu
    def V(text, w, r): A.valu(text, w if isinstance(w, list) else [w], r)
    A.label(kn)
    if cfg.span: A.raw("s_memrealtime s[28:29]")
    rw = cfg.rw
    R(f"s_cmp_ge_u32 s2, {4480 // rw}")
    R("s_cbranch_scc1 L_red_done")
    R("s_load_dwordx2 s[4:5], s[0:1], 80")
    R("s_load_dwordx2 s[6:7], s[0:1], 96")
    V("v_lshrrev_b32 v1, 6, v0", 1, [0])
    V("v_and_b32 v2, 63, v0", 2, [0])
    A.rfl(8, 1)
    V("v_lshlrev_b32 v3, 4, v2", 3, [2])
    A.nop(2)
    R(f"s_mul_i32 s9, s2, {rw}"); R("s_add_u32 s9, s9, s8")
    R(f"s_mul_hi_u32 s10, s9, {(1 << 32) // 70 + 1}")
    R("s_mul_i32 s11, s10, 70"); R("s_sub_u32 s11, s9, s11")
    R("s_and_b32 s12, s10, 31")
    R("s_lshr_b32 s13, s10, 5")
    R("s_xor_b32 s14, s12, s13"); R("s_not_b32 s14, s14"); R("s_and_b32 s14, s14, 1")
    R("s_lshl_b32 s15, s12, 6"); R("s_add_u32 s15, s15, s11"); R("s_lshl_b32 s15, s15, 2"); R("s_add_u32 s15, s15, 0x4000000")
    A.raw("s_waitcnt lgkmcnt(0)")
    if cfg.early:
        R("s_cmp_eq_u32 s13, 0"); R("s_cbranch_scc1 L_red_go")
        R("s_cmp_ge_u32 s11, 64"); R("s_cbranch_scc1 L_red_go")
        R("s_load_dword s26, s[6:7], s15")
        A.raw("s_waitcnt lgkmcnt(0)")
        R("s_cmp_eq_u32 s26, 8"); R("s_cbranch_scc1 L_red_end")
        A.label("L_red_go")
    R("s_lshl_b32 s24, s14, 5"); R("s_add_u32 s24, s24, s12"); R(f"s_mul_i32 s24, s24, {8*71680}")
    R("s_add_u32 s16, s6, s24"); R("s_addc_u32 s17, s7, 0"); R("s_and_b32 s17, s17, 0xffff")
    R(f"s_mov_b32 s18, {8*71680}"); R("s_mov_b32 s19, 0x20000")
    R("s_lshl_b32 s15, s11, 10")
    for g in range(8):
        A.bload(16 + g * 4, 4, 3, 16, 15, flags=cfg.rd_flags)
        if g < 7: R("s_add_u32 s15, s15, 71680")
    R("s_mov_b32 s20, s4"); R("s_and_b32 s21, s5, 0xffff"); R(f"s_mov_b32 s22, {32*80*896*2}"); R("s_mov_b32 s23, 0x20000")
    R("s_mul_i32 s25, s11, 205"); R("s_lshr_b32 s25, s25, 10")
    R("s_mul_i32 s26, s25, 5"); R("s_sub_u32 s26, s11, s26")
    R("s_mul_i32 s24, s12, 80"); R("s_lshl_b32 s26, s26, 4"); R("s_add_u32 s24, s24, s26"); R("s_mul_i32 s24, s24, 1792")
    R("s_mul_i32 s26, s14, 896"); R("s_add_u32 s24, s24, s26"); R("s_lshl_b32 s25, s25, 6"); R("s_add_u32 s24, s24, s25")
    V("v_and_b32 v4, 15, v2", 4, [2])
    V("v_mul_u32_u24 v4, 1792, v4", 4, [4])
    V("v_bfe_u32 v5, v2, 4, 1", 5, [2])
    V("v_lshl_add_u32 v4, v5, 5, v4", 4, [4, 5])
    V("v_lshrrev_b32 v5, 5, v2", 5, [2])
    V("v_lshl_add_u32 v4, v5, 4, v4", 4, [4, 5])
    for g in range(8):
        src = 16 + g * 4
        for d in range(4):
            lo = 48 + 2 * d; hi = lo + 1
            if g == 0:
                V(f"v_lshlrev_b32 v{lo}, 16, v{src+d}", lo, [src + d])
                V(f"v_and_b32 v{hi}, 0xffff0000, v{src+d}", hi, [src + d])
            else:
                V(f"v_lshlrev_b32 v6, 16, v{src+d}", 6, [src + d])
                V(f"v_and_b32 v7, 0xffff0000, v{src+d}", 7, [src + d])
                A.valu(f"v_pk_add_f32 v[{lo}:{lo+1}], v[{lo}:{lo+1}], v[6:7]", [lo, lo + 1], [lo, lo + 1, 6, 7])
    for d in range(4): V(f"v_cvt_pk_bf16_f32 v{8+d}, v{48+2*d}, v{49+2*d}", 8 + d, [48 + 2 * d, 49 + 2 * d])
    A.valu("v_permlane16_swap_b32 v8, v10", [8, 10], [8, 10], kind="perm")
    A.valu("v_permlane16_swap_b32 v9, v11", [9, 11], [9, 11], kind="perm")
    A.bstore(8, 4, 4, 20, 24)
    A.label("L_red_end")
    if cfg.span:
        A.raw("s_waitcnt vmcnt(0)")
        A.raw("s_memrealtime s[30:31]")
        A.raw("s_waitcnt lgkmcnt(0)")
        A.raw("v_mov_b32 v8, s28"); A.raw("v_mov_b32 v9, s30"); A.raw("v_mov_b32 v10, 0")
        R("s_add_u32 s16, s6, 0x8100000"); R("s_addc_u32 s17, s7, 0"); R("s_and_b32 s17, s17, 0xffff")
        R("s_mov_b32 s18, 0x100000"); R("s_mov_b32 s19, 0x20000"); R("s_lshl_b32 s15, s9, 3")
        A.raw("buffer_store_dwordx2 v[8:9], v10, s[16:19], s15 offen")
    A.label("L_red_done")
    A.raw("s_endpgm")
    return kn, A


def build(cfg, path):
    cfg.path = path
    hdr = open("cdna_kernels/" + NAME + ".s.ref").read().split("\n")
    head = [l for l in hdr if l.startswith(";") and "@launch" not in l and "Override launch" not in l and "grid=ceil" not in l]
    k1, A1 = gen_main(cfg)
    ks = [(k1, A1)]
    out = "\n".join(head) + "\n"
    if cfg.listfmt: out += f"; @launch kernel={k1} grid=(256,1,1) block=(512,1,1) lds=163840\n"
    else: out += f"; @launch grid=(256,1,1) block=(512,1,1) lds=163840\n"
    if not cfg.fuse:
        k2, A2 = gen_reduce(cfg)
        ks.append((k2, A2))
        out += f"; @launch kernel={k2} grid=({4480 // cfg.rw},1,1) block=({64 * cfg.rw},1,1) lds=0\n"
    out += '.amdgcn_target "amdgcn-amd-amdhsa--gfx950"\n.text\n'
    for k, A in ks:
        out += f".globl {k}\n.p2align 8\n.type {k},@function\n" + A.text()
    out += '.section .rodata,"a"\n.p2align 6\n'
    out += kernel_desc(k1, 256, 102, 256)
    if not cfg.fuse: out += ".p2align 6\n" + kernel_desc(k2, 56, 32, 56)
    open(path, "w").write(out)
    print(path, "mfma", A1.nmfma, "lines", len(A1.lines))

if __name__ == "__main__":
    cfg = Cfg()
    for a in sys.argv[2:]:
        k, v = a.split("=")
        setattr(cfg, k, type(getattr(cfg, k))(v))
    if cfg.span: cfg.stamp = 1; cfg.rt = 1
    build(cfg, sys.argv[1] if len(sys.argv) > 1 else "cdna_kernels/" + NAME + ".s")
```

```python
import sys, struct
from collections import deque
from asmlib import *

NAME = "concat_heads__gqa_block_cached__mha_block_cached__near_ridge"

class Cfg:
    R = 5
    kv_flags = "nt"
    w_flags = ""
    x_flags = ""
    po_flags = "sc1"
    pof_flags = "sc1"
    rd_flags = ""
    rel_pos = 8
    s_rel_pos = 5
    stamp = 0
    order = 10
    pre = 0
    krot = 1
    kpA = 0
    kpB = 0
    kp_per = 2
    kp_start = 0
    relx = 5
    ypos = 10
    npump = 2
    prio = 0
    stpos = 'b1'
    tlb = 0
    only = 0
    rt = 0
    fuse = 0
    rw = 2
    spin = 3000
    slp = 0
    shflags = 'sc1'
    pollflags = 'sc0 sc1'
    listfmt = 1
    span = 0
    fair = 1
    fairs = 0
    kst = ''
    xpos = '0,12,24'
    st0 = 1
    pro = 1
    cond = 1
    early = 0
    w7 = 1
    dbgspan = 0
    kpf = 7
    bal = 1
    soff = 0
    minor = 8
    touch = ''
    tsh = 16
    qrm = -1
    qrs = 0
    stS = -1
    stA = '0,2'
    stB = '0,2'
    xk = ''
    x2f = ''
    noearly = 0
    epos = '4,8'
    ecomp = 11
    kpat = '2,5,8,11'
    kpn = 4
    kpbar = 1
    hack = ''
    dbgstart = 0
    tlbk = 0
    xsplit = '4,4,2'
    late = 1
    sm_per = 2

def f32bits(x):
    return struct.unpack("<I", struct.pack("<f", x))[0]

BREG = 40960
PS = 73728
RING0 = 81920
RINGSZ = 10240

ACC = 0
FR = 160
def A_tr(par, a): return FR + par * 16 + a * 4
def B_tr(b): return FR + 32 + 4 * b
def B_s(s, b): return FR + (s * 5 + b) * 4
def A_s(par, s): return FR + 40 + par * 8 + s * 4
_v = 216
def _alloc(n=1):
    global _v
    r = _v; _v += n
    assert _v <= 256
    return r
vKR = _alloc(2); vK = _alloc(2); vV = _alloc(2); vX = _alloc(2)
vLinG = _alloc(); vQR = _alloc(); vSW = _alloc(); vSR = _alloc(); vPW = _alloc(); vRW = _alloc(); vLin0 = _alloc()
vQW = _alloc(); vOW = _alloc()
vTR = _alloc(4); vXR = _alloc(4); vXRh = _alloc(2); vWQ = _alloc(2); vWO = _alloc(2); vLin1 = _alloc()
vM = _alloc(5); vT0 = _alloc(); vT1 = _alloc()
BORROW = [vTR + 1, vTR + 2, vTR + 3, vXR + 1, vXR + 2, vXR + 3, vXRh, vXRh + 1, vWQ + 1, vWO + 1, vLin1]
assert _v <= 255
vSTAMP = 255

sX = 28; sWQ = 32; sNX = 36; sNWQ = 40; sPO = 44
def sKV(blk, k): return 48 + blk * 12 + k * 4
def sPOB(blk): return 72 + blk * 2
sRING = 76; sOFF = 77; sC = 78
sNC = 80; sXM0 = 81; sPOW = 82; sW = 83; sJ = 84; sG = 85; sB = 86; sHG = 87
sT0 = 88; sT1 = 89; sT2 = 90; sT3 = 91; sPH = 92; sGR = 93
sCOL = 94
sWQK = 98; sWOK = 99; sSTI = 100; sSIG = 101


class Gen:
    def __init__(self, cfg):
        self.cfg = cfg
        self.A = Asm()
        self.stamps = []

    def V(self, text, w, r):
        self.A.valu(text, w if isinstance(w, list) else [w], r)

    def stamp(self, name):
        if not self.cfg.stamp: return
        if self.cfg.span and name != "end": return
        A = self.A
        A.raw("s_memrealtime s[26:27]" if self.cfg.rt else "s_memtime s[26:27]")
        A.raw("s_waitcnt lgkmcnt(0)")
        A.lgkm = []
        A.raw(f"s_max_i32 m0, s{sSTI}, 0")
        A.raw(f"s_add_u32 s{sSTI}, s{sSTI}, 1")
        A.raw(f"s_min_i32 s{sSTI}, s{sSTI}, 62")
        A.raw(f"v_writelane_b32 v{vSTAMP}, s26, m0")
        self.m0slot = None
        self.stamps.append(name)

    def bar(self, name=None):
        self.A.barrier()
        if name: self.stamp(name)

    def setup(self):
        A = self.A; V = self.V; cfg = self.cfg
        if cfg.rt: A.raw("s_memrealtime s[70:71]")
        if cfg.dbgspan: A.raw("s_memrealtime s[26:27]")
        A.salu("s_cmp_ge_u32 s2, 256")
        A.salu("s_cbranch_scc1 L_attn_done")
        if cfg.only:
            A.salu(f"s_and_b32 s3, s2, {cfg.only}")
            A.salu("s_cbranch_scc1 L_attn_done")
        A.salu("s_load_dwordx16 s[4:19], s[0:1], 0")
        A.salu("s_load_dwordx4 s[20:23], s[0:1], 64")
        A.salu("s_load_dwordx2 s[24:25], s[0:1], 96")
        vL = 4; vG = 5; vQ = 6; vTmp = 7
        t1 = 1; t2 = 2; t3 = 3
        V(f"v_lshrrev_b32 v{vTmp}, 6, v0", vTmp, [0])
        V(f"v_and_b32 v{vL}, 63, v0", vL, [0])
        A.rfl(sW, vTmp)
        V(f"v_lshrrev_b32 v{vG}, 4, v{vL}", vG, [vL])
        V(f"v_and_b32 v{vQ}, 15, v{vL}", vQ, [vL])
        A.nop(2)
        A.salu(f"s_and_b32 s{sJ}, s{sW}, 3")
        A.salu(f"s_lshr_b32 s{sG}, s{sW}, 2")
        A.salu(f"s_lshr_b32 s{sB}, s2, 3")
        A.salu(f"s_and_b32 s{sHG}, s2, 7")
        A.salu(f"s_mul_i32 s{sRING}, s{sW}, {RINGSZ}")
        A.salu(f"s_add_u32 s{sRING}, s{sRING}, {RING0}")
        A.salu(f"s_mul_i32 s{sXM0}, s{sG}, 20480")
        A.salu(f"s_lshl_b32 s{sT0}, s{sJ}, 10")
        A.salu(f"s_add_u32 s{sXM0}, s{sXM0}, s{sT0}")
        V(f"v_and_b32 v{t1}, 7, v{vL}", t1, [vL])
        V(f"v_lshlrev_b32 v{t3}, 1, v{vG}", t3, [vG])
        V(f"v_xor_b32 v{t3}, v{t3}, v{t1}", t3, [t3, t1])
        V(f"v_lshlrev_b32 v{t3}, 4, v{t3}", t3, [t3])
        V(f"v_lshrrev_b32 v{t2}, 3, v{vL}", t2, [vL])
        A.salu(f"s_lshl_b32 s{sT0}, s{sJ}, 7")
        V(f"v_lshrrev_b32 v{vTmp}, 5, v{vL}", vTmp, [vL])
        V(f"v_lshlrev_b32 v{vTmp}, 3, v{vTmp}", vTmp, [vTmp])
        V(f"v_and_b32 v{vWQ}, 3, v{t2}", vWQ, [t2])
        V(f"v_add_u32 v{vTmp}, v{vTmp}, v{vWQ}", vTmp, [vTmp, vWQ])
        V(f"v_lshl_add_u32 v{vWQ}, v{vTmp}, 13, v{t3}", vWQ, [vTmp, t3])
        V(f"v_add_u32 v{vWQ}, s{sT0}, v{vWQ}", vWQ, [vWQ])
        V(f"v_add_u32 v{vWQ+1}, {16*8192-1024}, v{vWQ}", vWQ + 1, [vWQ])
        if cfg.qrm >= 0:
            A.salu(f"s_lshr_b32 s{sT3}, s{sB}, 1")
            A.salu(f"s_and_b32 s{sT3}, s{sT3}, {cfg.qrm}")
            A.salu(f"s_lshl_b32 s{sT3}, s{sT3}, {cfg.qrs}")
        elif cfg.krot == 2:
            A.salu(f"s_mul_i32 s{sT3}, s{sB}, 7")
            A.salu(f"s_lshr_b32 s{sT3}, s{sT3}, 4")
        elif cfg.krot:
            A.salu(f"s_lshr_b32 s{sT3}, s{sB}, 1")
            A.salu(f"s_min_u32 s{sT3}, s{sT3}, 13")
        else:
            A.salu(f"s_mov_b32 s{sT3}, 0")
        A.salu(f"s_lshl_b32 s{sWQK}, s{sT3}, 18")
        A.salu(f"s_sub_u32 s{sWQK}, s{sWQK}, 262144")
        A.salu(f"s_cselect_b32 s{sWQK}, {13*262144}, s{sWQK}")
        A.salu(f"s_lshl_b32 s{sT1}, s{sJ}, 2")
        A.salu(f"s_lshl_b32 s{sT2}, s{sG}, 8")
        A.salu(f"s_lshl_b32 s{sT3}, s{sT3}, 6")
        A.salu(f"s_add_u32 s{sT2}, s{sT2}, s{sT3}")
        V(f"v_add_u32 v8, s{sT1}, v{vG}", 8, [vG])
        V(f"v_xor_b32 v9, v8, v{vQ}", 9, [8, vQ])
        V(f"v_lshl_add_u32 v9, v9, 4, s{sT2}", 9, [9])
        V(f"v_mul_u32_u24 v8, 896, v8", 8, [8])
        for pair in range(2):
            if pair: V(f"v_add_u32 v9, 512, v9", 9, [9])
            V(f"v_subrev_u32 v10, 896, v9", 10, [9])
            V(f"v_min_u32 v10, v10, v9", 10, [10, 9])
            V(f"v_add_u32 v{vX+pair}, v8, v10", vX + pair, [8, 10])
        V(f"v_subrev_u32 v9, s{sT3}, v9", 9, [9])
        V(f"v_mov_b32 v10, 0x4000000", 10, [])
        V(f"v_cmp_gt_u32 vcc, 896, v9", [], [9])
        A.nop(2)
        V(f"v_cndmask_b32 v{vX+1}, v10, v{vX+1}, vcc", vX + 1, [10, vX + 1])
        A.raw("s_waitcnt lgkmcnt(0)")
        def fin(srd, off_s, nrec):
            A.salu(f"s_add_u32 s{srd}, s{srd}, s{off_s}")
            A.salu(f"s_addc_u32 s{srd+1}, s{srd+1}, 0")
            A.salu(f"s_and_b32 s{srd+1}, s{srd+1}, 0xffff")
            A.salu(f"s_mov_b32 s{srd+2}, {nrec}")
            A.salu(f"s_mov_b32 s{srd+3}, 0x20000")
        if cfg.order == 2: A.salu(f"s_and_b32 s3, s{sB}, 1")
        elif cfg.order == 3: A.salu(f"s_and_b32 s3, s{sHG}, 1")
        elif cfg.order == 7:
            A.salu(f"s_not_b32 s3, s{sHG}"); A.salu("s_and_b32 s3, s3, 1")
        elif cfg.order == 8: A.salu(f"s_bfe_u32 s3, s{sHG}, 0x10001")
        elif cfg.order == 9: A.salu(f"s_bfe_u32 s3, s{sHG}, 0x10002")
        elif cfg.order == 11:
            A.salu(f"s_mul_i32 s3, s{sB}, {cfg.minor}"); A.salu("s_and_b32 s3, s3, 31"); A.salu(f"s_cmp_lt_u32 s3, {cfg.minor}")
            A.salu("s_cselect_b32 s3, 1, 0"); A.salu(f"s_xor_b32 s3, s3, s{sHG}"); A.salu("s_and_b32 s3, s3, 1")
        elif cfg.order == 10:
            A.salu("s_getreg_b32 s3, hwreg(HW_REG_XCC_ID)"); A.salu("s_and_b32 s3, s3, 1")
        elif cfg.order == 6:
            A.salu(f"s_xor_b32 s3, s{sB}, s{sHG}"); A.salu("s_and_b32 s3, s3, 1")
        elif cfg.order == 4:
            A.salu(f"s_and_b32 s3, s{sB}, 7"); A.salu("s_cmp_lt_u32 s3, 3"); A.salu("s_cselect_b32 s3, 1, 0")
        elif cfg.order == 5:
            A.salu(f"s_and_b32 s3, s{sB}, 7"); A.salu("s_cmp_lt_u32 s3, 5"); A.salu("s_cselect_b32 s3, 1, 0")
        else: A.salu(f"s_mov_b32 s3, {cfg.order}")
        A.salu("s_cmp_eq_u32 s3, 1")
        A.salu(f"s_cselect_b64 s[{sX}:{sX+1}], s[14:15], s[4:5]")
        A.salu(f"s_cselect_b64 s[{sWQ}:{sWQ+1}], s[20:21], s[10:11]")
        A.salu(f"s_cselect_b64 s[{sNX}:{sNX+1}], s[4:5], s[14:15]")
        A.salu(f"s_cselect_b64 s[{sNWQ}:{sNWQ+1}], s[10:11], s[20:21]")
        A.salu(f"s_mul_i32 s{sT2}, s{sB}, 71680")
        fin(sX, sT2, 71680)
        A.salu(f"s_lshl_b32 s{sT1}, s{sHG}, 1")
        A.salu(f"s_add_u32 s{sT1}, s{sT1}, s{sG}")
        A.salu(f"s_lshl_b32 s{sT1}, s{sT1}, 9")
        A.salu(f"s_sub_u32 s{sT3}, {448*8192}, s{sT1}")
        fin(sWQ, sT1, f"s{sT3}")
        if cfg.stamp:
            V(f"v_mov_b32 v{vSTAMP}, 0", vSTAMP, [])
            A.salu(f"s_mov_b32 s{sSTI}, {-cfg.soff}")
        if cfg.rt: A.raw(f"v_writelane_b32 v{vSTAMP}, s70, 63")
        self.stamp("start")
        self.m0slot = None
        for n in range(2):
            for pc in range(2): self.slot_dma("WQ", n & 1, ("WQ", n), n, pc, 0)
        if cfg.pro & 1: A.barrier()
        for t in range(5): self.x_dma(0, t)
        if cfg.pro & 2: A.barrier()
        for t in range(5):
            if cfg.cond: self.x_dma(1, t)
            else: self.x_load(1, t)
        fin(sNX, sT2, 71680)
        fin(sNWQ, sT1, f"s{sT3}")
        assert cfg.bal and not cfg.early and not cfg.fuse and not cfg.touch
        A.salu(f"s_mul_i32 s{sPOW}, s{sW}, 10240")
        A.salu(f"s_lshl_b32 s{sSIG}, s{sJ}, 13")
        A.salu(f"s_add_u32 s{sSIG}, s{sSIG}, 40960")
        A.salu(f"s_cmp_eq_u32 s{sG}, 0")
        A.salu(f"s_cselect_b32 s{sPOW}, s{sPOW}, s{sSIG}")
        A.salu(f"s_cselect_b32 s{sSIG}, 10, 8")
        A.salu(f"s_lshl_b32 s{sSIG}, s{sSIG}, 10")
        A.salu(f"s_add_u32 s{sSIG}, s{sSIG}, s{sPOW}")
        c = 1.4426950408889634 / 16.0
        A.salu(f"s_mov_b32 s{sC}, {f32bits(c):#x}")
        A.salu(f"s_mov_b32 s{sC+1}, {f32bits(c):#x}")
        A.salu(f"s_mov_b32 s{sNC}, {f32bits(-c):#x}")
        A.salu(f"s_mov_b32 s{sPH}, 0")
        A.salu(f"s_mul_i32 s{sGR}, s{sG}, {4*RINGSZ}")
        for jj in range(4):
            A.salu(f"s_xor_b32 s{sCOL+jj}, s{sJ}, {jj}")
            A.salu(f"s_lshl_b32 s{sCOL+jj}, s{sCOL+jj}, 7")
        V(f"v_lshl_add_u32 v{vV}, v{t2}, 9, v{t3}", vV, [t2, t3])
        V(f"v_add_u32 v{vV}, s{sT0}, v{vV}", vV, [vV])
        V(f"v_add_u32 v{vV+1}, {4096-1024}, v{vV}", vV + 1, [vV])
        A.salu(f"s_lshl_b32 s{sT1}, s{sJ}, 7")
        A.salu(f"s_mul_i32 s{sT2}, s{sJ}, 96")
        A.salu(f"s_add_u32 s{sT2}, s{sT2}, 512")
        A.salu(f"s_cmp_eq_u32 s{sG}, 0")
        A.salu(f"s_cselect_b32 s{sT1}, s{sT1}, s{sT2}")
        A.salu(f"s_cselect_b32 s{sT2}, 64, 48")
        A.salu(f"s_lshl_b32 s{sT2}, s{sT2}, 1")
        V(f"v_mul_u32_u24 v{vWO}, 896, v{t2}", vWO, [t2])
        V(f"v_add3_u32 v{vWO}, v{vWO}, v{t3}, s{sT1}", vWO, [vWO, t3])
        V(f"v_mov_b32 v8, 0x4000000", 8, [])
        V(f"v_cmp_gt_u32 vcc, s{sT2}, v{t3}", [], [t3])
        A.nop(2)
        V(f"v_cndmask_b32 v{vWO}, v8, v{vWO}, vcc", vWO, [8, vWO])
        V(f"v_add_u32 v{vWO+1}, {8*896-1024}, v{vWO}", vWO + 1, [vWO])
        V(f"v_xor_b32 v{t1}, v{t1}, v{vG}", t1, [t1, vG])
        V(f"v_lshlrev_b32 v{t1}, 4, v{t1}", t1, [t1])
        V(f"v_lshl_add_u32 v{vK}, v{t2}, 9, v{t1}", vK, [t2, t1])
        A.salu(f"s_lshl_b32 s{sT1}, s{sJ}, 16")
        V(f"v_add_u32 v{vK}, s{sT1}, v{vK}", vK, [vK])
        V(f"v_xor_b32 v{vK+1}, 64, v{vK}", vK + 1, [vK])
        V(f"v_add_u32 v{vK+1}, {4096-1024}, v{vK+1}", vK + 1, [vK + 1])
        V(f"v_lshrrev_b32 v{t1}, 2, v{vL}", t1, [vL])
        V(f"v_lshlrev_b32 v{t1}, 7, v{t1}", t1, [t1])
        V(f"v_bfe_u32 v{t2}, v{vL}, 3, 2", t2, [vL])
        V(f"v_lshl_add_u32 v{t1}, v{t2}, 5, v{t1}", t1, [t1, t2])
        V(f"v_and_b32 v{t2}, 3, v{vL}", t2, [vL])
        V(f"v_lshl_add_u32 v{t1}, v{t2}, 3, v{t1}", t1, [t1, t2])
        V(f"v_add_u32 v{vTR}, s{sRING}, v{t1}", vTR, [t1])
        for a in range(1, 4):
            V(f"v_xor_b32 v{vTR+a}, {a << 5}, v{vTR}", vTR + a, [vTR])
        V(f"v_lshrrev_b32 v{t1}, 1, v{vQ}", t1, [vQ])
        V(f"v_xor_b32 v{t1}, v{t1}, v{vG}", t1, [t1, vG])
        V(f"v_lshlrev_b32 v{t1}, 4, v{t1}", t1, [t1])
        V(f"v_lshl_add_u32 v{t1}, v{vQ}, 7, v{t1}", t1, [t1, vQ])
        V(f"v_add_u32 v{vKR}, s{sRING}, v{t1}", vKR, [t1])
        V(f"v_xor_b32 v{vKR+1}, 64, v{vKR}", vKR + 1, [vKR])
        V(f"v_xor_b32 v{t1}, v{vG}, v{vQ}", t1, [vG, vQ])
        V(f"v_lshlrev_b32 v{t1}, 4, v{t1}", t1, [t1])
        V(f"v_lshl_add_u32 v{vXR}, v{vQ}, 8, v{t1}", vXR, [vQ, t1])
        for u in range(1, 4):
            V(f"v_xor_b32 v{vXR+u}, {u << 6}, v{vXR}", vXR + u, [vXR])
        for u in range(2):
            V(f"v_add_u32 v{vXRh+u}, 61440, v{vXR+u}", vXRh + u, [vXR + u])
        V(f"v_lshlrev_b32 v{vLin0}, 4, v{vL}", vLin0, [vL])
        V(f"v_add_u32 v{vLin1}, {BREG}, v{vLin0}", vLin1, [vLin0])
        A.salu(f"s_mul_i32 s{sT1}, s{sG}, {BREG}")
        A.salu(f"s_mul_i32 s{sT2}, s{sJ}, 10240")
        A.salu(f"s_add_u32 s{sT2}, s{sT2}, s{sT1}")
        V(f"v_add_u32 v{vLinG}, s{sT1}, v{vLin0}", vLinG, [vLin0])
        A.salu(f"s_mul_i32 s{sT3}, s{sJ}, 5120")
        V(f"v_add_u32 v{vPW}, s{sT3}, v{vLinG}", vPW, [vLinG])
        V(f"v_lshrrev_b32 v{t1}, 1, v{vG}", t1, [vG])
        V(f"v_lshlrev_b32 v{t1}, 8, v{t1}", t1, [t1])
        V(f"v_and_b32 v{t2}, 1, v{vG}", t2, [vG])
        V(f"v_lshl_add_u32 v{t1}, v{t2}, 9, v{t1}", t1, [t1, t2])
        V(f"v_lshl_add_u32 v{t1}, v{vQ}, 4, v{t1}", t1, [t1, vQ])
        V(f"v_add_u32 v{vQW}, s{sT2}, v{t1}", vQW, [t1])
        V(f"v_lshlrev_b32 v{t1}, 3, v{vQ}", t1, [vQ])
        V(f"v_add_u32 v{vSW}, s{sRING}, v{t1}", vSW, [t1])
        A.salu(f"s_add_u32 s{sT1}, s{sGR}, {RING0}")
        V(f"v_add_u32 v{vSR}, s{sT1}, v{t1}", vSR, [t1])
        V(f"v_add_u32 v{vRW}, s{sXM0}, v{vLin0}", vRW, [vLin0])
        if cfg.krot:
            A.salu(f"s_lshr_b32 s{sT3}, s{sB}, 1")
            A.salu(f"s_and_b32 s{sT3}, s{sT3}, 14")
        else:
            A.salu(f"s_mov_b32 s{sT3}, 0")
        A.salu(f"s_lshl_b32 s{sT1}, s{sW}, 1")
        A.salu(f"s_sub_u32 s{sT1}, s{sT1}, s{sT3}")
        A.salu(f"s_and_b32 s{sT1}, s{sT1}, 15")
        A.salu(f"s_mul_i32 s{sT1}, s{sT1}, 5120")
        V(f"v_add_u32 v{vOW}, s{sT1}, v{vLin0}", vOW, [vLin0])
        A.salu(f"s_add_u32 s{sT3}, s{sT3}, 15")
        A.salu(f"s_and_b32 s{sT3}, s{sT3}, 15")
        A.salu(f"s_mul_i32 s{sWOK}, s{sT3}, {32*896}")
        A.salu(f"s_lshl_b32 s{sT1}, s{sB}, 3")
        A.salu(f"s_add_u32 s{sT1}, s{sT1}, s{sHG}")
        A.salu(f"s_lshl_b32 s{sT2}, s{sT1}, 18")
        A.salu(f"s_lshl_b32 s{sT3}, s{sG}, 13")
        A.salu(f"s_add_u32 s{sT2}, s{sT2}, s{sT3}")
        A.salu(f"s_sub_u32 s{sT3}, 262144, s{sT3}")
        A.salu(f"s_mov_b64 s[{sKV(0,0)}:{sKV(0,0)+1}], s[6:7]")
        A.salu(f"s_mov_b64 s[{sKV(0,1)}:{sKV(0,1)+1}], s[8:9]")
        fin(sKV(0, 0), sT2, f"s{sT3}"); fin(sKV(0, 1), sT2, f"s{sT3}")
        A.salu(f"s_lshl_b32 s{sT2}, s{sT1}, 1")
        A.salu(f"s_add_u32 s{sT2}, s{sT2}, s{sG}")
        A.salu(f"s_lshl_b32 s{sT2}, s{sT2}, 18")
        A.salu(f"s_mov_b64 s[{sKV(1,0)}:{sKV(1,0)+1}], s[16:17]")
        A.salu(f"s_mov_b64 s[{sKV(1,1)}:{sKV(1,1)+1}], s[18:19]")
        fin(sKV(1, 0), sT2, 262144); fin(sKV(1, 1), sT2, 262144)
        A.salu(f"s_mul_i32 s{sT2}, s{sHG}, {512*896}")
        A.salu(f"s_mov_b64 s[{sKV(0,2)}:{sKV(0,2)+1}], s[12:13]")
        A.salu(f"s_mov_b64 s[{sKV(1,2)}:{sKV(1,2)+1}], s[22:23]")
        fin(sKV(0, 2), sT2, 512 * 896); fin(sKV(1, 2), sT2, 512 * 896)
        for blk in range(2):
            A.salu(f"s_add_u32 s{sT2}, s{sT1}, {blk*256}")
            A.salu(f"s_mul_i32 s{sT2}, s{sT2}, {PS}")
            A.salu(f"s_add_u32 s{sPOB(blk)}, s24, s{sT2}")
            A.salu(f"s_addc_u32 s{sPOB(blk)+1}, s25, 0")
            A.salu(f"s_and_b32 s{sPOB(blk)+1}, s{sPOB(blk)+1}, 0xffff")
        A.salu(f"s_mov_b64 s[{sPO}:{sPO+1}], s[{sPOB(0)}:{sPOB(0)+1}]")
        A.salu(f"s_mov_b32 s{sPO+2}, 0")
        A.salu(f"s_mov_b32 s{sPO+3}, 0x20000")
        if "now" in cfg.hack:
            for r in (sWQ, sNWQ, sKV(0, 2), sKV(1, 2)): A.salu(f"s_mov_b32 s{r+2}, 0")
        if "nokv" in cfg.hack:
            for r in (sKV(0, 0), sKV(0, 1), sKV(1, 0), sKV(1, 1)): A.salu(f"s_mov_b32 s{r+2}, 0")
        if "nox" in cfg.hack:
            A.salu(f"s_mov_b32 s{sNX+2}, 0")
        if cfg.prio:
            A.salu(f"s_cmp_eq_u32 s{sG}, 0")
            A.salu("s_cbranch_scc1 L_noprio")
            A.salu(f"s_setprio {cfg.prio}")
            A.label("L_noprio")
        if cfg.early:
            assert cfg.order == 2
            R_ = A.salu
            R_("s_load_dwordx4 s[4:7], s[0:1], 80")
            R_(f"s_lshl_b32 s{sT0}, s3, 5"); R_(f"s_add_u32 s{sT0}, s{sT0}, s{sB}")
            R_(f"s_mul_i32 s{sT0}, s{sT0}, {8*71680}")
            R_(f"s_add_u32 s16, s24, s{sT0}"); R_("s_addc_u32 s17, s25, 0"); R_("s_and_b32 s17, s17, 0xffff")
            R_(f"s_mov_b32 s18, {8*71680}"); R_("s_mov_b32 s19, 0x20000")
            R_(f"s_lshl_b32 s{sT0}, s{sHG}, 3"); R_(f"s_add_u32 s{sT0}, s{sT0}, s{sW}")
            R_(f"s_lshl_b32 s20, s{sT0}, 10")
            R_(f"s_lshl_b32 s23, s{sB}, 6"); R_(f"s_add_u32 s23, s23, s{sT0}"); R_("s_lshl_b32 s23, s23, 2")
            R_("s_add_u32 s23, s23, 0x4000000")
            R_(f"s_mul_i32 s{sT1}, s{sT0}, 205"); R_(f"s_lshr_b32 s{sT1}, s{sT1}, 10")
            R_(f"s_mul_i32 s{sT2}, s{sT1}, 5"); R_(f"s_sub_u32 s{sT2}, s{sT0}, s{sT2}")
            R_(f"s_mul_i32 s21, s{sB}, 80"); R_(f"s_lshl_b32 s{sT2}, s{sT2}, 4"); R_(f"s_add_u32 s21, s21, s{sT2}")
            R_("s_mul_i32 s21, s21, 1792"); R_(f"s_mul_i32 s{sT2}, s3, 896"); R_(f"s_add_u32 s21, s21, s{sT2}")
            R_(f"s_lshl_b32 s{sT1}, s{sT1}, 6"); R_(f"s_add_u32 s21, s21, s{sT1}")
            R_("s_mov_b32 s22, 0")
            R_(f"s_cmp_eq_u32 s{sW}, 0"); R_(f"s_cselect_b32 s{sSIG}, 1, 2")
            R_(f"s_lshl_b32 s{sT0}, s{sB}, 2")
            V(f"v_mov_b32 v{vT1}, s{sT0}", vT1, [])
            V(f"v_mov_b32 v{vT0}, 1", vT0, [])
        if cfg.touch:
            V(f"v_lshlrev_b32 v11, {cfg.tsh - 4}, v{vLin0}", 11, [vLin0])
            for blk in range(2):
                A.salu(f"s_mov_b64 s[{4+4*blk}:{5+4*blk}], s[{sPOB(blk)}:{sPOB(blk)+1}]")
                A.salu(f"s_mov_b32 s{6+4*blk}, 71680"); A.salu(f"s_mov_b32 s{7+4*blk}, 0x20000")
            srds = {"p": [4, 8], "x": [sNX], "q": [sNWQ], "o": [sKV(0, 2), sKV(1, 2)], "k": [sKV(0, 0), sKV(0, 1), sKV(1, 0), sKV(1, 1)]}
            L = []
            for ch in cfg.touch:
                for r in srds[ch]:
                    L.append(f"buffer_load_dword v{12 + len(L)}, v11, s[{r}:{r+3}], 0 offen nt")
            self.cond_block(f"s_cmp_eq_u32 s{sJ}, 0", L)
        if cfg.kpf:
            assert not cfg.early and cfg.cond
            V(f"v_add_u32 v{vT0}, s{sRING}, v{vLin0}", vT0, [vLin0])
            L = []
            for i in range(cfg.kpf):
                u = 6 + i; jj, kt = u // 4, u % 4
                L.append(f"s_add_u32 s{sT0}, s{sCOL+jj}, {kt * 8192}")
                for pc in range(2):
                    r = ACC + 100 + 8 * i + 4 * pc
                    L.append(f"buffer_load_dwordx4 v[{r}:{r+3}], v{vK+pc}, s[{sKV(1,0)}:{sKV(1,0)+3}], s{sT0} offen" + (" offset:1024" if pc else "") + f" {cfg.kv_flags}")
            self.cond_block("s_cmp_eq_u32 s3, 1", L)
        for n in range(2, 5):
            for pc in range(2): self.slot_dma("WQ", n & 1, ("WQ", n), n, pc, 0)
        if cfg.early:
            A.raw("s_waitcnt lgkmcnt(0)")
            R_("s_mov_b32 s8, s6"); R_("s_and_b32 s9, s7, 0xffff"); R_("s_mov_b32 s10, 256"); R_("s_mov_b32 s11, 0x20000")
            R_("s_mov_b32 s12, s4"); R_("s_and_b32 s13, s5, 0xffff"); R_(f"s_mov_b32 s14, {32*80*896*2}"); R_("s_mov_b32 s15, 0x20000")
        A.wait_vm_tag(("WQ", 1))
        for y in range(2):
            for a in range(4):
                A.ds_read("ds_read_b64_tr_b16", A_tr(0, a) + 2 * y, 2, vTR + a, y * 2048)
        A.wait_vm_tag(("x", 0))
        A.wait_lgkm_all()
        self.bar("AB1")
        for b in range(5): A.ds_read("ds_read_b128", B_tr(b), 4, vXR, b * 4096)
        for n in range(5, 7):
            for pc in range(2): self.slot_dma("WQ", n & 1, ("WQ", n), n % 5, pc, 0)
        A.wait_lgkm_all()
        self.canon_vm = [e for e in A.vm if e[0][0] == "WQ"]
        assert [e[0][1] for e in self.canon_vm] == [2, 2, 3, 3, 4, 4, 5, 5, 6, 6]
        self.canon_lgkm = None
        A.salu("s_cmp_eq_u32 s3, 1")
        A.salu("s_cbranch_scc1 L_body1")

    def wq_off(self, n):
        return n & 1

    def x_dma(self, pair, t):
        A = self.A
        A.salu(f"s_mov_b32 s{sOFF}, {t * 14336}")
        A.salu(f"s_add_u32 m0, s{sXM0}, {pair * 40960 + t * 4096}", m0=True)
        self.m0slot = None
        A.dma(vX + pair, sX, sOFF, flags=self.cfg.x_flags, tag=("x", pair))

    def skip_begin(self, ph):
        self.nlab = getattr(self, "nlab", 0) + 1
        self.A.salu(f"s_cmp_eq_u32 s{sPH}, {ph}")
        self.A.salu(f"s_cbranch_scc1 L_sk{self.nlab}")

    def skip_end(self):
        self.A.label(f"L_sk{self.nlab}")

    def cond_block(self, cmp, lines):
        self.nlab = getattr(self, "nlab", 0) + 1
        A = self.A
        A.salu(cmp)
        A.salu(f"s_cbranch_scc0 L_sk{self.nlab}")
        for l in lines: A.raw(l, 0)
        A.label(f"L_sk{self.nlab}")

    def x_load_c(self, pair, t):
        A = self.A
        if "nx2" in self.cfg.hack: return
        r = ACC + 80 + (pair * 5 + t) * 4
        A._mem_ready(rng(r, 4)); A._haz("mem", [vX + pair], rng(r, 4))
        self.skip_begin(1)
        A.raw(f"s_mov_b32 s{sT0}, {t * 14336}", 0)
        A.raw(f"buffer_load_dwordx4 v[{r}:{r+3}], v{vX+pair}, s[{sX}:{sX+3}], s{sT0} offen {self.cfg.x2f}", 0)
        self.skip_end()

    def x_write_c(self, pair, t):
        A = self.A
        if "nx2" in self.cfg.hack or "nxw" in self.cfg.hack: return
        r = ACC + 80 + (pair * 5 + t) * 4
        if len(A.lgkm) >= 13: A._wait_lgkm_idx(len(A.lgkm) - 13)
        self.skip_begin(1 - pair)
        A.raw(f"ds_write_b128 v{vRW}, v[{r}:{r+3}] offset:{pair * 40960 + t * 4096}", 0)
        self.skip_end()
        self.xw_mark = True

    def x_load(self, pair, t):
        A = self.A
        A.salu(f"s_mov_b32 s{sOFF}, {t * 14336}")
        self.m0slot = None
        A.bload(ACC + 80 + (pair * 5 + t) * 4, 4, vX + pair, sX, sOFF, flags=self.cfg.x_flags, tag=("xr", pair))

    def x_write(self, pair, t):
        self.A.ds_write("ds_write_b128", vRW, ACC + 80 + (pair * 5 + t) * 4, 4, pair * 40960 + t * 4096, tag=("xw", pair))

    def store_po_cond(self, i, b, flags):
        A = self.A
        self.nlab = getattr(self, "nlab", 0) + 1
        r = ACC + 120 + (i * 5 + b) * 4
        A.salu(f"s_cmp_eq_u32 s{sPH}, 0")
        A.salu(f"s_cbranch_scc1 L_sk{self.nlab}")
        A.raw(f"s_add_u32 s{sT0}, s{sPOW}, {(i * 5 + b) * 1024}", 0)
        A.raw(f"buffer_store_dwordx4 v[{r}:{r+3}], v{vLin0}, s[{sPO}:{sPO+3}], s{sT0} offen {flags}", 0)
        A.label(f"L_sk{self.nlab}")

    def store_po(self, i, b, flags):
        A = self.A
        A.salu(f"s_add_u32 s{sT0}, s{sPOW}, {(i * 5 + b) * 1024}")
        A.bstore(ACC + 120 + (i * 5 + b) * 4, 4, vLin0, sPO, sT0, flags=flags, tag="po")

    def set_off(self, typ, off, adv):
        A = self.A
        if typ in ("WQ", "WO"):
            reg, step, cnt, ystep = (sWQK, 262144, 14, 32768) if typ == "WQ" else (sWOK, 32 * 896, 16, 16 * 896)
            if adv and off == 0:
                A.salu(f"s_add_u32 s{reg}, s{reg}, {step}")
                A.salu(f"s_sub_u32 s{sOFF}, s{reg}, {step * cnt}")
                A.salu(f"s_cselect_b32 s{reg}, s{reg}, s{sOFF}")
            A.salu(f"s_add_u32 s{sOFF}, s{reg}, {off * ystep}")
        elif typ == "K": A.salu(f"s_add_u32 s{sOFF}, s{sCOL+off[1]}, {off[0]}")
        else: A.salu(f"s_mov_b32 s{sOFF}, {off}")

    def slot_dma(self, typ, off, key, phys, pc, blk):
        A = self.A; cfg = self.cfg
        vo, srd, fl = {"WQ": (vWQ, sWQ, cfg.w_flags), "K": (vK, sKV(blk, 0), cfg.kv_flags),
                       "V": (vV, sKV(blk, 1), cfg.kv_flags), "WO": (vWO, sKV(blk, 2), cfg.w_flags)}[typ]
        if pc == 0 or self.m0slot != key:
            self.set_off(typ, off, pc == 0)
            A.salu(f"s_add_u32 m0, s{sRING}, {phys * 2048}", m0=True)
            self.m0slot = key
        A.dma(vo + pc, srd, sOFF, off=1024 * pc, flags=fl, tag=key)

    def cvt(self, dst, a, b):
        self.A.valu(f"v_cvt_pk_bf16_f32 v{dst}, v{a}, v{b}", [dst], [a, b])

    def body(self, blk):
        A = self.A; V = self.V; cfg = self.cfg; R = cfg.R; cvt = self.cvt
        assert R == 5
        shared = (blk == 0)
        A.label(f"L_body{blk}")
        A.vm = list(self.canon_vm)
        can_l = []
        for a in range(4): can_l.append((None, set(rng(A_tr(0, a), 2))))
        for a in range(4): can_l.append((None, set(rng(A_tr(0, a) + 2, 2))))
        for b in range(5): can_l.append((None, set(rng(B_tr(b), 4))))
        A.lgkm = list(can_l)
        A.vw = {}; A.mfma_c_read = {}
        self.m0slot = None
        nm = "AB"[blk]
        units = [(jj, 4 * r + k) for r in range(2) for jj in range(4) for k in range(4)]
        use = {}; phys = {}; order = []
        def add(key, typ, off):
            use[key] = (typ, off); order.append(key)
        for n in range(2, 28):
            add(("WQ", n), "WQ", n & 1); phys["WQ", n] = n % 5
        nK = 16 if shared else 32
        for i in range(nK):
            jj, kt = units[2 * i] if shared else units[i]
            add(("K", i), "K", (kt * 8192, jj))
        kpreg = {}
        add(("SCR", 0), "SCR", 0)
        for ks in range(16):
            t, w = divmod(ks, 4)
            key0 = 128 * w + 32 * t
            if shared: add(("V", ks), "V", key0 * 512)
            else:
                for y in range(2): add(("V", 2 * ks + y), "V", (key0 + 16 * y) * 512)
        for n in range(32): add(("WO", n), "WO", n & 1)
        for n in range(7): add(("NWQ", n), "WQ", n & 1)
        T = order[order.index(("K", 0)):]
        for i, key in enumerate(T): phys[key] = (i - (len(T) - 7)) % 5
        slotq = [deque(k for k in order if phys[k] == p) for p in range(5)]
        issued = set(("WQ", n) for n in range(7)); avail = set()
        side = deque(); vq = deque(); slow = deque()
        st = {"wq_left": 21, "pr": 0}

        def issue(key, pc):
            typ, off = use[key]
            if key[0] == "K" and key[1] in kpreg:
                A.ds_write("ds_write_b128", vT0, kpreg[key[1]] + 4 * pc, 4, phys[key] * 2048 + pc * 1024)
            else:
                self.slot_dma(typ, off, key, phys[key], pc, blk)
            if pc == 1:
                issued.add(key)
                if key[0] == "WQ":
                    st["wq_left"] -= 1
                    if st["wq_left"] == 0: switch_srd()

        def switch_srd():
            A.salu(f"s_mov_b64 s[{sX}:{sX+1}], s[{sNX}:{sNX+1}]")
            A.salu(f"s_mov_b32 s{sX+2}, s{sNX+2}")
            A.salu(f"s_mov_b64 s[{sWQ}:{sWQ+1}], s[{sNWQ}:{sNWQ+1}]")
            A.salu(f"s_mov_b32 s{sWQ+2}, s{sNWQ+2}")
            A.salu(f"s_mov_b32 s{sNX+2}, 0")
            A.salu(f"s_mov_b32 s{sNWQ+2}, 0")

        def release(key):
            q = slotq[phys[key]]
            assert q[0] == key, (key, q[0])
            q.popleft()
            if not q: return
            nx = q[0]
            if nx[0] == "SCR": avail.add(nx)
            else:
                side.append(lambda: issue(nx, 0)); side.append(lambda: issue(nx, 1))

        def pump(q, k=1):
            for _ in range(k):
                if q: q.popleft()()

        def flush(q):
            while q: q.popleft()()

        def need(key):
            while key not in issued:
                assert side, key
                side.popleft()()
            A.wait_vm_tag(key)

        def tr_read(par, a, y, off, tag):
            A.ds_read("ds_read_b64_tr_b16", A_tr(par, a) + 2 * y, 2, vTR + a, off, tag=tag)

        def offs(typ, s, y, sh):
            return (phys[typ, s] * 2048 + y * 4 * RINGSZ) if sh else phys[typ, 2 * s + y] * 2048

        def prio():
            if cfg.fair:
                A.salu(f"s_setprio {3 - st['pr'] % 4}"); st["pr"] += 1

        def kstep(par, czero, nx, bread, cur_sh=None, barrier=False, pub=None, after=None, extra=None, tail=None, label=None, na=4):
            typ, s, sh = nx
            for p in range(20):
                b, a = divmod(p, 4)
                if p == 0:
                    if label and label[0] in cfg.kst.split(","): self.stamp(nm + label[0] + str(label[1]))
                    if not sh: prio()
                    need((typ, s) if sh else (typ, 2 * s))
                    if pub:
                        if pub[0] == "xw": assert not slow
                        flush(vq); flush(slow); A.wait_lgkm_tag(pub)
                    if (sh or barrier or pub) and not ("nopvbar" in cfg.hack and typ == "V" and not sh):
                        if cur_sh: A.wait_lgkm_tag(("rd",) + cur_sh)
                        if not ("nobar" in cfg.hack and sh and not (barrier or pub)): A.barrier()
                        if cur_sh: release(cur_sh)
                    if after: after()
                if p == cfg.ypos and not sh: need((typ, 2 * s + 1))
                if a < na:
                    A.mfma(ACC + (a * 5 + b) * 4, A_tr(par, a), B_tr(b), czero=czero)
                if sh: yy = (p >> 1, p & 1) if p < 4 else None
                else: yy = (0, p) if p < 2 else ((1, p - cfg.ypos) if 0 <= p - cfg.ypos < 2 else None)
                if yy:
                    y, hh = yy
                    for a2 in (hh * 2, hh * 2 + 1):
                        if a2 >= na and typ == "WO": continue
                        tr_read(par ^ 1, a2, y, offs(typ, s, y, sh), ("rd", typ, s) if sh else ("rd", typ, 2 * s + y))
                if a == 3 and bread: bread(b)
                if a == 1 and extra: extra(b)
                if not sh:
                    for y, rp in ((0, cfg.relx), (1, cfg.ypos + cfg.relx)):
                        if p == rp:
                            A.wait_lgkm_tag(("rd", typ, 2 * s + y))
                            release((typ, 2 * s + y))
                if p >= 2: pump(side, cfg.npump)
                if p in (8, 18): pump(slow)
                if tail and a == 3 and b >= 1: tail(b - 1)
                pump(vq, 3 if tail else 1)
            if tail:
                tail(4); flush(vq)

        def joint(nx, BX, done, cur_sh=None, hooks={}):
            typ, s, sh = nx
            groups = [(0, 0), (0, 1), (1, 0), (0, 2), (1, 1), (0, 3), (1, 2), (0, 4), (1, 3), (1, 4)]
            pend = None
            for gi, (o, b) in enumerate(groups):
                for a in range(4):
                    p = gi * 4 + a
                    if p == 0:
                        if not sh: prio()
                        need((typ, s) if sh else (typ, 2 * s))
                        if sh:
                            A.wait_lgkm_tag(("rd",) + cur_sh)
                            A.barrier()
                            release(cur_sh)
                    if p == 2 and not sh: need((typ, 2 * s + 1))
                    if p == 20 and not sh: prio()
                    if p == 8:
                        A.wait_lgkm_all()
                        if not sh:
                            release((typ, 2 * s)); release((typ, 2 * s + 1))
                        A.barrier()
                        if sh: release((typ, s))
                    A.mfma(ACC + (a * 5 + b) * 4, A_tr(o, a), (BX + 4 * b) if o else B_tr(b))
                    if p < 4:
                        y, hh = p >> 1, p & 1
                        for a2 in (hh * 2, hh * 2 + 1):
                            tr_read(1, a2, y, offs(typ, s, y, sh), None)
                    if p in hooks: hooks[p]()
                    if p >= 4: pump(side, cfg.npump)
                    if a == 2 and pend is not None:
                        done(pend); pend = None
                    pump(vq, 3)
                if o: pend = b
            done(pend); flush(vq)
            if cfg.fair: A.salu("s_setprio 0")

        def prefetch_A(typ, sh=False):
            if not sh:
                need((typ, 0)); need((typ, 1))
            for y in range(2):
                for a in range(4): tr_read(0, a, y, offs(typ, 0, y, sh), ("rd", typ, 0))

        def pair_cvt(i, b, q):
            r0 = ACC + ((2 * i) * 5 + b) * 4; r1 = ACC + ((2 * i + 1) * 5 + b) * 4
            for (d, x) in ((r0, r0), (r0 + 1, r0 + 2), (r0 + 2, r1), (r0 + 3, r1 + 2)):
                q.append(lambda d=d, x=x: cvt(d, x, x + 1))
            return r0

        def read_x(ks, b, dst):
            cidx, u = divmod(ks, 4)
            if cidx < 3: A.ds_read("ds_read_b128", dst, 4, vXR + u, cidx * 20480 + b * 4096)
            else: A.ds_read("ds_read_b128", dst, 4, vXRh + u, b * 4096)
        def q_after1():
            for t in range(5): slow.append(lambda t=t: (self.x_write_c if cfg.cond else self.x_write)(1, t))
        BXQ = ACC + 80
        stq = deque((i, b) for i in range(2) for b in range(5))
        for s in range(12):
            def ex(b, s=s):
                if s == 10: read_x(13, b, BXQ + 4 * b)
                s0, per = [int(v) for v in (cfg.stA, cfg.stB)[blk].split(",")]
                if s >= s0 and stq and b in (3, 1, 0, 2, 4)[:per] and not (cfg.stS >= 0 and blk == 1):
                    e_ = stq.popleft()
                    if "nost" not in cfg.hack: self.store_po_cond(*e_, cfg.po_flags)
            kstep(s & 1, s == 0, ("WQ", s + 1, False), lambda b, s=s: read_x(s + 1, b, B_tr(b)),
                  barrier=(s == 1), after=(q_after1 if s == 1 else None), pub=(("xw", 1) if s == 7 else None),
                  extra=ex, label=("WQ", s))
        assert not stq or cfg.stS >= 0
        def set_qr(jj):
            A.salu(f"s_mul_i32 s{sT0}, s{sCOL+jj}, 80")
            V(f"v_add_u32 v{vQR}, s{sT0}, v{vLinG}", vQR, [vLinG])
        def k_off(u):
            if shared: return phys["K", u >> 1] * 2048 + (u & 1) * 4 * RINGSZ
            return phys["K", u] * 2048
        def k_read(u, s):
            A.ds_read("ds_read_b128", A_s(u & 1, s), 4, vKR + s, k_off(u), tag=("rk", u))
        def done_q(b):
            for i in range(2):
                r0 = pair_cvt(i, b, vq)
            for i in range(2):
                r0 = ACC + ((2 * i) * 5 + b) * 4
                for e in range(2):
                    vq.append(lambda r=r0 + e: A.valu(f"v_permlane16_swap_b32 v{r}, v{r+2}", [r, r + 2], [r, r + 2], kind="perm"))
            for i in range(2):
                r0 = ACC + ((2 * i) * 5 + b) * 4
                vq.append(lambda r0=r0, i=i: A.ds_write("ds_write_b128", vQW, r0, 4, (i * 5 + b) * 1024))
        def q_h10():
            set_qr(0)
            if shared:
                for s in range(2): V(f"v_subrev_u32 v{vKR+s}, s{sGR}, v{vKR+s}", vKR + s, [vKR + s])
        self.stamp(nm + "Qj")
        joint(("WQ", 13, False), BXQ, done_q, hooks={10: q_h10})
        flush(side)
        need(("K", 0))
        if shared:
            A.wait_lgkm_all()
            self.bar(nm + "B4")
            for s in range(2): k_read(0, s)
        else:
            for s in range(2): k_read(0, s)
            A.wait_lgkm_all()
            release(("K", 0))
            self.bar(nm + "B4")
        if cfg.early and not cfg.noearly:
            self.cond_block(f"s_cmp_eq_u32 s{sPH}, s{sSIG}", ["s_mov_b64 exec, 1",
                f"buffer_atomic_add v{vT0}, v{vT1}, s[8:11], 0 offen sc1", "s_mov_b64 exec, -1"])
        for s in range(2):
            for b in range(5):
                A.ds_read("ds_read_b128", B_s(s, b), 4, vQR, (s * 5 + b) * 1024)
        def acc_s(kt, b): return ACC + (kt * 5 + b) * 4
        NM1 = lambda b: BORROW[b]
        L1 = lambda b: BORROW[5 + b]
        smq = deque()
        def q_max(kt):
            for b in range(5):
                r = acc_s(kt, b); m = vM + b
                if kt == 0:
                    smq.append(lambda r=r, m=m: V(f"v_max3_f32 v{m}, v{r}, v{r+1}, v{r+2}", m, [r, r+1, r+2]))
                    smq.append(lambda r=r, m=m: V(f"v_max_f32 v{m}, v{m}, v{r+3}", m, [m, r+3]))
                else:
                    smq.append(lambda r=r, m=m: V(f"v_max3_f32 v{m}, v{m}, v{r}, v{r+1}", m, [m, r, r+1]))
                    smq.append(lambda r=r, m=m: V(f"v_max3_f32 v{m}, v{m}, v{r+2}, v{r+3}", m, [m, r+2, r+3]))
        def q_round1():
            for sw in ("v_permlane32_swap_b32", "v_permlane16_swap_b32"):
                for b in range(5): smq.append(lambda b=b: V(f"v_mov_b32 v{L1(b)}, v{vM+b}", L1(b), [vM + b]))
                for b in range(5): smq.append(lambda b=b, sw=sw: A.valu(f"{sw} v{vM+b}, v{L1(b)}", [vM + b, L1(b)], [vM + b, L1(b)], kind="perm"))
                for b in range(5): smq.append(lambda b=b: V(f"v_max_f32 v{vM+b}, v{vM+b}, v{L1(b)}", vM + b, [vM + b, L1(b)]))
            for b in range(5): smq.append(lambda b=b: V(f"v_mul_f32 v{NM1(b)}, s{sNC}, v{vM+b}", NM1(b), [vM + b]))
            for kt in range(4):
                for b in range(5):
                    r = acc_s(kt, b)
                    for e in range(4): smq.append(lambda x=r+e, b=b: V(f"v_fma_f32 v{x}, v{x}, s{sC}, v{NM1(b)}", x, [x, NM1(b)]))
                    for e in range(4): smq.append(lambda x=r+e: A.valu(f"v_exp_f32 v{x}, v{x}", [x], [x], kind="trans"))
                    if kt == 0:
                        smq.append(lambda r=r, b=b: V(f"v_add_f32 v{L1(b)}, v{r}, v{r+1}", L1(b), [r, r + 1]))
                        rest = (2, 3)
                    else: rest = (0, 1, 2, 3)
                    for e in rest: smq.append(lambda x=r+e, b=b: V(f"v_add_f32 v{L1(b)}, v{L1(b)}, v{x}", L1(b), [L1(b), x]))
        def unit(u):
            jj, kt = units[u]
            par = u & 1
            nxt = u + 1 < 32
            last_in_pass = (kt & 3) == 3
            for p in range(10):
                s, b = divmod(p, 5)
                if p == 0 and cfg.fairs and not shared and u % cfg.fairs == 0: A.salu(f"s_setprio {3 - (u // cfg.fairs) % 4}")
                if nxt and p == 0:
                    if shared:
                        if u & 1:
                            need(("K", (u + 1) // 2))
                            A.wait_lgkm_tag(("rk", u))
                            if "nobar" not in cfg.hack: A.barrier()
                            release(("K", u // 2))
                    else:
                        need(("K", u + 1))
                A.mfma(acc_s(kt, b), A_s(par, s), B_s(s, b), czero=(jj == 0 and s == 0))
                if nxt and p < 2: k_read(u + 1, p)
                if (kt & 3) == 2 and p == 9 and u + 2 < 32: set_qr(units[u + 2][0])
                if last_in_pass and nxt:
                    A.ds_read("ds_read_b128", B_s(s, b), 4, vQR, (s * 5 + b) * 1024)
                if nxt and p == cfg.s_rel_pos and not shared:
                    A.wait_lgkm_tag(("rk", u + 1))
                    release(("K", u + 1))
                if p >= 2: pump(side, cfg.npump)
                if blk == 1 and u == cfg.stS and not kpreg: self.store_po_cond(p // 5, p % 5, cfg.po_flags)
                if p >= 4 or u > 16: pump(smq, cfg.sm_per)
            if u == 17 and "hx" in cfg.hack:
                flush(smq)
                for i in range(40): V(f"v_mov_b32 v{vT1}, v{vT1}", vT1, [vT1])
            if jj == 3: q_max(kt)
            if u == 15 and not ("nosm1" in cfg.hack): q_round1()
        u0 = 0
        if cfg.kpf and not shared:
            import copy
            u0 = 12
            assert 6 + cfg.kpf - 1 <= u0
            flush(side)
            def snap(): return (list(A.vm), list(A.lgkm), dict(A.vw), dict(A.mfma_c_read), dict(A.store_data), [list(q) for q in slotq], set(issued), self.m0slot)
            sv = snap()
            A.salu(f"s_cmp_lg_u32 s{sPH}, 0")
            A.salu("s_cbranch_scc1 L_snorm")
            for i in range(cfg.kpf): kpreg[6 + i] = ACC + 100 + 8 * i
            for u in range(u0): unit(u)
            flush(side); assert not smq
            end1 = ([t for t, _ in A.vm], [d for _, d in A.lgkm], [list(q) for q in slotq])
            A.salu("s_branch L_sjoin")
            A.label("L_snorm")
            kpreg.clear()
            A.vm, A.lgkm, A.vw, A.mfma_c_read, A.store_data = sv[0], sv[1], {}, {}, {}
            for q, l in zip(slotq, sv[5]): q.clear(); q.extend(l)
            issued.clear(); issued.update(sv[6]); self.m0slot = None
            for u in range(u0): unit(u)
            flush(side); assert not smq
            end2 = ([t for t, _ in A.vm], [d for _, d in A.lgkm], [list(q) for q in slotq])
            assert end1 == end2, (end1, end2)
            A.label("L_sjoin")
            self.m0slot = None
        for u in range(u0, 32): unit(u)
        flush(side); flush(smq)
        if cfg.fairs and not shared: A.salu("s_setprio 0")
        self.stamp(nm + "Sdone")
        ML = lambda b: 176 + 2 * b
        NMC = lambda b: 186 + 2 * b
        LS = lambda b: 196 + 2 * b
        TT = lambda b: 206 + b
        def xl_reduce(src, dst, op):
            for b in range(5): V(f"v_mov_b32 v{TT(b)}, v{src(b)}", TT(b), [src(b)])
            for b in range(5): A.valu(f"v_permlane32_swap_b32 v{src(b)}, v{TT(b)}", [src(b), TT(b)], [src(b), TT(b)], kind="perm")
            for b in range(5): V(f"{op} v{src(b)}, v{src(b)}, v{TT(b)}", src(b), [src(b), TT(b)])
            for b in range(5): V(f"v_mov_b32 v{TT(b)}, v{src(b)}", TT(b), [src(b)])
            for b in range(5): A.valu(f"v_permlane16_swap_b32 v{src(b)}, v{TT(b)}", [src(b), TT(b)], [src(b), TT(b)], kind="perm")
            for b in range(5): V(f"{op} v{dst(b)}, v{src(b)}, v{TT(b)}", dst(b), [src(b), TT(b)])
        xl_reduce(lambda b: vM + b, ML, "v_max_f32")
        for b in range(5): V(f"v_mul_f32 v{NMC(b)}, s{sNC}, v{ML(b)}", NMC(b), [ML(b)])
        for b in range(5): V(f"v_sub_f32 v{NM1(b)}, v{NMC(b)}, v{NM1(b)}", NM1(b), [NMC(b), NM1(b)])
        for b in range(5): A.valu(f"v_exp_f32 v{NM1(b)}, v{NM1(b)}", [NM1(b)], [NM1(b)], kind="trans")
        for kt in (range(4, 5) if "nosm" in cfg.hack else range(4, 8)):
            for b in range(5):
                r = acc_s(kt, b)
                for h in range(2):
                    x = r + 2 * h
                    A.valu(f"v_pk_fma_f32 v[{x}:{x+1}], v[{x}:{x+1}], s[{sC}:{sC+1}], v[{NMC(b)}:{NMC(b)+1}] op_sel_hi:[1,0,0]",
                           [x, x + 1], [x, x + 1, NMC(b)])
            for b in range(5):
                r = acc_s(kt, b)
                for e in range(4):
                    A.valu(f"v_exp_f32 v{r+e}, v{r+e}", [r + e], [r + e], kind="trans")
            for b in range(5):
                r = acc_s(kt, b); l = LS(b)
                if kt == 4:
                    A.valu(f"v_pk_add_f32 v[{l}:{l+1}], v[{r}:{r+1}], v[{r+2}:{r+3}]", [l, l + 1], rng(r, 4))
                else:
                    A.valu(f"v_pk_add_f32 v[{l}:{l+1}], v[{l}:{l+1}], v[{r}:{r+1}]", [l, l + 1], [l, l + 1, r, r + 1])
            if kt > 4:
                for b in range(5):
                    r = acc_s(kt, b); l = LS(b)
                    A.valu(f"v_pk_add_f32 v[{l}:{l+1}], v[{l}:{l+1}], v[{r+2}:{r+3}]", [l, l + 1], [l, l + 1, r + 2, r + 3])
        for b in range(5): V(f"v_add_f32 v{LS(b)}, v{LS(b)}, v{LS(b)+1}", LS(b), [LS(b), LS(b) + 1])
        for b in range(5): V(f"v_fmac_f32 v{LS(b)}, v{L1(b)}, v{NM1(b)}", LS(b), [LS(b), L1(b), NM1(b)])
        xl_reduce(LS, lambda b: ML(b) + 1, "v_add_f32")
        assert ("SCR", 0) in avail
        so = phys["SCR", 0] * 2048
        A.salu("s_mov_b64 exec, 0xffff")
        for b in range(5):
            A.ds_write("ds_write_b64", vSW, ML(b), 2, so + b * 128)
        A.salu("s_mov_b64 exec, -1")
        if shared: need(("V", 0))
        A.wait_lgkm_all()
        self.bar(nm + "B5")
        if shared:
            release(("K", 15)); flush(side)
        RB = lambda b: [160, 168, 176, 196, 204][b]
        for b in range(5):
            for jj in range(4):
                A.ds_read("ds_read_b64", RB(b) + 2 * jj, 2, vSR, jj * RINGSZ + so + b * 128)
        MX = lambda b: vM + b
        for b in range(5):
            r = RB(b)
            V(f"v_max3_f32 v{MX(b)}, v{r}, v{r+2}, v{r+4}", MX(b), [r, r + 2, r + 4])
            V(f"v_max_f32 v{MX(b)}, v{MX(b)}, v{r+6}", MX(b), [MX(b), r + 6])
            V(f"v_mul_f32 v{MX(b)}, s{sNC}, v{MX(b)}", MX(b), [MX(b)])
            for jj in range(4):
                V(f"v_fma_f32 v{r+2*jj}, v{r+2*jj}, s{sC}, v{MX(b)}", r + 2 * jj, [r + 2 * jj, MX(b)])
            V(f"v_sub_f32 v{NMC(b)}, v{MX(b)}, v{NMC(b)}", NMC(b), [MX(b), NMC(b)])
        for b in range(5):
            r = RB(b)
            for jj in range(4):
                A.valu(f"v_exp_f32 v{r+2*jj}, v{r+2*jj}", [r + 2 * jj], [r + 2 * jj], kind="trans")
            A.valu(f"v_exp_f32 v{NMC(b)}, v{NMC(b)}", [NMC(b)], [NMC(b)], kind="trans")
        for b in range(5):
            r = RB(b)
            V(f"v_mul_f32 v{MX(b)}, v{r}, v{r+1}", MX(b), [r, r + 1])
            for jj in range(1, 4):
                V(f"v_fmac_f32 v{MX(b)}, v{r+2*jj}, v{r+2*jj+1}", MX(b), [MX(b), r + 2 * jj, r + 2 * jj + 1])
        for b in range(5):
            A.valu(f"v_rcp_f32 v{MX(b)}, v{MX(b)}", [MX(b)], [MX(b)], kind="trans")
        for b in range(5):
            V(f"v_mul_f32 v{MX(b)}, v{MX(b)}, v{NMC(b)}", MX(b), [MX(b), NMC(b)])
        for b in range(5):
            V(f"v_mul_f32 v{NMC(b)}, v{MX(b)}, v{NM1(b)}", NMC(b), [MX(b), NM1(b)])
        if shared:
            for s in range(2): V(f"v_add_u32 v{vKR+s}, s{sGR}, v{vKR+s}", vKR + s, [vKR + s])
            V(f"v_subrev_u32 v{vTR}, s{sGR}, v{vTR}", vTR, [vTR])
        for a in range(1, 4): V(f"v_xor_b32 v{vTR+a}, {a << 5}, v{vTR}", vTR + a, [vTR])
        prefetch_A("V", sh=shared)
        def writeP(i, b, tag=None):
            A.ds_write("ds_write_b128", vPW, acc_s(2 * i, b), 4, (i & 1) * 20480 + b * 1024, tag=tag)
        for i in range(2):
            for b in range(5):
                r0 = acc_s(2 * i, b); r1 = acc_s(2 * i + 1, b); f = NMC(b)
                for x in (r0, r0 + 2, r1, r1 + 2):
                    A.valu(f"v_pk_mul_f32 v[{x}:{x+1}], v[{x}:{x+1}], v[{f}:{f+1}] op_sel_hi:[1,0]", [x, x + 1], [x, x + 1, f])
                cvt(r0, r0, r0 + 1); cvt(r0 + 1, r0 + 2, r0 + 3); cvt(r0 + 2, r1, r1 + 1); cvt(r0 + 3, r1 + 2, r1 + 3)
                writeP(i, b)
        if "hx" in cfg.hack:
            for i in range(160): V(f"v_mov_b32 v{vT1}, v{vLin0}", vT1, [vLin0])
        A.wait_lgkm_all()
        self.bar(nm + "B6")
        release(("SCR", 0))
        for u in range(1, 4): vq.append(lambda u=u: V(f"v_xor_b32 v{vXR+u}, {u << 6}, v{vXR}", vXR + u, [vXR]))
        for u in range(2): vq.append(lambda u=u: V(f"v_add_u32 v{vXRh+u}, 61440, v{vXR+u}", vXRh + u, [vXR + u]))
        vq.append(lambda: V(f"v_add_u32 v{vWQ+1}, {16*8192-1024}, v{vWQ}", vWQ + 1, [vWQ]))
        vq.append(lambda: V(f"v_add_u32 v{vWO+1}, {8*896-1024}, v{vWO}", vWO + 1, [vWO]))
        vq.append(lambda: V(f"v_add_u32 v{vLin1}, {BREG}, v{vLin0}", vLin1, [vLin0]))
        def q_pack(i):
            for b in (range(0) if "nopack" in cfg.hack else range(5)):
                r0 = acc_s(2 * i, b); r1 = acc_s(2 * i + 1, b)
                for x in rng(r0, 4) + rng(r1, 4):
                    vq.append(lambda x=x, b=b: V(f"v_mul_f32 v{x}, v{x}, v{MX(b)}", x, [x, MX(b)]))
                for (d, x) in ((r0, r0), (r0 + 1, r0 + 2), (r0 + 2, r1), (r0 + 3, r1 + 2)):
                    vq.append(lambda d=d, x=x: cvt(d, x, x + 1))
        q_pack(2)
        def q_write(i):
            for b in range(5): slow.append(lambda b=b: writeP(i, b, tag=("pw", i)))
        def at4():
            flush(vq); q_write(2); q_pack(3)
        def at8():
            q_write(3)
            if cfg.early:
                A.rfl(22, vQR)
                A.nop(2)
        def read_p(ks, b, dst):
            A.ds_read("ds_read_b128", dst, 4, vLinG, ((ks & 7) * 5 + b) * 1024)
        for b in range(5): read_p(0, b, B_tr(b))
        if cfg.early: A.bload(vQR, 1, vT1, 8, "0", flags="sc1", tag="chk")
        if not shared:
            release(("V", 0)); release(("V", 1))
        BXP = ACC + 140
        xq = deque((pair, t) for pair in range(2) for t in range(5))
        xs = [int(v) for v in cfg.xsplit.split(",")]
        xp = [int(v) for v in cfg.xpos.split(",")]
        def xl(n):
            for _ in range(n): side.append(lambda e=xq.popleft(): (xdone.add(e), (self.x_load_c if cfg.cond else self.x_load)(*e)))
        xdone = set()
        def pend_x(): return [(pair, t) for pair in range(2) for t in range(5) if (pair, t) not in xdone]
        xk = [int(v) for v in cfg.xk.split(",")] if cfg.xk else []
        def ex_p(b, s):
            if s == 12: read_p(15, b, BXP + 4 * b)
            if b == 2 and s in xk: xl(10 // len(xk))
        for s in range(14):
            kstep(s & 1, s == 0, ("V", s + 1, shared), lambda b, s=s: read_p(s + 1, b, B_tr(b)),
                  cur_sh=(("V", s) if shared else None), barrier=(s in (4, 8)),
                  after={4: at4, 8: at8}.get(s), pub={7: ("pw", 2), 11: ("pw", 3)}.get(s),
                  extra=(lambda b, s=s: ex_p(b, s)), label=("V", s))
        def el(gs):
            L = []
            for g in gs:
                r = ACC + 80 + 4 * g
                L += [f"s_add_u32 s{sT0}, s20, {g * 71680}",
                      f"buffer_load_dwordx4 v[{r}:{r+3}], v{vLin0}, s[16:19], s{sT0} offen sc1"]
            self.cond_block("s_cmp_eq_u32 s22, 8", L)
        def done_o(b):
            for i in range(2): pair_cvt(i, b, vq)
            for i in range(2):
                r0 = ACC + ((2 * i) * 5 + b) * 4
                vq.append(lambda r0=r0, i=i: A.ds_write("ds_write_b128", vOW, r0, 4, (i * 5 + b) * 1024))
        hooks = {}
        if not xk:
            for n, p in zip(xs, xp): hooks[p + 9] = (lambda n=n: xl(n))
        def o_h5():
            if shared:
                for a in range(4): V(f"v_add_u32 v{vTR+a}, s{sGR}, v{vTR+a}", vTR + a, [vTR + a])
        hooks[5] = o_h5
        hooks[32] = lambda: prefetch_A("WO")
        self.stamp(nm + "Pj")
        joint(("V", 15, shared), BXP, done_o, cur_sh=(("V", 14) if shared else None), hooks=hooks)
        A.wait_lgkm_all()
        release(("WO", 0)); release(("WO", 1))
        self.bar(nm + "B10")
        def read_o(ks, b):
            A.ds_read("ds_read_b128", B_tr(b), 4, vLin0 if ks < 8 else vLin1, ((ks & 7) * 5 + b) * 1024)
        for b in range(5): read_o(0, b)
        def mid_o():
            for t in range(5): slow.append(lambda t=t: (self.x_write_c if cfg.cond else self.x_write)(0, t))
        def tail_po(b):
            for i in range(2):
                r0 = ACC + ((2 * i) * 5 + b) * 4; r1 = ACC + ((2 * i + 1) * 5 + b) * 4
                d = ACC + 120 + (i * 5 + b) * 4
                for e, x in enumerate((r0, r0 + 2, r1, r1 + 2)):
                    vq.append(lambda d=d + e, x=x: cvt(d, x, x + 1))
        def tail_po3(b):
            r0 = ACC + b * 4; r1 = ACC + (5 + b) * 4; r2 = ACC + (10 + b) * 4
            d = ACC + 120 + b * 4
            for e, x in enumerate((r0, r0 + 2, r1, r1 + 2)):
                vq.append(lambda d=d + e, x=x: cvt(d, x, x + 1))
            d = ACC + 140 + 2 * b
            for e, x in enumerate((r2, r2 + 2)):
                vq.append(lambda d=d + e, x=x: cvt(d, x, x + 1))
        def o_loop(na):
            st["pr"] = 0
            for s in range(16):
                last = s == 15
                kstep(s & 1, s == 0, ("NWQ", 0, False) if last else ("WO", s + 1, False),
                      (lambda b: read_x(0, b, B_tr(b))) if last else (lambda b, s=s: read_o(s + 1, b)),
                      barrier=(s == 8), after=(mid_o if s == 8 else None), pub=(("xw", 0) if s == 13 else None),
                      tail=((tail_po if na == 4 else tail_po3) if last else None), na=na)
            flush(side)
            assert sorted(q[0][1] for q in slotq) == [2, 3, 4, 5, 6] and all(len(q) == 1 for q in slotq)
            act = [("WQ", t[1]) if t[0] == "NWQ" else t for t, _ in A.vm]
            can = [t for t, _ in self.canon_vm]
            assert act == can[len(can) - len(act):], (act, can)
            actl = [d for _, d in A.lgkm]; canl = [d for _, d in can_l]
            assert actl == canl[len(canl) - len(actl):], (actl, canl)
        sv = (list(A.vm), list(A.lgkm), [list(q) for q in slotq], set(issued), list(side))
        assert not vq and not slow
        A.salu(f"s_cmp_eq_u32 s{sG}, 0")
        A.salu(f"s_cbranch_scc1 L_o{blk}")
        o_loop(3)
        A.salu(f"s_branch L_oend{blk}")
        A.label(f"L_o{blk}")
        A.vm, A.lgkm, A.vw, A.mfma_c_read, A.store_data = sv[0], sv[1], {}, {}, {}
        for q, l in zip(slotq, sv[2]): q.clear(); q.extend(l)
        issued.clear(); issued.update(sv[3]); side.clear(); side.extend(sv[4]); self.m0slot = None
        o_loop(4)
        A.label(f"L_oend{blk}")
        A.salu(f"s_mov_b64 s[{sPO}:{sPO+1}], s[{sPOB(blk)}:{sPOB(blk)+1}]")
        A.salu(f"s_mov_b32 s{sPO+2}, s{sSIG}")
        self.stamp(nm + "Odone")
        A.salu(f"s_add_u32 s{sPH}, s{sPH}, 1")
        A.salu(f"s_cmp_eq_u32 s{sPH}, 2")
        A.salu("s_cbranch_scc1 L_final")
        if blk == 1: A.salu("s_branch L_body0")

    def final(self):
        A = self.A; cfg = self.cfg
        A.label("L_final")
        A.vm = []; A.lgkm = []
        V = self.V
        if cfg.fuse: A.raw("s_load_dwordx4 s[4:7], s[0:1], 80")
        for i in range(2):
            for b in range(5): self.store_po(i, b, cfg.pof_flags)
        if "dbl" in cfg.hack:
            A.salu(f"s_add_u32 s{sPO}, s{sPO}, 0x3000000"); A.salu(f"s_addc_u32 s{sPO+1}, s{sPO+1}, 0")
            for i in range(2):
                for b in range(5): self.store_po(i, b, cfg.pof_flags)
        if cfg.early:
            A.raw("v_mov_b32 v1, s22"); A.raw("v_mov_b32 v2, s23")
            A.raw("s_mov_b64 exec, 1")
            A.raw("global_store_dword v2, v1, s[24:25]")
            A.raw("s_mov_b64 exec, -1")
        if cfg.fuse:
            R = A.raw
            BS = 256 * 71680
            V(f"v_lshrrev_b32 v2, 4, v{vLin0}", 2, [vLin0])
            V("v_and_b32 v4, 15, v2", 4, [2])
            V("v_mul_u32_u24 v4, 1792, v4", 4, [4])
            V("v_bfe_u32 v5, v2, 4, 1", 5, [2])
            V("v_lshl_add_u32 v4, v5, 5, v4", 4, [4, 5])
            V("v_lshrrev_b32 v5, 5, v2", 5, [2])
            V("v_lshl_add_u32 v4, v5, 4, v4", 4, [4, 5])
            R(f"s_lshl_b32 s20, s{sB}, 2")
            V("v_mov_b32 v2, s20", 2, [])
            V("v_mov_b32 v1, 1", 1, [])
            V("v_mov_b32 v3, 0", 3, [])
            R(f"s_mul_i32 s20, s{sB}, {8*71680}")
            R("s_add_u32 s16, s24, s20"); R("s_addc_u32 s17, s25, 0"); R("s_and_b32 s17, s17, 0xffff")
            R(f"s_mov_b32 s18, {BS + 8*71680}"); R("s_mov_b32 s19, 0x20000")
            R(f"s_lshl_b32 s21, 1, s{sHG}")
            R("s_waitcnt vmcnt(0) lgkmcnt(0)")
            R("s_mov_b32 s8, s6"); R("s_and_b32 s9, s7, 0xffff"); R("s_mov_b32 s10, 256"); R("s_mov_b32 s11, 0x20000")
            R("s_mov_b32 s12, s4"); R("s_and_b32 s13, s5, 0xffff"); R(f"s_mov_b32 s14, {32*80*896*2}"); R("s_mov_b32 s15, 0x20000")
            R("s_barrier")
            self.stamp("drain")
            R(f"s_cmp_lg_u32 s{sW}, 0")
            R("s_cbranch_scc1 L_wait")
            R("s_mov_b64 exec, 1")
            R("buffer_atomic_add v1, v2, s[8:11], 0 offen sc0 sc1")
            R("s_waitcnt vmcnt(0)")
            R("v_readfirstlane_b32 s20, v1")
            R("s_nop 3")
            R("s_lshr_b32 s23, s20, 8"); R("s_or_b32 s23, s23, s21")
            R("s_and_b32 s20, s20, 0xff"); R("s_cmp_eq_u32 s20, 7")
            R("s_cbranch_scc1 L_pub")
            R("s_mov_b32 s23, s21")
            R(f"s_mov_b32 s22, {cfg.spin}")
            A.label("L_poll")
            if cfg.slp: R(f"s_sleep {cfg.slp}")
            R(f"buffer_load_dword v1, v2, s[8:11], 0 offen {cfg.pollflags}")
            R("s_waitcnt vmcnt(0)")
            R("v_readfirstlane_b32 s20, v1")
            R("s_nop 3")
            R("s_and_b32 s20, s20, 0xff"); R("s_cmp_eq_u32 s20, 8")
            R("s_cbranch_scc1 L_pub")
            R("s_sub_u32 s22, s22, 1"); R("s_cmp_lg_u32 s22, 0")
            R("s_cbranch_scc1 L_poll")
            R("s_lshl_b32 s20, s21, 8")
            R("v_mov_b32 v1, s20")
            R("buffer_atomic_or v1, v2, s[8:11], 0 offen sc0 sc1")
            R("s_waitcnt vmcnt(0)")
            R("v_readfirstlane_b32 s20, v1")
            R("s_nop 3")
            R("s_and_b32 s20, s20, 0xff"); R("s_cmp_eq_u32 s20, 8")
            R("s_cselect_b32 s23, s21, 0")
            A.label("L_pub")
            R("v_mov_b32 v1, s23")
            R("ds_write_b32 v3, v1")
            R("s_waitcnt lgkmcnt(0)")
            R("s_mov_b64 exec, -1")
            A.label("L_wait")
            R("s_barrier")
            R("ds_read_b32 v1, v3")
            R("s_waitcnt lgkmcnt(0)")
            R("v_readfirstlane_b32 s23, v1")
            R("s_nop 3")
            self.stamp("go")
            A.label("L_share")
            R("s_cmp_eq_u32 s23, 0")
            R("s_cbranch_scc1 L_shares_done")
            R("s_ff1_i32_b32 s20, s23")
            R("s_bitset0_b32 s23, s20")
            R(f"s_lshl_b32 s22, s{sW}, 3"); R("s_add_u32 s22, s22, s20")
            A.vm = []; A.lgkm = []; A.vw = {}
            for r in range(3):
                so = 28 + r
                R(f"s_add_u32 s32, s22, {64*r}")
                R("s_cmp_ge_u32 s32, 70"); R("s_cselect_b32 s33, 1, 0")
                R("s_mul_i32 s34, s33, 70"); R("s_sub_u32 s34, s32, s34")
                R("s_mul_i32 s35, s34, 205"); R("s_lshr_b32 s35, s35, 10")
                R("s_mul_i32 s36, s35, 5"); R("s_sub_u32 s36, s34, s36")
                R(f"s_mul_i32 s37, s{sB}, 80"); R("s_lshl_b32 s36, s36, 4"); R("s_add_u32 s37, s37, s36")
                R("s_mul_i32 s37, s37, 1792"); R("s_mul_i32 s36, s33, 896"); R("s_add_u32 s37, s37, s36")
                R("s_lshl_b32 s35, s35, 6"); R(f"s_add_u32 s{so}, s37, s35")
                R(f"s_mul_i32 s33, s33, {BS}"); R("s_lshl_b32 s34, s34, 10"); R("s_add_u32 s33, s33, s34")
                if r == 2:
                    R("s_cmp_lt_u32 s32, 140")
                    R("s_cselect_b32 s33, s33, 0x40000000"); R(f"s_cselect_b32 s{so}, s{so}, 0x40000000")
                for g in range(8):
                    A.bload(32 + (r * 8 + g) * 4, 4, vLin0, 16, 33, flags=cfg.shflags)
                    if g < 7: R("s_add_u32 s33, s33, 71680")
            for r in range(3):
                for g in range(8):
                    src = 32 + (r * 8 + g) * 4
                    for d in range(4):
                        lo = 16 + 2 * d; hi = lo + 1
                        if g == 0:
                            V(f"v_lshlrev_b32 v{lo}, 16, v{src+d}", lo, [src + d])
                            V(f"v_and_b32 v{hi}, 0xffff0000, v{src+d}", hi, [src + d])
                        else:
                            V(f"v_lshlrev_b32 v6, 16, v{src+d}", 6, [src + d])
                            V(f"v_and_b32 v7, 0xffff0000, v{src+d}", 7, [src + d])
                            A.valu(f"v_pk_add_f32 v[{lo}:{lo+1}], v[{lo}:{lo+1}], v[6:7]", [lo, lo + 1], [lo, lo + 1, 6, 7])
                o = 8 + 4 * (r & 1)
                for d in range(4): V(f"v_cvt_pk_bf16_f32 v{o+d}, v{16+2*d}, v{17+2*d}", o + d, [16 + 2 * d, 17 + 2 * d])
                A.valu(f"v_permlane16_swap_b32 v{o}, v{o+2}", [o, o + 2], [o, o + 2], kind="perm")
                A.valu(f"v_permlane16_swap_b32 v{o+1}, v{o+3}", [o + 1, o + 3], [o + 1, o + 3], kind="perm")
                A.bstore(o, 4, 4, 12, 28 + r)
            A.nop(2)
            R("s_branch L_share")
            A.label("L_shares_done")
        if cfg.stamp:
            A.raw("s_waitcnt vmcnt(0)")
            self.stamp("end")
            A.salu("s_add_u32 s28, s24, 0x8000000")
            A.salu("s_addc_u32 s29, s25, 0")
            A.salu("s_and_b32 s29, s29, 0xffff")
            A.salu("s_mov_b32 s30, 0x100000")
            A.salu("s_mov_b32 s31, 0x20000")
            A.salu(f"s_lshl_b32 s{sT0}, s2, 3")
            A.salu(f"s_add_u32 s{sT0}, s{sT0}, s{sW}")
            A.salu(f"s_lshl_b32 s{sT0}, s{sT0}, 8")
            A.valu(f"v_lshrrev_b32 v0, 2, v{vLin0}", [0], [vLin0])
            A.bstore(vSTAMP, 1, 0, 28, sT0)
            open(cfg.path + ".stamps", "w").write(" ".join(self.stamps))
        if cfg.dbgspan:
            R = A.raw
            R("s_load_dwordx2 s[6:7], s[0:1], 88")
            R("s_waitcnt vmcnt(0)")
            R("s_memrealtime s[4:5]")
            R("s_waitcnt lgkmcnt(0)")
            R("s_mov_b32 s8, s6"); R("s_and_b32 s9, s7, 0xffff"); R("s_mov_b32 s10, 256"); R("s_mov_b32 s11, 0x20000")
            R("s_not_b32 s26, s26")
            R("v_mov_b32 v1, s26"); R("v_mov_b32 v2, s4"); R("v_mov_b32 v3, 0")
            R("s_mov_b64 exec, 1")
            R("buffer_atomic_umax v1, v3, s[8:11], 0 offen sc1")
            R("buffer_atomic_umax v2, v3, s[8:11], 0 offen offset:4 sc1")
        A.label("L_attn_done")
        A.raw("s_endpgm")


def gen_main(cfg):
    g = Gen(cfg)
    if "nomfma" in cfg.hack:
        om = g.A.mfma
        def fake(d, a, b, czero=False):
            g.A._mem_ready(rng(a, 4) + rng(b, 4))
        g.A.mfma = fake
    kn = NAME + "_kernel"
    g.A.label(kn)
    g.setup(); g.body(0); g.body(1); g.final()
    return kn, g.A


def gen_reduce(cfg):
    A = Asm()
    kn = "reduce_kernel"
    R = A.salu
    def V(text, w, r): A.valu(text, w if isinstance(w, list) else [w], r)
    A.label(kn)
    if cfg.span: A.raw("s_memrealtime s[28:29]")
    rw = cfg.rw
    R(f"s_cmp_ge_u32 s2, {4608 // rw}")
    R("s_cbranch_scc1 L_red_done")
    R("s_load_dwordx2 s[4:5], s[0:1], 80")
    R("s_load_dwordx2 s[6:7], s[0:1], 96")
    V("v_lshrrev_b32 v1, 6, v0", 1, [0])
    V("v_and_b32 v2, 63, v0", 2, [0])
    A.rfl(8, 1)
    V("v_lshlrev_b32 v3, 4, v2", 3, [2])
    A.nop(2)
    R(f"s_mul_i32 s9, s2, {rw}"); R("s_add_u32 s9, s9, s8")
    R(f"s_mul_hi_u32 s10, s9, {(1 << 32) // 72 + 1}")
    R("s_mul_i32 s11, s10, 72"); R("s_sub_u32 s11, s9, s11")
    R(f"s_mul_i32 s24, s10, {8*PS}")
    R("s_lshl_b32 s15, s11, 10")
    A.raw("s_waitcnt lgkmcnt(0)")
    R("s_add_u32 s16, s6, s24"); R("s_addc_u32 s17, s7, 0"); R("s_and_b32 s17, s17, 0xffff")
    R(f"s_mov_b32 s18, {8*PS}"); R("s_mov_b32 s19, 0x20000")
    for g in range(8):
        A.bload(16 + g * 4, 4, 3, 16, 15, flags=cfg.rd_flags)
        if g < 7: R(f"s_add_u32 s15, s15, {PS}")
    R("s_mov_b32 s20, s4"); R("s_and_b32 s21, s5, 0xffff"); R(f"s_mov_b32 s22, {32*80*896*2}"); R("s_mov_b32 s23, 0x20000")
    R("s_mul_i32 s25, s11, 205"); R("s_lshr_b32 s25, s25, 10")
    R("s_mul_i32 s26, s25, 5"); R("s_sub_u32 s26, s11, s26")
    R("s_lshl_b32 s25, s25, 6"); R("s_mov_b32 s27, 32")
    R("s_cmp_lt_u32 s11, 40"); R("s_cbranch_scc1 L_red_dec")
    R("s_sub_u32 s12, s11, 40"); R("s_lshr_b32 s13, s12, 3"); R("s_and_b32 s26, s12, 7")
    R("s_mul_i32 s25, s13, 96"); R("s_add_u32 s25, s25, 512")
    R("s_cmp_lt_u32 s26, 5"); R("s_cbranch_scc1 L_red_dec")
    R("s_mov_b32 s27, 0x4000000"); R("s_cmp_lt_u32 s26, 7"); R(f"s_cselect_b32 s27, {16*1792}, s27")
    R("s_sub_u32 s26, s26, 5"); R("s_lshl_b32 s26, s26, 1"); R("s_add_u32 s25, s25, 64")
    A.label("L_red_dec")
    R("s_and_b32 s12, s10, 31"); R("s_lshr_b32 s14, s10, 5")
    R("s_mul_i32 s24, s12, 80"); R("s_lshl_b32 s26, s26, 4"); R("s_add_u32 s24, s24, s26"); R("s_mul_i32 s24, s24, 1792")
    R("s_mul_i32 s26, s14, 896"); R("s_add_u32 s24, s24, s26"); R("s_add_u32 s24, s24, s25")
    V("v_and_b32 v4, 15, v2", 4, [2])
    V("v_mul_u32_u24 v4, 1792, v4", 4, [4])
    V("v_bfe_u32 v5, v2, 4, 1", 5, [2])
    V("v_mul_lo_u32 v5, s27, v5", 5, [5])
    V("v_add_u32 v4, v4, v5", 4, [4, 5])
    V("v_lshrrev_b32 v5, 5, v2", 5, [2])
    V("v_lshl_add_u32 v4, v5, 4, v4", 4, [4, 5])
    for g in range(8):
        src = 16 + g * 4
        for d in range(4):
            lo = 48 + 2 * d; hi = lo + 1
            if g == 0:
                V(f"v_lshlrev_b32 v{lo}, 16, v{src+d}", lo, [src + d])
                V(f"v_and_b32 v{hi}, 0xffff0000, v{src+d}", hi, [src + d])
            else:
                V(f"v_lshlrev_b32 v6, 16, v{src+d}", 6, [src + d])
                V(f"v_and_b32 v7, 0xffff0000, v{src+d}", 7, [src + d])
                A.valu(f"v_pk_add_f32 v[{lo}:{lo+1}], v[{lo}:{lo+1}], v[6:7]", [lo, lo + 1], [lo, lo + 1, 6, 7])
    for d in range(4): V(f"v_cvt_pk_bf16_f32 v{8+d}, v{48+2*d}, v{49+2*d}", 8 + d, [48 + 2 * d, 49 + 2 * d])
    A.valu("v_permlane16_swap_b32 v8, v10", [8, 10], [8, 10], kind="perm")
    A.valu("v_permlane16_swap_b32 v9, v11", [9, 11], [9, 11], kind="perm")
    A.bstore(8, 4, 4, 20, 24)
    if cfg.span:
        A.raw("s_waitcnt vmcnt(0)")
        A.raw("s_memrealtime s[30:31]")
        A.raw("s_waitcnt lgkmcnt(0)")
        A.raw("v_mov_b32 v8, s28"); A.raw("v_mov_b32 v9, s30"); A.raw("v_mov_b32 v10, 0")
        R("s_add_u32 s16, s6, 0x8100000"); R("s_addc_u32 s17, s7, 0"); R("s_and_b32 s17, s17, 0xffff")
        R("s_mov_b32 s18, 0x100000"); R("s_mov_b32 s19, 0x20000"); R("s_lshl_b32 s15, s9, 3")
        A.raw("buffer_store_dwordx2 v[8:9], v10, s[16:19], s15 offen")
    A.label("L_red_done")
    A.raw("s_endpgm")
    return kn, A


def build(cfg, path):
    cfg.path = path
    hdr = open("cdna_kernels/" + NAME + ".s.ref").read().split("\n")
    head = [l for l in hdr if l.startswith(";") and "@launch" not in l and "Override launch" not in l and "grid=ceil" not in l]
    k1, A1 = gen_main(cfg)
    ks = [(k1, A1)]
    out = "\n".join(head) + "\n"
    out += """; Generated by the author's own Python generator (hand-scheduled, software-pipelined MFMA streams).
"""
    if cfg.listfmt: out += f"; @launch kernel={k1} grid=(256,1,1) block=(512,1,1) lds=163840\n"
    else: out += f"; @launch grid=(256,1,1) block=(512,1,1) lds=163840\n"
    if not cfg.fuse:
        k2, A2 = gen_reduce(cfg)
        ks.append((k2, A2))
        out += f"; @launch kernel={k2} grid=({4608 // cfg.rw},1,1) block=({64 * cfg.rw},1,1) lds=0\n"
    out += '.amdgcn_target "amdgcn-amd-amdhsa--gfx950"\n.text\n'
    for k, A in ks:
        out += f".globl {k}\n.p2align 8\n.type {k},@function\n" + A.text()
    out += '.section .rodata,"a"\n.p2align 6\n'
    out += kernel_desc(k1, 256, 102, 256)
    if not cfg.fuse: out += ".p2align 6\n" + kernel_desc(k2, 56, 32, 56)
    open(path, "w").write(out)
    print(path, "mfma", A1.nmfma, "lines", len(A1.lines))

if __name__ == "__main__":
    cfg = Cfg()
    for a in sys.argv[2:]:
        k, v = a.split("=")
        setattr(cfg, k, type(getattr(cfg, k))(v))
    if cfg.span: cfg.stamp = 1; cfg.rt = 1
    build(cfg, sys.argv[1] if len(sys.argv) > 1 else "cdna_kernels/" + NAME + ".s")
```
